```python
import torch

def _softmax(x, axis=-1):
    return torch.softmax(x, dim=axis)
def _gelu(x):
    return torch.nn.functional.gelu(x, approximate="tanh")
def _silu(x):
    return torch.nn.functional.silu(x)
def _sigmoid(x):
    return torch.sigmoid(x)
def _layernorm(x, axis=-1, eps=1e-5):
    m = x.mean(dim=axis, keepdim=True)
    v = x.var(dim=axis, keepdim=True, unbiased=False)
    return (x - m) / torch.sqrt(v + eps)
def _scatter_add(tgt, idx, src, axis=0):
    return tgt.clone().index_add_(axis, idx, src)
def _segment_sum(src, seg, n):
    out = torch.zeros((n,) + src.shape[1:], dtype=src.dtype)
    return out.index_add_(0, seg, src)
def _pad(x, pw):
    flat = tuple(v for pair in reversed(pw) for v in pair)
    return torch.nn.functional.pad(x, flat)

kernel_name = 'parallel_sum__softmax_full_mha__dense_activation_relu__prompt'

def setup_inputs():

    _w = (lambda a: (lambda t: t.to(torch.bfloat16) if t.is_floating_point() else t)(torch.as_tensor(a)))
    def _A_setup():
        B, S, D = 1, 2048, 576
        return {
            "x": _w((lambda *s: torch.randn(*s, dtype=torch.bfloat16) * 0.05)(B, S, D)),
            "wqkv": _w((lambda *s: torch.randn(*s, dtype=torch.bfloat16) * 0.2)(D, 3 * D)),
            "wo": _w((lambda *s: torch.randn(*s, dtype=torch.bfloat16) * 0.1)(D, D)),
        }
    _A_in = _A_setup()

    def _B_setup():
        B, S, D, Dff = 1, 2048, 576, 4608
        return {
            "x": _w((lambda *s: torch.randn(*s, dtype=torch.bfloat16) * 0.05)(B, S, D)),
            "w1": _w((lambda *s: torch.randn(*s, dtype=torch.bfloat16) * 0.1)(D, Dff)),
            "w2": _w((lambda *s: torch.randn(*s, dtype=torch.bfloat16) * 0.1)(Dff, D)),
        }
    _B_in = _B_setup()

    return {
        "A_x": _A_in["x"],
        "A_wqkv": _A_in["wqkv"],
        "A_wo": _A_in["wo"],
        "B_x": _B_in["x"],
        "B_w1": _B_in["w1"],
        "B_w2": _B_in["w2"],
    }

def reference(A_x, A_wqkv, A_wo, B_x, B_w1, B_w2):
    def _A_ref(x, wqkv, wo):
        B, S, D = x.shape
        H = 32; Dh = D // H
        qkv = (lambda x, *d: x.permute(*d))((x @ wqkv).reshape(B, S, 3, H, Dh), 2, 0, 3, 1, 4)
        q, k, v = qkv[0], qkv[1], qkv[2]
        scale = Dh ** -0.5
        scores = torch.einsum("bhqd,bhkd->bhqk", q, k) * scale
        p = _softmax(scores, axis=-1)
        o = torch.einsum("bhqk,bhkd->bhqd", p, v)
        return (lambda x, *d: x.permute(*d))(o, 0, 2, 1, 3).reshape(B, S, D) @ wo

    def _B_ref(x, w1, w2):
        h = torch.einsum("bsd,df->bsf", x, w1)
        zero = torch.zeros_like(h)
        h = torch.maximum(h, zero)
        return torch.einsum("bsf,fd->bsd", h, w2)

    x = A_x
    xn = _layernorm(x, axis=-1)
    return x + _A_ref(xn, A_wqkv, A_wo) + _B_ref(xn, B_w1, B_w2)
```

```python
NAME = "parallel_sum__softmax_full_mha__dense_activation_relu__prompt"

KA_X, KA_WQKV, KA_WO, KA_BX, KA_W1, KA_W2, KA_OUT, KA_DBG, KA_WS = 0, 8, 16, 24, 32, 40, 48, 56, 64

LAYOUT_COMMENT = """; Kernarg layout for this problem (72 bytes, ptrs only, base s[0:1]):
"""


class Asm:
    def __init__(self):
        self.lines = []

    def __call__(self, s=""):
        for ln in s.split("\n"):
            ln = ln.strip()
            if ln:
                self.lines.append(("" if ln.endswith(":") else "    ") + ln)
        return self

    def text(self):
        return "\n".join(self.lines) + "\n"

    def srd(self, dst, ptr, nbytes, offset=0):
        if offset:
            self(f"s_add_u32 s{dst}, s{ptr}, {offset}")
            self(f"s_addc_u32 s{dst + 1}, s{ptr + 1}, 0")
            self(f"s_and_b32 s{dst + 1}, s{dst + 1}, 0xffff")
        else:
            self(f"s_mov_b32 s{dst}, s{ptr}")
            self(f"s_and_b32 s{dst + 1}, s{ptr + 1}, 0xffff")
        self(f"s_mov_b32 s{dst + 2}, {nbytes}")
        self(f"s_mov_b32 s{dst + 3}, 0x20000")


def kernel_head(label):
    return f".globl {label}\n.p2align 8\n.type {label},@function\n{label}:\n"


def kernel_desc(label, vgpr, sgpr=96, accum=None, wg_y=False):
    accum = accum if accum is not None else min(256, (vgpr + 3) // 4 * 4)
    y = "  .amdhsa_system_sgpr_workgroup_id_y 1\n" if wg_y else ""
    return f""".section .rodata,"a"
.p2align 6
.amdhsa_kernel {label}
  .amdhsa_next_free_vgpr {vgpr}
  .amdhsa_next_free_sgpr {sgpr}
  .amdhsa_accum_offset {accum}
  .amdhsa_group_segment_fixed_size 0
  .amdhsa_kernarg_size 72
  .amdhsa_user_sgpr_count 2
  .amdhsa_user_sgpr_kernarg_segment_ptr 1
  .amdhsa_system_sgpr_workgroup_id_x 1
{y}.end_amdhsa_kernel
.text
"""


def file_head(launches):
    s = LAYOUT_COMMENT
    for (label, g, b, lds) in launches:
        s += f"; @launch kernel={label} grid=({g[0]},{g[1]},{g[2]}) block=({b[0]},{b[1]},{b[2]}) lds={lds}\n"
    s += '.amdgcn_target "amdgcn-amd-amdhsa--gfx950"\n.text\n'
    return s
```

```python
import sys
sys.path.insert(0, "gen")
from asmlib import *

WS_XN = 0
WS_QKV = 4 << 20
WS_O = 16 << 20
WS_A = 20 << 20
WS_H = 32 << 20
WS_B = 64 << 20


def ln_kernel():
    L = "n_ln_kernel"
    a = Asm()
    a(f"""s_cmp_ge_u32 s2, 2048
    s_cbranch_scc1 {L}_end
    s_load_dwordx2 s[4:5], s[0:1], {KA_X}
    s_load_dwordx2 s[6:7], s[0:1], {KA_WS}
    s_waitcnt lgkmcnt(0)""")
    a.srd(8, 4, 2048 * 1152)
    a.srd(12, 6, 2048 * 1152, WS_XN)
    a("s_mul_i32 s16, s2, 1152\nv_lshlrev_b32 v1, 1, v0\nv_add_u32 v1, s16, v1")
    for i in range(9):
        a(f"buffer_load_ushort v{8 + i}, v1, s[8:11], 0 offen offset:{128 * i}")
    a("s_waitcnt vmcnt(0)")
    for i in range(9):
        a(f"v_lshlrev_b32 v{8 + i}, 16, v{8 + i}")
    a("v_mov_b32 v2, 0")
    for i in range(9):
        a(f"v_add_f32 v2, v2, v{8 + i}")

    def allreduce(r):
        for off in (0x041F, 0x081F, 0x101F, 0x201F, 0x401F):
            a(f"ds_swizzle_b32 v3, v{r} offset:{off}\ns_waitcnt lgkmcnt(0)\nv_add_f32 v{r}, v{r}, v3")
        a(f"s_nop 1\nv_readlane_b32 s20, v{r}, 0\nv_readlane_b32 s21, v{r}, 32\ns_nop 3\nv_mov_b32 v{r}, s20\nv_add_f32 v{r}, s21, v{r}")
    allreduce(2)
    a("s_mov_b32 s22, 0x3ae38e39\nv_mul_f32 v2, s22, v2")
    a("v_mov_b32 v4, 0")
    for i in range(9):
        a(f"v_sub_f32 v{8 + i}, v{8 + i}, v2\nv_fmac_f32 v4, v{8 + i}, v{8 + i}")
    allreduce(4)
    a("v_mul_f32 v4, s22, v4\nv_add_f32 v4, 0x3727c5ac, v4\nv_rsq_f32 v4, v4\ns_nop 1")
    for i in range(9):
        a(f"v_mul_f32 v{8 + i}, v{8 + i}, v4\nv_cvt_pk_bf16_f32 v{8 + i}, v{8 + i}, v{8 + i}")
        a(f"buffer_store_short v{8 + i}, v1, s[12:15], 0 offen offset:{128 * i}")
    a(f"s_waitcnt vmcnt(0)\n{L}_end:\ns_endpgm")
    return kernel_head(L) + a.text() + kernel_desc(L, 32)


def gemm_kernel(L, M, N, K, a_off, b_ka, c_off, relu=False, qscale=None):
    nb = N // 64
    a = Asm()
    a(f"""s_cmp_ge_u32 s2, {M * nb}
    s_cbranch_scc1 {L}_end
    s_load_dwordx2 s[4:5], s[0:1], {b_ka}
    s_load_dwordx2 s[6:7], s[0:1], {KA_WS}
    s_mov_b32 s16, {(2 ** 32 + nb - 1) // nb}
    s_mul_hi_u32 s17, s2, s16
    s_mul_i32 s18, s17, {nb}
    s_sub_u32 s18, s2, s18
    s_waitcnt lgkmcnt(0)""")
    a.srd(8, 6, M * K * 2, a_off)
    a.srd(12, 4, K * N * 2)
    a.srd(20, 6, M * N * 2, c_off)
    a(f"""s_mul_i32 s24, s17, {K * 2}
    s_lshl_b32 s25, s18, 7
    v_lshlrev_b32 v1, 1, v0
    v_add_u32 v1, s25, v1
    v_mov_b32 v2, s24
    v_mov_b32 v3, v1
    v_mov_b32 v4, 0
    s_mov_b32 s26, {K // 4}
    {L}_loop:
    buffer_load_dwordx2 v[8:9], v2, s[8:11], 0 offen""")
    for j in range(4):
        a(f"buffer_load_ushort v{12 + j}, v3, s[12:15], 0 offen\nv_add_u32 v3, {N * 2}, v3")
    a("v_add_u32 v2, 8, v2\ns_waitcnt vmcnt(0)")
    for j in range(4):
        src = 8 + j // 2
        if j % 2 == 0:
            a(f"v_lshlrev_b32 v10, 16, v{src}")
        else:
            a(f"v_and_b32 v10, 0xffff0000, v{src}")
        a(f"v_lshlrev_b32 v{12 + j}, 16, v{12 + j}\nv_fmac_f32 v4, v10, v{12 + j}")
    a(f"s_sub_u32 s26, s26, 1\ns_cmp_lg_u32 s26, 0\ns_cbranch_scc1 {L}_loop")
    if relu:
        a("v_max_f32 v4, 0, v4")
    if qscale is not None:
        a(f"s_cmp_lt_u32 s18, 9\ns_cselect_b32 s27, {qscale}, 0x3f800000\nv_mul_f32 v4, s27, v4")
    a(f"""v_cvt_pk_bf16_f32 v4, v4, v4
    s_mul_i32 s24, s17, {N * 2}
    v_add_u32 v1, s24, v1
    buffer_store_short v4, v1, s[20:23], 0 offen
    s_waitcnt vmcnt(0)
    {L}_end:
    s_endpgm""")
    return kernel_head(L) + a.text() + kernel_desc(L, 32)


def attn_kernel():
    L = "n_attn_kernel"
    a = Asm()
    a(f"""s_cmp_ge_u32 s2, 1024
    s_cbranch_scc1 {L}_end
    s_load_dwordx2 s[6:7], s[0:1], {KA_WS}
    s_lshr_b32 s16, s2, 5
    s_and_b32 s17, s2, 31
    s_waitcnt lgkmcnt(0)""")
    a.srd(8, 6, 2048 * 3456, WS_QKV)
    a.srd(12, 6, 2048 * 1152, WS_O)
    a(f"""s_mul_i32 s18, s16, 36
    s_lshl_b32 s19, s17, 6
    v_add_u32 v1, s19, v0
    s_mov_b32 s20, 3456
    v_mul_lo_u32 v2, v1, s20
    v_add_u32 v2, s18, v2""")
    for d in range(18):
        a(f"buffer_load_ushort v{16 + d}, v2, s[8:11], 0 offen offset:{2 * d}")
    a("s_waitcnt vmcnt(0)")
    for d in range(18):
        a(f"v_lshlrev_b32 v{16 + d}, 16, v{16 + d}")

    def score(koff):
        for j in range(9):
            a(f"buffer_load_dword v{40 + j}, v3, s[8:11], 0 offen offset:{koff + 4 * j}")

    def dot():
        a("v_mov_b32 v5, 0")
        for j in range(9):
            a(f"v_lshlrev_b32 v6, 16, v{40 + j}\nv_fmac_f32 v5, v6, v{16 + 2 * j}")
            a(f"v_and_b32 v6, 0xffff0000, v{40 + j}\nv_fmac_f32 v5, v6, v{17 + 2 * j}")
    a(f"s_add_u32 s21, s18, 1152\nv_mov_b32 v3, s21\nv_mov_b32 v4, 0xff800000\ns_mov_b32 s22, 2048\n{L}_p1:")
    score(0)
    a("s_waitcnt vmcnt(0)")
    dot()
    a(f"v_max_f32 v4, v4, v5\nv_add_u32 v3, 3456, v3\ns_sub_u32 s22, s22, 1\ns_cmp_lg_u32 s22, 0\ns_cbranch_scc1 {L}_p1")
    a(f"v_mov_b32 v3, s21\nv_mov_b32 v7, 0\ns_mov_b32 s22, 2048")
    for d in range(18):
        a(f"v_mov_b32 v{64 + d}, 0")
    a(f"{L}_p2:")
    score(0)
    for j in range(9):
        a(f"buffer_load_dword v{52 + j}, v3, s[8:11], 0 offen offset:{1152 + 4 * j}")
    a("s_waitcnt vmcnt(0)")
    dot()
    a("v_sub_f32 v5, v5, v4\nv_exp_f32 v5, v5\ns_nop 1\nv_cvt_pk_bf16_f32 v5, v5, v5\nv_lshlrev_b32 v5, 16, v5\nv_add_f32 v7, v7, v5")
    for j in range(9):
        a(f"v_lshlrev_b32 v6, 16, v{52 + j}\nv_fmac_f32 v{64 + 2 * j}, v6, v5")
        a(f"v_and_b32 v6, 0xffff0000, v{52 + j}\nv_fmac_f32 v{65 + 2 * j}, v6, v5")
    a(f"v_add_u32 v3, 3456, v3\ns_sub_u32 s22, s22, 1\ns_cmp_lg_u32 s22, 0\ns_cbranch_scc1 {L}_p2")
    a("v_rcp_f32 v7, v7\ns_mov_b32 s20, 1152\nv_mul_lo_u32 v2, v1, s20\nv_add_u32 v2, s18, v2")
    for j in range(9):
        a(f"v_mul_f32 v{64 + 2 * j}, v{64 + 2 * j}, v7\nv_mul_f32 v{65 + 2 * j}, v{65 + 2 * j}, v7")
        a(f"v_cvt_pk_bf16_f32 v{40 + j}, v{64 + 2 * j}, v{65 + 2 * j}")
        a(f"buffer_store_dword v{40 + j}, v2, s[12:15], 0 offen offset:{4 * j}")
    a(f"s_waitcnt vmcnt(0)\n{L}_end:\ns_endpgm")
    return kernel_head(L) + a.text() + kernel_desc(L, 96)


def final_kernel():
    L = "n_final_kernel"
    a = Asm()
    a(f"""s_cmp_ge_u32 s2, {2048 * 576 // 512}
    s_cbranch_scc1 {L}_end
    s_load_dwordx2 s[4:5], s[0:1], {KA_X}
    s_load_dwordx2 s[6:7], s[0:1], {KA_WS}
    s_load_dwordx2 s[28:29], s[0:1], {KA_OUT}
    s_waitcnt lgkmcnt(0)""")
    a.srd(8, 4, 2048 * 1152)
    a.srd(12, 6, 2048 * 1152, WS_A)
    a.srd(16, 6, 2048 * 1152, WS_B)
    a.srd(20, 28, 2048 * 1152)
    a("""s_lshl_b32 s24, s2, 10
    v_lshlrev_b32 v1, 2, v0
    v_add_u32 v1, s24, v1
    buffer_load_dword v2, v1, s[8:11], 0 offen
    buffer_load_dword v3, v1, s[12:15], 0 offen
    buffer_load_dword v4, v1, s[16:19], 0 offen
    s_waitcnt vmcnt(0)""")
    for half in (0, 1):
        for r in (2, 3, 4):
            if half == 0:
                a(f"v_lshlrev_b32 v{8 + r}, 16, v{r}")
            else:
                a(f"v_and_b32 v{8 + r}, 0xffff0000, v{r}")
        a(f"v_add_f32 v{20 + half}, v10, v11\nv_add_f32 v{20 + half}, v{20 + half}, v12")
    a(f"""v_cvt_pk_bf16_f32 v5, v20, v21
    buffer_store_dword v5, v1, s[20:23], 0 offen
    s_waitcnt vmcnt(0)
    {L}_end:
    s_endpgm""")
    return kernel_head(L) + a.text() + kernel_desc(L, 32)


import struct, math
c = 18 ** -0.5 * math.log2(math.e)
cbits = struct.unpack("<I", struct.pack("<f", c))[0]
launches = [
    ("n_ln_kernel", (2048, 1, 1), (64, 1, 1), 0),
    ("n_qkv_kernel", (2048 * 27, 1, 1), (64, 1, 1), 0),
    ("n_attn_kernel", (1024, 1, 1), (64, 1, 1), 0),
    ("n_wo_kernel", (2048 * 9, 1, 1), (64, 1, 1), 0),
    ("n_f1_kernel", (2048 * 72, 1, 1), (64, 1, 1), 0),
    ("n_f2_kernel", (2048 * 9, 1, 1), (64, 1, 1), 0),
    ("n_final_kernel", (2304, 1, 1), (256, 1, 1), 0),
]
src = file_head(launches)
src += ln_kernel()
src += gemm_kernel("n_qkv_kernel", 2048, 1728, 576, WS_XN, KA_WQKV, WS_QKV, qscale=hex(cbits))
src += attn_kernel()
src += gemm_kernel("n_wo_kernel", 2048, 576, 576, WS_O, KA_WO, WS_A)
src += gemm_kernel("n_f1_kernel", 2048, 4608, 576, WS_XN, KA_W1, WS_H, relu=True)
src += gemm_kernel("n_f2_kernel", 2048, 576, 4608, WS_H, KA_W2, WS_B)
src += final_kernel()
open(sys.argv[1] if len(sys.argv) > 1 else "naive.s", "w").write(src)
```

```python
import struct
from asmlib import *
from layout import *


def fbits(x):
    return hex(struct.unpack("<I", struct.pack("<f", x))[0])


QA1, QA2, QB1, QB2 = 8, 12, 16, 20
KF1 = (24, 32)
KF2 = (28, 36)
VF = ((40, 44), (48, 52))
PA, PB = 56, 64
SA, SB = 72, 88
OA, OB = 104, 120
T0 = 136
V_DMA, V_K1, V_K2, V_V = 1, 2, 3, 4
NVGPR = 144


def r(base, n=4):
    return f"v[{base}:{base + n - 1}]"


def mf(d, a, b, c):
    cs = "0" if c is None else r(c, 16)
    return f"v_mfma_f32_32x32x16_bf16 {r(d, 16)}, {r(a)}, {r(b)}, {cs}"


def phase(a, Sx, Px, Sprev, Pprev, mfmas, extra):
    e = lambda i: f"v_exp_f32 v{Sx + i}, v{Sx + i}"
    c = lambda i: f"v_cvt_pk_bf16_f32 v{Px + i}, v{Sx + 2 * i}, v{Sx + 2 * i + 1}"
    groups = [[f"v_cvt_pk_bf16_f32 v{Pprev + 7}, v{Sprev + 14}, v{Sprev + 15}", e(0), e(1), e(2), c(0), e(3)],
              [e(4), c(1), e(5), e(6), c(2), e(7)],
              [e(8), c(3), e(9), e(10), c(4), e(11)],
              [e(12), c(5), e(13), e(14), c(6), e(15)]]
    for k in range(4):
        a(mfmas[k])
        for ins in extra.get(k, []):
            a(ins)
        for ins in groups[k]:
            a(ins)


def head_and_block(a, wgid):
    a(f"""s_and_b32 s16, {wgid}, 7
    s_lshr_b32 s17, {wgid}, 3
    s_lshl_b32 s16, s16, 2
    s_and_b32 s18, s17, 3
    s_add_u32 s16, s16, s18
    s_lshr_b32 s17, s17, 2""")


def kv_dma(a, src, slot, srd="s[8:11]", voff=V_DMA, tmp="s29"):
    for i in range(5):
        a(f"s_add_u32 m0, {slot}, {i * 1024}")
        a(f"s_add_u32 {tmp}, {src}, {i * 1024}")
        a(f"buffer_load_dwordx4 v{voff}, {srd}, {tmp} offen lds")


def attn_role(a, L, R, own_dma, lds_base=0, prio=None, sf="", stamps=False):
    a(f"""v_lshlrev_b32 v{V_DMA}, 4, v0
    s_lshl_b32 s18, s17, 3
    s_lshl_b32 s19, s20, 1
    s_add_u32 s18, s18, s19""")
    if own_dma:
        a.srd(8, 6, KV_BYTES, WS_KV)
    a.srd(12, 6, QF1_BYTES + QF2_BYTES, WS_QF1)
    a.srd(32, 6, OF_BYTES, WS_OF)
    a(f"""s_lshl_b32 s21, s16, 16
    s_lshl_b32 s22, s18, 10
    s_add_u32 s21, s21, s22
    buffer_load_dwordx4 {r(QA1)}, v{V_DMA}, s[12:15], s21 offen
    buffer_load_dwordx4 {r(QB1)}, v{V_DMA}, s[12:15], s21 offen offset:1024
    v_and_b32 v5, 31, v0
    v_lshlrev_b32 v{V_K2}, 2, v5
    s_lshl_b32 s21, s16, 13
    s_lshl_b32 s22, s18, 7
    s_add_u32 s21, s21, s22
    s_add_u32 s21, s21, {QF1_BYTES}""")
    for x in (QA2, QB2):
        for i in range(4):
            a(f"v_mov_b32 v{x + i}, 0")
    a(f"""s_mov_b32 exec_hi, 0
    buffer_load_dword v{QA2}, v{V_K2}, s[12:15], s21 offen
    buffer_load_dword v{QB2}, v{V_K2}, s[12:15], s21 offen offset:128
    s_mov_b32 exec_hi, -1""")
    if own_dma:
        a(f"""s_mul_i32 s22, s16, {KV_HEAD}
        s_mul_i32 s23, s20, {5 * 1024}
        s_add_u32 s22, s22, s23
        s_add_u32 s23, s23, {lds_base}""")
        kv_dma(a, "s22", "s23")
        a(f"s_add_u32 s22, s22, {KV_CHUNK}\ns_add_u32 s28, s23, {KV_CHUNK}")
        kv_dma(a, "s22", "s28")
        a(f"s_add_u32 s22, s22, {KV_CHUNK}")
    a(f"""v_add_u32 v{V_K1}, {lds_base}, v{V_DMA}
    v_add_u32 v{V_K2}, {lds_base + KV_KF2}, v{V_K2}
    v_lshrrev_b32 v6, 5, v0
    v_mul_u32_u24 v6, 320, v6
    v_subrev_u32 v7, 20, v5
    v_cmp_gt_u32 vcc, 20, v5
    s_nop 1
    v_cndmask_b32 v7, v7, v5, vcc
    v_lshlrev_b32 v7, 4, v7
    v_add_u32 v{V_V}, v6, v7
    v_add_u32 v{V_V}, {lds_base + KV_VT}, v{V_V}""")
    for b in (0, 1):
        a(f"v_mov_b32 v{KF2[b] + 1}, 0x3f80\nv_mov_b32 v{KF2[b] + 2}, 0\nv_mov_b32 v{KF2[b] + 3}, 0")
    for b in (0, 1):
        for f in (0, 1):
            for i in range(4):
                a(f"v_mov_b32 v{VF[b][f] + i}, 0")
    for i in range(8):
        a(f"v_mov_b32 v{PB + i}, 0")
    for i in range(16):
        a(f"v_mov_b32 v{OA + i}, 0\nv_mov_b32 v{OB + i}, 0")
    if stamps:
        a("v_mov_b32 v140, 0\ns_mov_b32 s50, 0")
    a(f"s_waitcnt vmcnt({5 if own_dma else 0})")
    if stamps:
        a("s_memtime s[52:53]\ns_waitcnt lgkmcnt(0)\ns_sub_u32 s52, s52, s60\nv_writelane_b32 v140, s52, 32")
    a("s_barrier")
    if stamps:
        a("s_memtime s[52:53]\ns_waitcnt lgkmcnt(0)\ns_sub_u32 s52, s52, s60\nv_writelane_b32 v140, s52, 33")
    a(f"ds_read_b128 {r(KF1[0])}, v{V_K1}\nds_read_b32 v{KF2[0]}, v{V_K2}\ns_waitcnt lgkmcnt(0)")
    a(mf(SA, KF1[0], QA1, None))
    a(mf(SB, KF1[0], QB1, None))
    a(mf(SA, KF2[0], QA2, SA))
    a(mf(SB, KF2[0], QB2, SB))
    a("s_nop 7\ns_nop 7")
    for (Sx, Q2, t) in ((SA, QA2, T0), (SB, QB2, T0 + 2)):
        a(f"v_max3_f32 v{t}, v{Sx}, v{Sx + 1}, v{Sx + 2}")
        for i in range(3, 15, 2):
            a(f"v_max3_f32 v{t}, v{t}, v{Sx + i}, v{Sx + i + 1}")
        a(f"v_max_f32 v{t}, v{t}, v{Sx + 15}")
        a(f"v_mov_b32 v{t + 1}, v{t}\ns_nop 1\nv_permlane32_swap_b32 v{t}, v{t + 1}\ns_nop 1")
        a(f"v_max_f32 v{t}, v{t}, v{t + 1}")
        a(f"v_add_f32 v{t}, {fbits(M_BIAS)}, v{t}")
        a(f"s_mov_b32 exec_hi, 0\nv_cvt_pk_bf16_f32 v{Q2 + 1}, -v{t}, 0\ns_mov_b32 exec_hi, -1")
    a("s_nop 1")
    a(mf(SA, KF1[0], QA1, None))
    a(mf(SA, KF2[0], QA2, SA))
    a("s_mov_b32 s30, 0\ns_mov_b32 s27, 0")
    if prio is not None:
        a(f"s_setprio {prio}")
    a("s_nop 7\ns_nop 3")
    a(f".p2align 6\n{L}_loop:")
    for i in range(8):
        kb, nb = i % 2, (i + 1) % 2
        if i == 7:
            if stamps:
                a("s_memtime s[52:53]\ns_waitcnt lgkmcnt(0)\ns_sub_u32 s52, s52, s60\ns_mov_b32 m0, s50\ns_nop 0\nv_writelane_b32 v140, s52, m0")
            a("s_waitcnt vmcnt(0)\ns_barrier" if own_dma else "s_barrier")
            if stamps:
                a("s_memtime s[52:53]\ns_waitcnt lgkmcnt(0)\ns_sub_u32 s52, s52, s60\ns_add_u32 m0, s50, 16\ns_nop 0\nv_writelane_b32 v140, s52, m0\ns_add_u32 s50, s50, 1")
            a(f"s_add_u32 s26, s27, {KV_CHUNK}\ns_cmp_eq_u32 s26, {R * KV_CHUNK}\ns_cselect_b32 s26, 0, s26")
            if own_dma:
                a(f"s_cmp_ge_u32 s30, 6\ns_cbranch_scc1 {L}_nodma")
                a(f"s_add_u32 s25, s26, {KV_CHUNK}\ns_cmp_eq_u32 s25, {R * KV_CHUNK}\ns_cselect_b32 s25, 0, s25\ns_add_u32 s25, s25, s23")
                kv_dma(a, "s22", "s25")
                a(f"s_add_u32 s22, s22, {KV_CHUNK}\n{L}_nodma:")
            a(f"s_sub_u32 s25, s26, s27\nv_add_u32 v{V_K1}, s25, v{V_K1}\nv_add_u32 v{V_K2}, s25, v{V_K2}")
        ki = (i + 1) % 8
        loads = {0: [f"ds_read_b128 {r(KF1[nb])}, v{V_K1} offset:{ki * 1024}",
                     f"ds_read_b32 v{KF2[nb]}, v{V_K2} offset:{ki * 128}"],
                 1: [f"ds_read_b128 {r(VF[kb][0])}, v{V_V} offset:{i * VT_TILE}",
                     f"ds_read_b128 {r(VF[kb][1])}, v{V_V} offset:{i * VT_TILE + 640}"]}
        phase(a, SA, PA, SB, PB,
              [mf(OB, VF[nb][0], PB, OB), mf(SB, KF1[kb], QB1, None), mf(SB, KF2[kb], QB2, SB), mf(OB, VF[nb][1], PB + 4, OB)],
              loads)
        if i == 7:
            a(f"v_add_u32 v{V_V}, s25, v{V_V}\ns_mov_b32 s27, s26")
        a("s_waitcnt lgkmcnt(0)")
        phase(a, SB, PB, SA, PA,
              [mf(OA, VF[kb][0], PA, OA), mf(SA, KF1[nb], QA1, None), mf(SA, KF2[nb], QA2, SA), mf(OA, VF[kb][1], PA + 4, OA)],
              {})
    a(f"s_add_u32 s30, s30, 1\ns_cmp_lt_u32 s30, 8\ns_cbranch_scc1 {L}_loop")
    a(f"s_nop 0\nv_cvt_pk_bf16_f32 v{PB + 7}, v{SB + 14}, v{SB + 15}\ns_nop 1")
    a(mf(OB, VF[1][0], PB, OB))
    a(mf(OB, VF[1][1], PB + 4, OB))
    a("s_nop 7\ns_nop 7")
    a(f"""s_mul_i32 s21, s18, {36 * 1024}
    s_lshl_b32 s19, s16, 10
    s_add_u32 s19, s19, s21
    s_lshr_b32 s24, s16, 3
    s_add_u32 s24, s24, 32
    s_lshl_b32 s24, s24, 10
    s_add_u32 s21, s21, s24
    s_and_b32 s24, s16, 4
    s_lshl_b32 s24, s24, 7
    s_add_u32 s21, s21, s24
    s_and_b32 s24, s16, 3
    s_lshl_b32 s24, s24, 2
    s_add_u32 s21, s21, s24""")
    for n, O in enumerate((OA, OB)):
        t = T0
        a(f"v_mov_b32 v{t}, v{O + 10}\nv_mov_b32 v{t + 1}, v{O + 10}\ns_nop 1\nv_permlane32_swap_b32 v{t}, v{t + 1}\ns_nop 1")
        a(f"v_rcp_f32 v{t}, v{t}\ns_nop 0")
        for i in range(10):
            a(f"v_mul_f32 v{O + i}, v{O + i}, v{t}")
        for i in range(5):
            a(f"v_cvt_pk_bf16_f32 v{O + i}, v{O + 2 * i}, v{O + 2 * i + 1}")
        a(f"buffer_store_dwordx4 {r(O)}, v{V_DMA}, s[32:35], s19 offen{sf}")
        a(f"s_mov_b32 exec_hi, 0\nbuffer_store_dword v{O + 4}, v{V_DMA}, s[32:35], s21 offen{sf}\ns_mov_b32 exec_hi, -1")
        if n == 0:
            a(f"s_add_u32 s19, s19, {36 * 1024}\ns_add_u32 s21, s21, {36 * 1024}")
    if stamps:
        a(f"""s_load_dwordx2 s[54:55], s[0:1], {KA_DBG}
        s_lshl_b32 s56, s2, 3
        s_add_u32 s56, s56, s20
        s_lshl_b32 s56, s56, 8
        s_add_u32 s56, s56, 8192
        v_lshlrev_b32 v141, 2, v0
        v_add_u32 v141, s56, v141
        s_waitcnt lgkmcnt(0)
        global_store_dword v141, v140, s[54:55]""")
    a("s_waitcnt vmcnt(0)")


def timing_store(a, start, wave):
    a(f"""s_memtime s[42:43]
    s_load_dwordx2 s[44:45], s[0:1], {KA_DBG}
    s_waitcnt lgkmcnt(0)
    s_sub_u32 s42, s42, {start}
    s_lshl_b32 s46, s2, 3
    s_add_u32 s46, s46, {wave}
    s_lshl_b32 s46, s46, 2
    v_mov_b32 v5, s46
    v_mov_b32 v6, s42
    global_store_dword v5, v6, s[44:45]
    s_waitcnt vmcnt(0)""")


def attn_kernel(L="attn_kernel", R=3, timing=False):
    a = Asm()
    if timing:
        a("s_memtime s[40:41]")
    a(f"""s_cmp_ge_u32 s2, 256
    s_cbranch_scc1 {L}_end
    s_load_dwordx2 s[6:7], s[0:1], {KA_WS}
    v_lshrrev_b32 v5, 6, v0
    v_and_b32 v0, 63, v0""")
    head_and_block(a, "s2")
    a("v_readfirstlane_b32 s20, v5\ns_waitcnt lgkmcnt(0)")
    attn_role(a, L, R, True)
    if timing:
        timing_store(a, "s40", "s20")
    a(f"{L}_end:\ns_endpgm")
    return kernel_head(L) + a.text() + kernel_desc(L, NVGPR)
```

```python
import sys
sys.path.insert(0, "gen")
from asmlib import *
import k1, k2, k3


def build(k1kw=None, k2kw=None, k3kw=None):
    launches = [("k1_kernel", (256, 1, 1), (512, 1, 1), k1.K1_LDS),
                ("k2_kernel", (256, 1, 1), (512, 1, 1), k2.K2_LDS),
                ("k3_kernel", (256, 1, 1), (192, 1, 1), k3.K3_LDS)]
    src = file_head(launches)
    src += k1.k1_kernel("k1_kernel", **(k1kw or {}))
    src += k2.k2_kernel("k2_kernel", **(k2kw or {}))
    src += k3.k3_kernel("k3_kernel", **(k3kw or {}))
    return src, launches


if __name__ == "__main__":
    out = sys.argv[1] if len(sys.argv) > 1 else "v1.s"
    src, _ = build()
    open(out, "w").write(src)
    print(out, len(src))
```

```python
import struct
from asmlib import *
from layout import *


def fbits(x):
    return hex(struct.unpack("<I", struct.pack("<f", x))[0])


NS = 13
SLOT = 36864
NSLOT = 4
XB = 112
ACC = (16, 32, 48, 64, 80)
WF = (96, 100, 104, 108)
V_L16, V_VT, V_V3, V_QK, V_SC, V_CONST = 1, 2, 3, 4, 5, 6
V_AQ, V_AX, V_AV = 7, 8, 9
V_AS, V_AD0, V_AD1 = 10, 11, 12
V_T0 = 13


def r(base, n=4):
    return f"v[{base}:{base + n - 1}]"


def slot_kind(j):
    if j < 4:
        return ("q", j)
    if j == 4:
        return ("s", 0)
    return ("d", (j - 5) // 2, (j - 5) % 2)


def loader(a, L, timing=False):
    a("s_sub_u32 s28, s26, 4\nv_mov_b32 v20, 0")
    a(f"""s_lshl_b32 s29, s24, 2
    s_add_u32 s29, s29, s28
    s_mul_i32 s29, s29, {32 * 1152}
    s_mul_i32 s41, s28, {SLOT}
    s_movk_i32 s30, 29128
    s_movk_i32 s31, 1152""")
    for q in range(36):
        a(f"""v_add_u32 v2, {64 * q}, v0
        v_mul_u32_u24 v3, s30, v2
        v_lshrrev_b32 v3, 21, v3
        v_mul_u32_u24 v4, 72, v3
        v_sub_u32 v4, v2, v4
        v_lshrrev_b32 v5, 1, v3
        v_xor_b32 v5, v5, v4
        v_and_b32 v5, 7, v5
        v_and_b32 v4, 0x78, v4
        v_or_b32 v4, v4, v5
        v_lshlrev_b32 v4, 4, v4
        v_mad_u32_u24 v4, v3, s31, v4
        s_add_u32 m0, s41, {q * 1024}
        s_nop 0
        buffer_load_dwordx4 v4, s[8:11], s29 offen lds""")
    a(f"""v_lshrrev_b32 v2, 4, v0
    s_movk_i32 s30, 3456
    v_mul_lo_u32 v2, v2, s30
    v_and_b32 v3, 15, v0
    v_lshrrev_b32 v4, 4, v0
    v_lshlrev_b32 v4, 2, v4
    v_xor_b32 v3, v3, v4
    v_cmp_lt_u32 vcc, 4, v3
    v_mov_b32 v5, {1152 - 80}
    v_lshlrev_b32 v6, 4, v3
    v_cndmask_b32 v5, 0, v5, vcc
    v_cmp_lt_u32 vcc, 9, v3
    v_mov_b32 v7, {1152 - 80}
    v_add_u32 v6, v6, v5
    v_cndmask_b32 v7, 0, v7, vcc
    v_add_u32 v6, v6, v7
    v_cmp_eq_u32 vcc, 15, v3
    v_mov_b32 v7, 0
    s_nop 0
    v_cndmask_b32 v6, v6, v7, vcc
    v_add_u32 v6, v6, v2""")
    a(f"""s_movk_i32 s31, 9216
    v_lshrrev_b32 v2, 2, v0
    v_mul_lo_u32 v2, v2, s31
    v_and_b32 v3, 3, v0
    v_lshlrev_b32 v3, 4, v3
    v_add_u32 v7, v2, v3
    v_lshrrev_b32 v2, 3, v0
    v_mul_lo_u32 v8, v2, s31
    v_bfe_u32 v2, v0, 4, 1
    v_bfe_u32 v4, v0, 2, 1
    v_xor_b32 v2, v2, v4
    v_lshlrev_b32 v2, 6, v2
    v_add3_u32 v8, v8, v2, v3""")
    a(f"""s_mul_i32 s32, s28, {9 * 4 * 3456}
    s_mul_i32 s33, s25, 72
    s_add_u32 s32, s32, s33
    s_and_b32 s33, s25, 1
    s_mul_i32 s35, s25, 576
    s_mul_i32 s34, s28, {9 * 16 * 9216}
    s_add_u32 s34, s34, s35
    s_cmp_eq_u32 s33, 0
    s_cselect_b32 s36, 512, 0
    s_add_u32 s34, s34, s36
    s_mul_i32 s40, s28, {9 * 8 * 9216}
    s_add_u32 s40, s40, s35
    s_lshl_b32 s36, s33, 6
    s_add_u32 s40, s40, s36
    s_mul_i32 s41, s28, {9 * 1024}""")

    def issue(j):
        kind = slot_kind(j)
        base = (j % NSLOT) * SLOT
        for n in range(9):
            a(f"s_add_u32 m0, s41, {base + n * 1024}")
            if kind[0] == "q":
                a(f"s_add_u32 s29, s32, {(kind[1] * 144 + n * 4) * 3456}")
                a("buffer_load_dwordx4 v6, s[16:19], s29 offen lds")
            elif kind[0] == "s":
                a(f"s_add_u32 s29, s34, {n * 16 * 9216}")
                a("buffer_load_dwordx4 v7, s[20:23], s29 offen lds")
            else:
                a(f"s_add_u32 s29, s40, {(kind[2] * 288 + n * 8) * 9216 + kind[1] * 128}")
                a("buffer_load_dwordx4 v8, s[20:23], s29 offen lds")

    def stamp(lane):
        if timing:
            a(f"s_memtime s[68:69]\ns_waitcnt lgkmcnt(0)\ns_sub_u32 s72, s68, s60\nv_writelane_b32 v20, s72, {lane}")
    a("s_waitcnt vmcnt(0)")
    stamp(32)
    a("s_barrier")
    a("s_barrier")
    stamp(33)
    for j in range(2):
        issue(j)
    issued = 2
    for j in range(NS):
        a(f"s_waitcnt vmcnt({9 * (issued - 1 - j)})")
        stamp(16 + j)
        a("s_barrier")
        stamp(j)
        if j + 2 < NS:
            issue(j + 2)
            issued += 1
    if timing:
        a(f"""s_load_dwordx2 s[64:65], s[0:1], {KA_DBG}
        s_lshl_b32 s66, s2, 2
        s_add_u32 s66, s66, s28
        s_lshl_b32 s66, s66, 8
        s_add_u32 s66, s66, 4096
        v_lshlrev_b32 v21, 2, v0
        v_add_u32 v21, s66, v21
        s_waitcnt lgkmcnt(0)
        global_store_dword v21, v20, s[64:65]
        s_waitcnt vmcnt(0)""")
    a(f"s_branch {L}_end")


def pack(A, f):
    return [f"v_cvt_pk_bf16_f32 v{A + 4 * f + i}, v{A + 8 * f + 2 * i}, v{A + 8 * f + 2 * i + 1}" for i in range(4)]


def epi_ffn(A, soff, sf):
    it = []
    for f in range(2):
        it += pack(A, f)
        it += [f"v_pk_max_i16 v{A + 4 * f + i}, v{A + 4 * f + i}, 0" for i in range(4)]
        it.append(f"s_add_u32 s29, {soff}, {f * 1024}\nbuffer_store_dwordx4 {r(A + 4 * f)}, v{V_L16}, s[12:15], s29 offen{sf}")
    return it


def epi_qkv(sf):
    Q, K, V, X = ACC[0], ACC[1], ACC[2], ACC[3]
    it = [f"v_mul_f32 v{Q + i}, s47, v{Q + i}" for i in range(16)]
    it += [f"v_mul_f32 v{X + i}, v{V_SC}, v{X + i}" for i in range(16)]
    for f in range(2):
        it += pack(K, f)
        it.append(f"s_add_u32 s29, s46, {f * KV_HEAD}\nbuffer_store_dwordx4 {r(K + 4 * f)}, v{V_L16}, s[12:15], s29 offen{sf}")
    for f in range(2):
        it += pack(Q, f)
        it.append(f"s_add_u32 s29, s45, {f * 65536}\nbuffer_store_dwordx4 {r(Q + 4 * f)}, v{V_L16}, s[12:15], s29 offen{sf}")
    for f in range(2):
        it += pack(V, f)
        it.append(f"buffer_store_dwordx4 {r(V + 4 * f)}, v{V_VT}, s[12:15], s48 offen offset:{640 * f}{sf}")
    T, P = K + 8, Q + 8
    for b in range(2):
        it += [f"v_mov_b32_dpp v{T + i}, v{X + 8 * b + i} quad_perm:[1,0,3,2] row_mask:0xf bank_mask:0xf" for i in range(8)]
        it += [f"v_cvt_pk_bf16_f32 v{P + 4 * b + i}, v{X + 8 * b + 2 * i}, v{X + 8 * b + 2 * i + 1}" for i in range(4)]
        it += [f"v_cvt_pk_bf16_f32 v{X + 8 * b + i}, v{X + 8 * b + i}, v{T + i}" for i in range(8)]
        it += [f"v_cndmask_b32 v{P + 4 * b + i}, v{P + 4 * b + i}, v{V_CONST}, s[50:51]" for i in range(4)]
        it.append(f"s_mov_b64 exec, s[52:53]\nbuffer_store_dwordx4 {r(P + 4 * b)}, v{V_V3}, s[12:15], s48 offen offset:{640 * b}{sf}\ns_mov_b64 exec, -1")
        for g in (2 * b, 2 * b + 1):
            it.append(f"s_mov_b64 exec, s[54:55]\nbuffer_store_dwordx4 {r(X + 4 * g)}, v{V_QK}, s[12:15], 0 offen offset:{32 * g}{sf}\ns_mov_b64 exec, -1")
    return it


def consumer(a, L, sf):
    t0, t1, t2 = V_T0, V_T0 + 1, V_T0 + 2
    a(f"""v_and_b32 v16, 31, v0
    v_lshrrev_b32 v17, 5, v0
    v_lshlrev_b32 v{V_L16}, 4, v0
    v_and_b32 v18, 15, v0
    v_lshrrev_b32 v19, 2, v18
    v_and_b32 v20, 3, v18
    v_bfe_u32 v21, v0, 4, 1
    v_lshlrev_b32 v22, 3, v17
    v_add_u32 v22, v22, v19""")
    a(f"""v_lshlrev_b32 v23, 6, v22
    v_lshlrev_b32 v24, 3, v20
    v_lshlrev_b32 v25, 5, v21
    v_add3_u32 v{V_AS}, v23, v24, v25
    v_lshlrev_b32 v23, 7, v22
    v_bfe_u32 v26, v19, 1, 1
    v_lshlrev_b32 v26, 6, v26
    v_add3_u32 v23, v23, v24, v25
    v_add_u32 v{V_AD0}, v23, v26
    v_xor_b32 v26, 64, v26
    v_add_u32 v{V_AD1}, v23, v26""")
    a(f"""v_lshlrev_b32 v23, 8, v22
    v_lshlrev_b32 v26, 3, v19
    v_add_u32 v26, v23, v26""") if False else None
    a(f"""v_lshlrev_b32 v23, 8, v22
    v_lshlrev_b32 v26, 3, v19
    v_lshlrev_b32 v27, 2, v21
    v_add_u32 v27, v27, v20""")
    a(f"""v_cmp_lt_u32 vcc, 3, v27
    v_add_u32 v28, 1, v27
    s_nop 0
    v_cndmask_b32 v28, v27, v28, vcc
    v_xor_b32 v29, v28, v26
    v_lshlrev_b32 v29, 3, v29
    v_add_u32 v{V_AQ}, v23, v29
    v_add_u32 v28, 20, v27
    v_xor_b32 v29, v28, v26
    v_lshlrev_b32 v29, 3, v29
    v_add_u32 v{V_AV}, v23, v29
    v_cmp_eq_u32 vcc, 1, v20
    v_mov_b32 v28, 28
    v_mov_b32 v29, 4
    v_cndmask_b32 v28, v28, v29, vcc
    v_cmp_eq_u32 vcc, 2, v20
    v_mov_b32 v29, 14
    s_nop 0
    v_cndmask_b32 v28, v28, v29, vcc
    v_xor_b32 v29, v28, v26
    v_lshlrev_b32 v29, 3, v29
    v_add_u32 v{V_AX}, v23, v29""")
    a(f"""v_cmp_lt_u32 vcc, 3, v27
    v_add_u32 v28, 11, v27
    v_add_u32 v29, 10, v27
    v_cndmask_b32 v28, v29, v28, vcc
    v_xor_b32 v29, v28, v26
    v_lshlrev_b32 v29, 3, v29
    v_add_u32 v{t0}, v23, v29""")
    V_AK = t0
    a(f"""v_mul_u32_u24 v23, 320, v17
    v_cmp_lt_u32 vcc, 17, v16
    v_subrev_u32 v24, 18, v16
    v_mov_b32 v25, {KV_HEAD}
    v_cndmask_b32 v24, v16, v24, vcc
    v_cndmask_b32 v25, 0, v25, vcc
    v_lshlrev_b32 v24, 4, v24
    v_add3_u32 v{V_VT}, v23, v24, v25""")
    a(f"""v_add_u32 v24, 14, v16
    v_lshlrev_b32 v24, 4, v24
    v_add_u32 v24, {KV_HEAD}, v24
    v_subrev_u32 v25, 12, v16
    v_and_b32 v26, 1, v25
    v_add_u32 v26, 18, v26
    v_lshlrev_b32 v26, 4, v26
    v_lshrrev_b32 v25, 1, v25
    v_and_b32 v25, 1, v25
    v_mul_u32_u24 v25, {KV_HEAD}, v25
    v_add_u32 v25, v25, v26
    v_cmp_lt_u32 vcc, 3, v16
    s_nop 1
    v_cndmask_b32 v24, v24, v25, vcc
    v_add_u32 v{V_V3}, v23, v24
    v_and_b32 v24, 1, v16
    v_cmp_eq_u32 vcc, 0, v24
    v_mov_b32 v25, 0x3f803f80
    s_nop 0
    v_cndmask_b32 v{V_CONST}, 0, v25, vcc
    s_mov_b32 s50, 0xf000
    s_mov_b32 s51, 0xf000
    s_mov_b32 s52, 0xf00f
    s_mov_b32 s53, 0xf00f
    s_mov_b32 s54, 0x550
    s_mov_b32 s55, 0x550""")
    a(f"""s_lshl_b32 s28, s25, 1
    s_lshl_b32 s29, s28, 13
    s_lshl_b32 s30, s27, 7
    s_add_u32 s29, s29, s30
    s_add_u32 s29, s29, {WS_QF2}
    s_mul_i32 s30, s28, {KV_HEAD}
    s_lshr_b32 s31, s27, 3
    s_mul_i32 s31, s31, {KV_CHUNK}
    s_add_u32 s30, s30, s31
    s_add_u32 s30, s30, {WS_KV}
    s_and_b32 s31, s27, 7
    s_lshl_b32 s32, s31, 10
    s_add_u32 s46, s30, s32
    s_mul_i32 s32, s31, {VT_TILE}
    s_add_u32 s48, s30, s32
    s_add_u32 s48, s48, {KV_VT}
    s_lshl_b32 s32, s31, 7
    s_add_u32 s30, s30, s32
    s_add_u32 s30, s30, {KV_KF2}
    v_bfe_u32 v24, v16, 1, 1
    v_mul_u32_u24 v25, 8192, v24
    v_add_u32 v25, s29, v25
    v_mul_u32_u24 v26, {KV_HEAD}, v24
    v_add_u32 v26, s30, v26
    v_cmp_lt_u32 vcc, 7, v16
    v_lshlrev_b32 v24, 4, v17
    s_nop 0
    v_cndmask_b32 v25, v25, v26, vcc
    v_add_u32 v{V_QK}, v25, v24
    v_cmp_lt_u32 vcc, 3, v16
    v_mov_b32 v25, {fbits(QSCALE)}
    s_nop 0
    v_cndmask_b32 v24, 1.0, v25, vcc
    v_cmp_lt_u32 vcc, 7, v16
    s_nop 1
    v_cndmask_b32 v{V_SC}, v24, 1.0, vcc
    s_mov_b32 s47, {fbits(QSCALE)}
    s_lshl_b32 s45, s28, 16
    s_lshl_b32 s32, s27, 10
    s_add_u32 s45, s45, s32
    s_add_u32 s45, s45, {WS_QF1}
    s_mul_i32 s44, s27, {288 * 1024}
    s_mul_i32 s32, s25, {18 * 1024}
    s_add_u32 s44, s44, s32
    s_add_u32 s44, s44, {WS_HF}
    s_and_b32 s32, s25, 1
    s_cmp_eq_u32 s32, 0
    s_cselect_b32 s33, {16 * 1024}, 0
    s_add_u32 s42, s44, s33
    s_lshl_b32 s32, s32, 11
    s_add_u32 s43, s44, s32""")
    a(f"""s_and_b32 s32, s26, 3
    s_mul_i32 s32, s32, {SLOT}
    v_mul_u32_u24 v23, 1152, v16
    v_add_u32 v23, s32, v23
    v_lshrrev_b32 v24, 1, v16
    v_and_b32 v24, 7, v24""")
    for c4 in range(4):
        a(f"""v_lshlrev_b32 v25, 0, v17
        v_add_u32 v25, {2 * c4}, v25
        v_xor_b32 v25, v25, v24
        v_lshlrev_b32 v25, 4, v25
        v_add_u32 v{28 + c4}, v23, v25""")
    a("s_barrier")
    for k in range(36):
        a(f"ds_read_b128 {r(XB + 4 * k)}, v{28 + k % 4} offset:{(k // 4) * 128}")
        if k >= 12:
            a(f"s_waitcnt lgkmcnt(12)")
    a("s_waitcnt lgkmcnt(0)\ns_barrier")
    TMP = 32
    a("s_mov_b32 s56, 0x3f803f80\ns_mov_b32 s57, 0xffff0000")
    for i in range(8):
        a(f"v_mov_b32 v{TMP + i}, 0")
    for k in range(36):
        for i in range(4):
            x = XB + 4 * k + i
            a(f"v_dot2_f32_bf16 v{TMP + i}, v{x}, s56, v{TMP + i}")
            a(f"v_dot2_f32_bf16 v{TMP + 4 + i}, v{x}, v{x}, v{TMP + 4 + i}")
    a(f"""s_nop 2
    v_add_f32 v{TMP}, v{TMP}, v{TMP + 1}
    v_add_f32 v{TMP + 2}, v{TMP + 2}, v{TMP + 3}
    v_add_f32 v{TMP + 4}, v{TMP + 4}, v{TMP + 5}
    v_add_f32 v{TMP + 6}, v{TMP + 6}, v{TMP + 7}
    v_add_f32 v{TMP}, v{TMP}, v{TMP + 2}
    v_add_f32 v{TMP + 4}, v{TMP + 4}, v{TMP + 6}
    v_mov_b32 v{TMP + 1}, v{TMP}
    v_mov_b32 v{TMP + 5}, v{TMP + 4}
    s_nop 1
    v_permlane32_swap_b32 v{TMP}, v{TMP + 1}
    v_permlane32_swap_b32 v{TMP + 4}, v{TMP + 5}
    s_nop 1
    v_add_f32 v{TMP}, v{TMP}, v{TMP + 1}
    v_add_f32 v{TMP + 4}, v{TMP + 4}, v{TMP + 5}
    v_mul_f32 v{TMP}, {fbits(1.0 / 576)}, v{TMP}
    v_mul_f32 v{TMP + 4}, {fbits(1.0 / 576)}, v{TMP + 4}
    v_fma_f32 v{TMP + 4}, -v{TMP}, v{TMP}, v{TMP + 4}
    v_max_f32 v{TMP + 4}, 0, v{TMP + 4}
    v_add_f32 v{TMP + 4}, {fbits(1e-5)}, v{TMP + 4}
    v_rsq_f32 v{TMP + 4}, v{TMP + 4}
    s_nop 0
    v_mul_f32 v{TMP + 6}, v{TMP}, v{TMP + 4}
    v_sub_f32 v{TMP + 6}, 0, v{TMP + 6}""")
    for x in range(XB, XB + 144):
        t = TMP + 8 + 2 * (x % 4)
        a(f"v_lshlrev_b32 v{t}, 16, v{x}")
        a(f"v_and_b32 v{t + 1}, s57, v{x}")
        a(f"v_pk_fma_f32 v[{t}:{t + 1}], v[{t}:{t + 1}], v[{TMP + 4}:{TMP + 5}], v[{TMP + 6}:{TMP + 7}] op_sel_hi:[1,0,0]")
        a(f"v_cvt_pk_bf16_f32 v{x}, v{t}, v{t + 1}")

    steps = []
    pair_acc = {0: (ACC[0], ACC[1]), 1: (ACC[2], ACC[3]), 2: (ACC[0], ACC[1]), 3: (ACC[2], ACC[3])}
    for j in range(NS):
        kind = slot_kind(j)
        if kind[0] == "q":
            for k in range(9):
                xs = kind[1] * 9 + k
                for (reg, acc, tr) in ((V_AQ, ACC[0], False), (V_AK, ACC[1], False), (V_AV, ACC[2], True), (V_AX, ACC[3], True)):
                    steps.append((j, reg, k * 4096, 1024, acc, xs, xs == 0, tr))
        elif kind[0] == "s":
            for k in range(36):
                steps.append((j, V_AS, k * 1024, 256, ACC[4], k, k == 0, False))
        else:
            for k in range(18):
                xs = kind[2] * 18 + k
                for T, reg in enumerate((V_AD0, V_AD1)):
                    steps.append((j, reg, k * 2048, 512, pair_acc[kind[1]][T], xs, xs == 0, False))
    total = len(steps)
    assert total == 36 * NS
    cur_base = {V_AQ: 0, V_AK: 0, V_AV: 0, V_AX: 0, V_AS: 0, V_AD0: 0, V_AD1: 0}

    def reads(g):
        j, reg, off, second, acc, xs, first, tr = steps[g]
        base = (j % NSLOT) * SLOT
        out = []
        if cur_base[reg] != base:
            d = base - cur_base[reg]
            out.append(f"v_add_u32 v{reg}, {d & 0xffffffff:#x}, v{reg}")
            cur_base[reg] = base
        buf = WF[g % 4]
        out.append(f"ds_read_b64_tr_b16 v[{buf}:{buf + 1}], v{reg} offset:{off}")
        out.append(f"ds_read_b64_tr_b16 v[{buf + 2}:{buf + 3}], v{reg} offset:{off + second}")
        return out

    a("s_barrier")
    for g in range(3):
        for ins in reads(g):
            a(ins)
    fill = []
    for g in range(total):
        j, reg, off, second, acc, xs, first, tr = steps[g]
        k = g % 36
        if k == 0:
            assert not fill, (j, len(fill))
            if j == 4:
                fill = epi_qkv(sf)
            elif j == 5:
                fill = epi_ffn(ACC[4], "s42", sf)
            elif j >= 7 and (j - 5) % 2 == 0:
                d = (j - 5) // 2 - 1
                fill = []
                for T in range(2):
                    a(f"s_add_u32 s{58 + T}, s43, {(2 * d + T) * 2048}")
                    fill += epi_ffn(pair_acc[d][T], f"s{58 + T}", sf)
        left = min(2, total - 1 - g)
        a(f"s_waitcnt lgkmcnt({2 * left})")
        c = "0" if first else r(acc, 16)
        x = r(XB + 4 * xs)
        w = r(WF[g % 4])
        if tr:
            a(f"v_mfma_f32_32x32x16_bf16 {r(acc, 16)}, {x}, {w}, {c}")
        else:
            a(f"v_mfma_f32_32x32x16_bf16 {r(acc, 16)}, {w}, {x}, {c}")
        if k == 32 and j + 1 < NS:
            a("s_barrier")
        if g + 3 < total:
            for ins in reads(g + 3):
                a(ins)
        if k >= 6 and fill:
            n = -(-len(fill) // (36 - k))
            for _ in range(n):
                a(fill.pop(0))
    a("s_nop 7\ns_nop 7")
    for T in range(2):
        a(f"s_add_u32 s58, s43, {(2 * 3 + T) * 2048}")
        for it in epi_ffn(pair_acc[3][T], "s58", sf):
            a(it)
    a("s_waitcnt vmcnt(0)")


def k1_kernel(L="k1_kernel", mapping="84", sf="", timing=False):
    a = Asm()
    if timing:
        a("s_memtime s[60:61]")
    a(f"""s_cmp_ge_u32 s2, 256
    s_cbranch_scc1 {L}_end
    s_load_dwordx2 s[4:5], s[0:1], {KA_X}
    s_load_dwordx2 s[6:7], s[0:1], {KA_WS}
    s_load_dwordx2 s[36:37], s[0:1], {KA_WQKV}
    s_load_dwordx2 s[38:39], s[0:1], {KA_W1}
    v_lshrrev_b32 v1, 6, v0
    v_and_b32 v0, 63, v0
    s_and_b32 s28, s2, 7
    v_readfirstlane_b32 s26, v1
    s_lshr_b32 s29, s2, 3""")
    if mapping == "84":
        a("""s_and_b32 s25, s28, 3
        s_lshl_b32 s25, s25, 2
        s_and_b32 s30, s29, 3
        s_add_u32 s25, s25, s30
        s_lshr_b32 s24, s28, 2
        s_lshl_b32 s24, s24, 3
        s_lshr_b32 s30, s29, 2
        s_add_u32 s24, s24, s30""")
    else:
        a("""s_and_b32 s25, s28, 1
        s_lshl_b32 s25, s25, 3
        s_and_b32 s30, s29, 7
        s_add_u32 s25, s25, s30
        s_lshr_b32 s24, s28, 1
        s_lshl_b32 s24, s24, 2
        s_lshr_b32 s30, s29, 3
        s_add_u32 s24, s24, s30""")
    a("""s_and_b32 s27, s26, 3
    s_lshl_b32 s30, s24, 2
    s_add_u32 s27, s27, s30
    s_waitcnt lgkmcnt(0)""")
    a.srd(8, 4, S * D * 2)
    a.srd(12, 6, WS_PART)
    a.srd(16, 36, D * 3 * D * 2)
    a.srd(20, 38, D * F * 2)
    a(f"s_cmp_lt_u32 s26, 4\ns_cbranch_scc1 {L}_consumer")
    loader(a, L, timing)
    a(f"{L}_consumer:")
    consumer(a, L, sf)
    if timing:
        a(f"""s_memtime s[62:63]
        s_load_dwordx2 s[64:65], s[0:1], {KA_DBG}
        s_waitcnt lgkmcnt(0)
        s_sub_u32 s62, s62, s60
        s_lshl_b32 s66, s2, 2
        s_add_u32 s66, s66, s26
        s_lshl_b32 s66, s66, 2
        v_mov_b32 v20, s66
        v_mov_b32 v21, s62
        global_store_dword v20, v21, s[64:65]
        s_waitcnt vmcnt(0)""")
    a(f"{L}_end:\ns_endpgm")
    return kernel_head(L) + a.text() + kernel_desc(L, 256)


K1_LDS = NSLOT * SLOT
```

```python
from asmlib import *
from layout import *
import attn
from attn import r, fbits

R = 3
W2_SLOT = 46080
W2_BASE = R * KV_CHUNK
K2_LDS = W2_BASE + 2 * W2_SLOT
FACC = 16
WF = [96 + 4 * i for i in range(8)]
HF = [128 + 4 * i for i in range(6)]
V_L16, V_WA0, V_WA1 = 1, 2, 3
V_PAT = [4, 5, 6, 7, 8]
NSTEP = 72
HDIST, WDIST = 4, 4


class Queue:
    def __init__(self):
        self.n = 0
        self.pos = {}

    def issue(self, tag=None):
        self.n += 1
        if tag is not None:
            self.pos[tag] = self.n

    def need(self, tag):
        return self.n - self.pos[tag]


def ffn_role(a, L, sf="", off=(), stamps=False):
    a(f"""s_sub_u32 s21, s20, 4
    s_and_b32 s22, s2, 7
    s_lshr_b32 s23, s2, 3
    s_lshr_b32 s24, s22, 1
    s_and_b32 s22, s22, 1
    s_lshl_b32 s22, s22, 3
    s_lshr_b32 s25, s23, 2
    s_add_u32 s22, s22, s25
    s_and_b32 s23, s23, 3
    s_lshl_b32 s22, s22, 2
    s_add_u32 s22, s22, s21""")
    a("""s_lshl_b32 s25, s23, 2
    s_lshr_b32 s26, s23, 1
    s_add_u32 s25, s25, s26""")
    a.srd(8, 6, KV_BYTES, WS_KV)
    a.srd(12, 6, HF_BYTES, WS_HF)
    a.srd(48, 36, F * D * 2)
    a.srd(32, 6, 4 * 64 * 18 * 2048, WS_PART)
    a(f"""v_lshlrev_b32 v{V_L16}, 4, v0
    s_mul_i32 s38, s16, {KV_HEAD}
    s_mul_i32 s39, s21, {5 * 1024}
    s_add_u32 s38, s38, s39
    s_mul_i32 s40, s24, {1152 * 1152}
    s_mul_i32 s41, s21, {36 * 1152}
    s_add_u32 s40, s40, s41
    s_lshl_b32 s41, s25, 6
    s_add_u32 s40, s40, s41
    s_mul_i32 s41, s21, {36 * 320}
    s_add_u32 s41, s41, {W2_BASE}
    s_mul_i32 s42, s22, {288 * 1024}
    s_mul_i32 s43, s24, {72 * 1024}
    s_add_u32 s42, s42, s43""")
    a("s_movk_i32 s43, 3277\ns_movk_i32 s44, 1152")
    for n in range(5):
        a(f"""v_add_u32 v10, {64 * n}, v0
        v_mul_u32_u24 v11, s43, v10
        v_lshrrev_b32 v11, 16, v11
        v_mul_u32_u24 v12, 20, v11
        v_sub_u32 v12, v10, v12
        v_lshlrev_b32 v12, 4, v12
        v_mad_u32_u24 v{V_PAT[n]}, v11, s44, v12""")
    vq = Queue()

    def kv_piece(c, i):
        a(f"s_add_u32 m0, s39, {(c % R) * KV_CHUNK + i * 1024}")
        a(f"s_add_u32 s29, s38, {c * KV_CHUNK + i * 1024}")
        a(f"buffer_load_dwordx4 v{V_L16}, s[8:11], s29 offen lds")
        vq.issue(("kv", c))

    def w2_piece(p, n):
        a(f"s_add_u32 m0, s41, {(p % 2) * W2_SLOT + n * 1024}")
        a(f"s_add_u32 s29, s40, {(p * 144 + (n // 5) * 16) * 1152}")
        if n == 11:
            a("s_mov_b64 exec, 0xffff")
        a(f"buffer_load_dwordx4 v{V_PAT[n % 5]}, s[48:51], s29 offen lds")
        if n == 11:
            a("s_mov_b64 exec, -1")
        vq.issue(("w2", p))

    def h_load(k):
        a(f"s_add_u32 s29, s42, {k * 1024}")
        a(f"buffer_load_dwordx4 {r(HF[k % len(HF)])}, v{V_L16}, s[12:15], s29 offen")
        vq.issue(("h", k))

    for i in range(5):
        kv_piece(0, i)
    for n in range(12):
        w2_piece(0, n)
    for k in range(HDIST):
        h_load(k)
    for i in range(5):
        kv_piece(1, i)
    for n in range(12):
        w2_piece(1, n)
    a(f"""v_and_b32 v10, 15, v0
    v_lshrrev_b32 v11, 2, v10
    v_lshrrev_b32 v12, 5, v0
    v_lshlrev_b32 v12, 2, v12
    v_add_u32 v11, v11, v12
    v_mul_u32_u24 v11, 320, v11
    v_and_b32 v12, 3, v10
    v_lshlrev_b32 v12, 3, v12
    v_bfe_u32 v13, v0, 4, 1
    v_lshlrev_b32 v13, 5, v13
    v_add3_u32 v11, v11, v12, v13
    v_add_u32 v{V_WA0}, {W2_BASE}, v11
    v_add_u32 v{V_WA1}, {W2_BASE + W2_SLOT}, v11""")
    def stamp(lane):
        if stamps:
            a(f"s_memtime s[52:53]\ns_waitcnt lgkmcnt(0)\ns_sub_u32 s52, s52, s60\nv_writelane_b32 v156, s52, {lane}")
    if stamps:
        a("v_mov_b32 v156, 0")
    stamp(34)
    a(f"s_waitcnt vmcnt({min(vq.need(('kv', 0)), vq.need(('w2', 0)))})")
    stamp(32)
    a("s_barrier")
    stamp(33)

    units = [(k, t) for k in range(NSTEP) for t in range(5)]
    lq = Queue()

    def w_reads(g):
        k, t = units[g]
        p, kk = divmod(k, 9)
        ad = V_WA0 if p % 2 == 0 else V_WA1
        buf = WF[g % len(WF)]
        if "read" in off:
            lq.issue(); lq.issue(g)
            return
        a(f"ds_read_b64_tr_b16 v[{buf}:{buf + 1}], v{ad} offset:{kk * 5120 + t * 64}")
        lq.issue()
        a(f"ds_read_b64_tr_b16 v[{buf + 2}:{buf + 3}], v{ad} offset:{kk * 5120 + t * 64 + 2560}")
        lq.issue(g)

    nread = 0
    todo = []
    for g, (k, t) in enumerate(units):
        p, kk = divmod(k, 9)
        if kk == 0 and t == 0:
            todo = []
            if p >= 1 and p + 1 < 8:
                todo = [("kv", p + 1, i) for i in range(5)] + [("w2", p + 1, n) for n in range(12)]
            while nread < g + WDIST:
                w_reads(nread)
                nread += 1
        if t == 0:
            a(f"s_waitcnt vmcnt({vq.need(('h', k))})")
        a(f"s_waitcnt lgkmcnt({lq.need(g)})")
        acc = FACC + 16 * t
        c = "0" if k == 0 else r(acc, 16)
        if "mfma" not in off:
            a(f"v_mfma_f32_32x32x16_bf16 {r(acc, 16)}, {r(WF[g % len(WF)])}, {r(HF[k % len(HF)])}, {c}")
        nxt = g + WDIST
        if nxt < len(units) and units[nxt][0] // 9 == p and nread <= nxt:
            w_reads(nread)
            nread += 1
        if t == 4 and k + HDIST < NSTEP:
            h_load(k + HDIST)
        if t in (0, 2) and todo:
            item = todo.pop(0)
            if item[0] == "kv":
                kv_piece(item[1], item[2])
            else:
                w2_piece(item[1], item[2])
        if kk == 8 and t == 4:
            assert not todo
            stamp(40 + p)
            if p + 1 < 8:
                need = [vq.need(("w2", p + 1)), vq.need(("kv", p + 1))]
                a(f"s_waitcnt vmcnt({min(need)})")
            stamp(p)
            a("s_barrier")
            stamp(16 + p)
    a(f"""s_nop 7
    s_nop 7
    s_mul_i32 s43, s24, {64 * 18 * 2048}
    s_mul_i32 s44, s22, {18 * 2048}
    s_add_u32 s43, s43, s44
    s_lshl_b32 s44, s25, 11
    s_add_u32 s43, s43, s44
    s_and_b32 s44, s23, 1""")
    for t in range(5):
        A = FACC + 16 * t
        if t == 0:
            a(f"s_cmp_eq_u32 s44, 1\ns_cbranch_scc1 {L}_skip0")
        for f in range(2):
            for i in range(4):
                a(f"v_cvt_pk_bf16_f32 v{A + 4 * f + i}, v{A + 8 * f + 2 * i}, v{A + 8 * f + 2 * i + 1}")
            a(f"s_add_u32 s29, s43, {t * 2048 + f * 1024}")
            a(f"buffer_store_dwordx4 {r(A + 4 * f)}, v{V_L16}, s[32:35], s29 offen{sf}")
        if t == 0:
            a(f"{L}_skip0:")
    if stamps:
        a(f"""s_load_dwordx2 s[54:55], s[0:1], {KA_DBG}
        s_lshl_b32 s56, s2, 3
        s_add_u32 s56, s56, s20
        s_lshl_b32 s56, s56, 8
        s_add_u32 s56, s56, 8192
        v_lshlrev_b32 v157, 2, v0
        v_add_u32 v157, s56, v157
        s_waitcnt lgkmcnt(0)
        global_store_dword v157, v156, s[54:55]""")
    a("s_waitcnt vmcnt(0)")


def k2_kernel(L="k2_kernel", timing=False, prio=None, fprio=None, sf="", off=()):
    a = Asm()
    if timing:
        a("s_memtime s[60:61]")
    a(f"""s_cmp_ge_u32 s2, 256
    s_cbranch_scc1 {L}_end
    s_load_dwordx2 s[6:7], s[0:1], {KA_WS}
    s_load_dwordx2 s[36:37], s[0:1], {KA_W2}
    v_lshrrev_b32 v5, 6, v0
    v_and_b32 v0, 63, v0""")
    attn.head_and_block(a, "s2")
    a(f"v_readfirstlane_b32 s20, v5\ns_waitcnt lgkmcnt(0)\ns_cmp_lt_u32 s20, 4\ns_cbranch_scc1 {L}_attn")
    if fprio is not None:
        a(f"s_setprio {fprio}")
    ffn_role(a, L, sf, off, timing)
    a(f"s_branch {L}_fin\n{L}_attn:")
    if "attn" in off:
        for i in range(9):
            a("s_barrier")
    else:
        attn.attn_role(a, L, R, False, prio=prio, sf=sf, stamps=timing)
    a(f"{L}_fin:")
    if timing:
        attn.timing_store(a, "s60", "s20")
    a(f"{L}_end:\ns_endpgm")
    return kernel_head(L) + a.text() + kernel_desc(L, 160)
```

```python
from asmlib import *
from layout import *
from attn import r, fbits

WO_IMG = 576 * 128
K3_LDS = WO_IMG + 3 * 4096
NPART = 4
OFB = 112
ACC = (16, 32)
PB = 48


def k3_kernel(L="k3_kernel", timing=False, sf="", rowmap="lin"):
    a = Asm()
    if timing:
        a("s_memtime s[60:61]")
    a(f"""s_and_b32 s16, s2, 7
    s_lshr_b32 s17, s2, 3
    s_mul_i32 s18, s16, 63
    s_add_u32 s18, s18, 1
    s_lshr_b32 s18, s18, 1
    s_add_u32 s19, s16, 1
    s_mul_i32 s19, s19, 63
    s_add_u32 s19, s19, 1
    s_lshr_b32 s19, s19, 1
    s_add_u32 s18, s18, s17
    s_cmp_ge_u32 s2, 256
    s_cbranch_scc1 {L}_end
    s_cmp_ge_u32 s18, s19
    s_cbranch_scc1 {L}_end""")
    a(f"""s_load_dwordx2 s[4:5], s[0:1], {KA_X}
    s_load_dwordx2 s[6:7], s[0:1], {KA_WS}
    s_load_dwordx2 s[36:37], s[0:1], {KA_WO}
    s_load_dwordx2 s[38:39], s[0:1], {KA_OUT}
    s_mul_i32 s21, s18, 7282
    s_lshr_b32 s21, s21, 16
    s_mul_i32 s22, s21, 9
    s_sub_u32 s22, s18, s22
    v_lshrrev_b32 v1, 6, v0
    v_and_b32 v0, 63, v0
    s_mul_i32 s23, s21, 3
    s_lshl_b32 s24, s21, 1
    s_add_u32 s24, s24, 8
    s_cmp_lt_u32 s21, 8
    s_cselect_b32 s23, s23, s24
    s_cselect_b32 s25, 3, 2
    v_readfirstlane_b32 s20, v1
    s_waitcnt lgkmcnt(0)""")
    a.srd(8, 4, S * D * 2)
    a.srd(12, 6, OF_BYTES, WS_OF)
    a.srd(40, 6, NPART * 64 * 18 * 2048, WS_PART)
    a.srd(44, 36, D * D * 2)
    a.srd(48, 38, S * D * 2)
    a("s_add_u32 s26, s23, s20")
    a(f"""v_lshrrev_b32 v2, 3, v0
    s_movk_i32 s27, 1152
    v_mul_lo_u32 v3, v2, s27
    v_bfe_u32 v4, v0, 4, 1
    v_bfe_u32 v5, v0, 2, 1
    v_xor_b32 v4, v4, v5
    v_lshlrev_b32 v4, 6, v4
    v_and_b32 v5, 3, v0
    v_lshlrev_b32 v5, 4, v5
    v_add3_u32 v3, v3, v4, v5
    s_lshl_b32 s28, s22, 7
    s_mul_i32 s29, s20, {24 * 8 * 1152}
    s_add_u32 s28, s28, s29
    s_mul_i32 s30, s20, {24 * 1024}
    v_lshlrev_b32 v1, 4, v0""")
    a(f"s_cmp_ge_u32 s20, s25\ns_cbranch_scc1 {L}_dma_only")
    a(f"""v_lshrrev_b32 v6, 1, v2
    v_and_b32 v7, 7, v0
    s_lshl_b32 s31, s20, 12
    s_add_u32 s31, s31, {WO_IMG}
    s_mul_i32 s32, s26, {32 * 1152}
    s_lshl_b32 s33, s22, 7
    s_add_u32 s32, s32, s33""")
    for q in range(4):
        a(f"""v_add_u32 v8, {4 * q}, v6
        v_and_b32 v8, 7, v8
        v_xor_b32 v8, v8, v7
        v_lshlrev_b32 v8, 4, v8
        v_mad_u32_u24 v8, v2, s27, v8
        s_add_u32 m0, s31, {q * 1024}
        s_add_u32 s29, s32, {q * 8 * 1152}
        buffer_load_dwordx4 v8, s[8:11], s29 offen lds""")
    a(f"s_mul_i32 s33, s26, {36 * 1024}")
    for k in range(36):
        a(f"s_add_u32 s29, s33, {k * 1024}")
        a(f"buffer_load_dwordx4 {r(OFB + 4 * k)}, v1, s[12:15], s29 offen")
    a(f"""s_mul_i32 s33, s26, {18 * 2048}
    s_lshl_b32 s34, s22, 12
    s_add_u32 s33, s33, s34""")
    for t in range(NPART):
        for T in range(2):
            for f in range(2):
                reg = PB + 16 * t + 8 * T + 4 * f
                a(f"s_add_u32 s29, s33, {t * 64 * 18 * 2048 + T * 2048 + f * 1024}")
                a(f"buffer_load_dwordx4 {r(reg)}, v1, s[40:43], s29 offen")
    a(f"{L}_dma_only:")
    for q in range(24):
        a(f"s_add_u32 m0, s30, {q * 1024}\ns_add_u32 s29, s28, {q * 8 * 1152}")
        a("buffer_load_dwordx4 v3, s[44:47], s29 offen lds")
    a(f"s_cmp_ge_u32 s20, s25\ns_cbranch_scc1 {L}_idle")
    a(f"""v_and_b32 v2, 15, v0
    v_lshrrev_b32 v3, 2, v2
    v_and_b32 v4, 3, v2
    v_lshlrev_b32 v4, 3, v4
    v_bfe_u32 v5, v0, 4, 1
    v_lshlrev_b32 v5, 5, v5
    v_add_u32 v4, v4, v5
    v_lshrrev_b32 v5, 5, v0
    v_lshrrev_b32 v6, 1, v3
    v_lshlrev_b32 v7, 6, v6
    v_lshlrev_b32 v8, 2, v5
    v_add_u32 v9, v8, v3
    v_lshlrev_b32 v9, 7, v9
    v_add3_u32 v10, v9, v4, v7
    v_xor_b32 v7, 64, v7
    v_add3_u32 v11, v9, v4, v7
    v_xor_b32 v7, 64, v7
    v_add_u32 v9, v8, v6
    v_mul_u32_u24 v9, 18, v9
    v_and_b32 v3, 1, v3
    v_add3_u32 v9, v9, v3, 16
    v_lshlrev_b32 v9, 7, v9
    v_add3_u32 v12, v9, v4, v7
    v_xor_b32 v7, 64, v7
    v_add3_u32 v13, v9, v4, v7
    v_add_u32 v14, {16 * 2304}, v10
    v_add_u32 v15, {16 * 2304}, v11""")
    a("""v_and_b32 v2, 31, v0
    v_lshrrev_b32 v3, 5, v0
    v_lshlrev_b32 v3, 2, v3
    v_sub_u32 v2, v2, v3
    v_mov_b32 v4, 0x3f80
    v_mov_b32 v5, 0x3f800000""")
    for f in range(2):
        for d in range(4):
            i0 = 2 * d
            n0 = 16 * f + (i0 & 3) + 8 * (i0 >> 2)
            a(f"""v_cmp_eq_u32 vcc, {n0}, v2
            v_cmp_eq_u32 s[52:53], {n0 + 1}, v2
            s_nop 0
            v_cndmask_b32 v6, 0, v4, vcc
            v_cndmask_b32 v7, 0, v5, s[52:53]
            v_or_b32 v6, v6, v7
            v_accvgpr_write_b32 a{4 * f + d}, v6""")
    a(f"""v_and_b32 v2, 31, v0
    v_lshrrev_b32 v3, 1, v2
    v_and_b32 v3, 7, v3
    v_lshlrev_b32 v2, 7, v2
    v_lshrrev_b32 v4, 5, v0
    v_lshlrev_b32 v4, 3, v4
    v_add3_u32 v2, v2, v4, s31""")
    a("s_waitcnt vmcnt(0)\ns_barrier")
    first = [True, True]

    def mm(T, A, B):
        c = "0" if first[T] else r(ACC[T], 16)
        first[T] = False
        a(f"v_mfma_f32_32x32x16_bf16 {r(ACC[T], 16)}, {A}, {B}, {c}")
    for T in range(2):
        for f in range(2):
            for piece in range(2):
                c = 4 * T + 2 * f + piece
                a(f"v_xor_b32 v5, {c}, v3\nv_lshlrev_b32 v5, 4, v5\nv_add_u32 v5, v5, v2")
                a(f"ds_read_b64 v[{6 + 2 * piece}:{7 + 2 * piece}], v5")
            a("s_waitcnt lgkmcnt(0)")
            mm(T, f"a[{4 * f}:{4 * f + 3}]", "v[6:9]")
    for t in range(NPART):
        for T in range(2):
            for f in range(2):
                mm(T, f"a[{4 * f}:{4 * f + 3}]", r(PB + 16 * t + 8 * T + 4 * f))
    RING = [48 + 4 * i for i in range(8)]
    units = [(j, T) for j in range(36) for T in range(2)]

    def wread(g):
        j, T = units[g]
        buf = RING[g % 8]
        if j < 32:
            sw = T ^ (j & 1)
            reg = (10 + sw) if j < 16 else (14 + sw)
            off = (j % 16) * 2304
            second = 1024
        else:
            reg = 12 + T
            off = (j - 32) * 18432
            second = 4608
        a(f"ds_read_b64_tr_b16 v[{buf}:{buf + 1}], v{reg} offset:{off}")
        a(f"ds_read_b64_tr_b16 v[{buf + 2}:{buf + 3}], v{reg} offset:{off + second}")
    a("s_nop 7")
    for g in range(4):
        wread(g)
    for g, (j, T) in enumerate(units):
        left = min(3, len(units) - 1 - g)
        a(f"s_waitcnt lgkmcnt({2 * left})")
        mm(T, r(RING[g % 8]), r(OFB + 4 * j))
        if g + 4 < len(units):
            wread(g + 4)
    a("s_nop 7\ns_nop 7")
    a(f"""v_and_b32 v2, 31, v0
    v_lshrrev_b32 v3, 1, v2
    v_and_b32 v3, 7, v3
    v_lshlrev_b32 v2, 7, v2
    v_lshrrev_b32 v4, 5, v0
    v_lshlrev_b32 v4, 3, v4
    v_add3_u32 v2, v2, v4, s31""")
    for T in range(2):
        A = ACC[T]
        for g in range(4):
            a(f"v_cvt_pk_bf16_f32 v{A + 2 * g}, v{A + 4 * g}, v{A + 4 * g + 1}")
            a(f"v_cvt_pk_bf16_f32 v{A + 2 * g + 1}, v{A + 4 * g + 2}, v{A + 4 * g + 3}")
        for g in range(4):
            c = 4 * T + g
            a(f"v_xor_b32 v5, {c}, v3\nv_lshlrev_b32 v5, 4, v5\nv_add_u32 v5, v5, v2")
            a(f"ds_write_b64 v5, v[{A + 2 * g}:{A + 2 * g + 1}]")
    a(f"""v_lshrrev_b32 v2, 3, v0
    v_lshrrev_b32 v6, 1, v2
    v_and_b32 v7, 7, v0
    v_add_u32 v9, s31, v1
    s_waitcnt lgkmcnt(0)""")
    for q in range(4):
        a(f"ds_read_b128 {r(48 + 4 * q)}, v9 offset:{q * 1024}")
    for q in range(4):
        a(f"""v_add_u32 v8, {4 * q}, v6
        v_and_b32 v8, 7, v8
        v_xor_b32 v8, v8, v7
        v_lshlrev_b32 v8, 4, v8
        v_mad_u32_u24 v8, v2, s27, v8
        s_add_u32 s29, s32, {q * 8 * 1152}
        s_waitcnt lgkmcnt({3 - q})
        buffer_store_dwordx4 {r(48 + 4 * q)}, v8, s[48:51], s29 offen{sf}""")
    a(f"s_waitcnt vmcnt(0)\ns_branch {L}_fin\n{L}_idle:\ns_waitcnt vmcnt(0)\ns_barrier\n{L}_fin:")
    if timing:
        a(f"""s_memtime s[62:63]
        s_load_dwordx2 s[64:65], s[0:1], {KA_DBG}
        s_waitcnt lgkmcnt(0)
        s_sub_u32 s62, s62, s60
        s_lshl_b32 s66, s2, 2
        s_add_u32 s66, s66, s20
        s_lshl_b32 s66, s66, 2
        v_mov_b32 v20, s66
        v_mov_b32 v21, s62
        global_store_dword v20, v21, s[64:65]
        s_waitcnt vmcnt(0)""")
    a(f"{L}_end:\ns_endpgm")
    desc = kernel_desc(L, 264, accum=256)
    return kernel_head(L) + a.text() + desc
```

```python
S, D, H, DH, F = 2048, 576, 32, 18, 4608

WS_QF1 = 0
QF1_BYTES = H * 64 * 1024
WS_QF2 = WS_QF1 + QF1_BYTES
QF2_BYTES = H * 2048 * 4
WS_KV = WS_QF2 + QF2_BYTES
KV_CHUNK = 20480
KV_KF2 = 8192
KV_VT = 9216
VT_TILE = 1280
KV_HEAD = 8 * KV_CHUNK
KV_BYTES = H * KV_HEAD
WS_OF = WS_KV + KV_BYTES
OFR_OFF = 64 * 32 * 1024
OF_BYTES = OFR_OFF + 64 * 32 * 128
WS_HF = WS_OF + OF_BYTES
HF_BYTES = 64 * 288 * 1024
WS_PART = WS_HF + HF_BYTES
WS_PARTX = WS_PART + 4 * 64 * 18 * 2048
WS_CNT = WS_PARTX + 4 * 64 * 2 * 2048
CNT_LINES = 128
WS_END = WS_CNT + CNT_LINES * 128
assert WS_END < (256 << 20)

QSCALE = DH ** -0.5 * 1.4426950408889634
M_BIAS = 95.0
```

```python
NAME = "parallel_sum__softmax_full_mha__dense_activation_relu__prompt"

KA_X, KA_WQKV, KA_WO, KA_BX, KA_W1, KA_W2, KA_OUT, KA_DBG, KA_WS = 0, 8, 16, 24, 32, 40, 48, 56, 64

LAYOUT_COMMENT = """; Kernarg layout for this problem (72 bytes, ptrs only, base s[0:1]):
"""


class Asm:
    def __init__(self):
        self.lines = []

    def __call__(self, s=""):
        for ln in s.split("\n"):
            ln = ln.strip()
            if ln:
                self.lines.append(("" if ln.endswith(":") else "    ") + ln)
        return self

    def text(self):
        return "\n".join(self.lines) + "\n"

    def srd(self, dst, ptr, nbytes, offset=0):
        if offset:
            self(f"s_add_u32 s{dst}, s{ptr}, {offset}")
            self(f"s_addc_u32 s{dst + 1}, s{ptr + 1}, 0")
            self(f"s_and_b32 s{dst + 1}, s{dst + 1}, 0xffff")
        else:
            self(f"s_mov_b32 s{dst}, s{ptr}")
            self(f"s_and_b32 s{dst + 1}, s{ptr + 1}, 0xffff")
        self(f"s_mov_b32 s{dst + 2}, {nbytes}")
        self(f"s_mov_b32 s{dst + 3}, 0x20000")


def kernel_head(label):
    return f".globl {label}\n.p2align 8\n.type {label},@function\n{label}:\n"


def kernel_desc(label, vgpr, sgpr=96, accum=None, wg_y=False):
    accum = accum if accum is not None else min(256, (vgpr + 3) // 4 * 4)
    y = "  .amdhsa_system_sgpr_workgroup_id_y 1\n" if wg_y else ""
    return f""".section .rodata,"a"
.p2align 6
.amdhsa_kernel {label}
  .amdhsa_next_free_vgpr {vgpr}
  .amdhsa_next_free_sgpr {sgpr}
  .amdhsa_accum_offset {accum}
  .amdhsa_group_segment_fixed_size 0
  .amdhsa_kernarg_size 72
  .amdhsa_user_sgpr_count 2
  .amdhsa_user_sgpr_kernarg_segment_ptr 1
  .amdhsa_system_sgpr_workgroup_id_x 1
{y}.end_amdhsa_kernel
.text
"""


def file_head(launches):
    s = LAYOUT_COMMENT
    for (label, g, b, lds) in launches:
        s += f"; @launch kernel={label} grid=({g[0]},{g[1]},{g[2]}) block=({b[0]},{b[1]},{b[2]}) lds={lds}\n"
    s += '.amdgcn_target "amdgcn-amd-amdhsa--gfx950"\n.text\n'
    return s


def rt_stamp_begin(a):
    a("s_memrealtime s[80:81]\ns_memtime s[82:83]")


def rt_stamp_end(a, kidx, L):
    a(f"""s_memrealtime s[84:85]
    s_memtime s[86:87]
    s_load_dwordx2 s[88:89], s[0:1], {KA_DBG}
    s_waitcnt lgkmcnt(0)
    s_sub_u32 s86, s86, s82
    s_lshl_b32 s90, s2, 4
    s_add_u32 s90, s90, {600000 + kidx * 4096}
    v_mov_b32 v2, s90
    v_mov_b32 v4, s80
    v_mov_b32 v5, s84
    v_mov_b32 v6, s86
    v_mov_b32 v7, s81
    global_store_dwordx4 v2, v[4:7], s[88:89]
    s_waitcnt vmcnt(0)""")
```

```python
import struct
from asmlib import *
from layout import *


def fbits(x):
    return hex(struct.unpack("<I", struct.pack("<f", x))[0])


QA1, QA2, QB1, QB2 = 8, 12, 16, 20
KF1 = (24, 32)
KF2 = (28, 36)
VF = ((40, 44), (48, 52))
PA, PB = 56, 64
SA, SB = 72, 88
OA, OB = 104, 120
T0 = 136
V_DMA, V_K1, V_K2, V_V = 1, 2, 3, 4
NVGPR = 144


def r(base, n=4):
    return f"v[{base}:{base + n - 1}]"


def mf(d, a, b, c):
    cs = "0" if c is None else r(c, 16)
    return f"v_mfma_f32_32x32x16_bf16 {r(d, 16)}, {r(a)}, {r(b)}, {cs}"


PATTERN = "E"


def phase(a, Sx, Px, Sprev, Pprev, pv, sm, extra):
    e = lambda i: f"v_exp_f32 v{Sx + i}, v{Sx + i}"
    c = lambda i: f"v_cvt_pk_bf16_f32 v{Px + i}, v{Sx + 2 * i}, v{Sx + 2 * i + 1}"
    cp = f"v_cvt_pk_bf16_f32 v{Pprev + 7}, v{Sprev + 14}, v{Sprev + 15}"
    x0, x1 = extra.get(0, []), extra.get(1, [])
    if PATTERN == "A":
        seq = ([pv[0]] + x0 + [cp, e(0), e(1), e(2), c(0), e(3), sm[0]] + x1 + [e(4), c(1), e(5), e(6), c(2), e(7), sm[1],
               e(8), c(3), e(9), e(10), c(4), e(11), pv[1], e(12), c(5), e(13), e(14), c(6), e(15)])
    elif PATTERN == "B":
        seq = ([pv[0]] + (x0 or ["s_nop 0"]) + [cp, e(0), e(1), pv[1]] + x1 + [e(2), e(3), c(0), e(4), c(1), e(5), e(6), c(2), e(7),
               sm[0], e(8), e(9), e(10), sm[1], c(3), e(11), c(4), e(12), e(13), c(5), e(14), e(15), c(6)])
    elif PATTERN == "E":
        seq = ([pv[0]] + (x0 or ["s_nop 0"]) + [cp, e(0), e(1), pv[1]] + x1 + [e(2), e(3), c(0), e(4), c(1), e(5), sm[0],
               e(6), c(2), e(7), e(8), c(3), e(9), e(10), sm[1], c(4), e(11), e(12), c(5), e(13), e(14), c(6), e(15)])
    last = max(i for i, x in enumerate(seq) if x == sm[1])
    assert (len(seq) - 1 - last) + 4 >= 12, (PATTERN, len(seq) - 1 - last)
    for ins in seq:
        a(ins)


def head_and_block(a, wgid):
    a(f"""s_and_b32 s16, {wgid}, 7
    s_lshr_b32 s17, {wgid}, 3
    s_lshl_b32 s16, s16, 2
    s_and_b32 s18, s17, 3
    s_add_u32 s16, s16, s18
    s_lshr_b32 s17, s17, 2""")


def kv_dma(a, src, slot, srd="s[8:11]", voff=V_DMA, tmp="s29"):
    for i in range(5):
        a(f"s_add_u32 m0, {slot}, {i * 1024}")
        a(f"s_add_u32 {tmp}, {src}, {i * 1024}")
        a(f"buffer_load_dwordx4 v{voff}, {srd}, {tmp} offen lds")


def attn_role(a, L, R, own_dma, lds_base=0, prio=None, sf="", stamps=False):
    a(f"""v_lshlrev_b32 v{V_DMA}, 4, v0
    s_lshl_b32 s18, s17, 3
    s_lshl_b32 s19, s20, 1
    s_add_u32 s18, s18, s19""")
    if own_dma:
        a.srd(8, 6, KV_BYTES, WS_KV)
    a.srd(12, 6, QF1_BYTES + QF2_BYTES, WS_QF1)
    a.srd(32, 6, OF_BYTES, WS_OF)
    a(f"""s_lshl_b32 s21, s16, 16
    s_lshl_b32 s22, s18, 10
    s_add_u32 s21, s21, s22
    buffer_load_dwordx4 {r(QA1)}, v{V_DMA}, s[12:15], s21 offen
    buffer_load_dwordx4 {r(QB1)}, v{V_DMA}, s[12:15], s21 offen offset:1024
    v_and_b32 v5, 31, v0
    v_lshlrev_b32 v{V_K2}, 2, v5
    s_lshl_b32 s21, s16, 13
    s_lshl_b32 s22, s18, 7
    s_add_u32 s21, s21, s22
    s_add_u32 s21, s21, {QF1_BYTES}""")
    for x in (QA2, QB2):
        for i in range(4):
            a(f"v_mov_b32 v{x + i}, 0")
    a(f"""s_mov_b32 exec_hi, 0
    buffer_load_dword v{QA2}, v{V_K2}, s[12:15], s21 offen
    buffer_load_dword v{QB2}, v{V_K2}, s[12:15], s21 offen offset:128
    s_mov_b32 exec_hi, -1""")
    if own_dma:
        a(f"""s_mul_i32 s22, s16, {KV_HEAD}
        s_mul_i32 s23, s20, {5 * 1024}
        s_add_u32 s22, s22, s23
        s_add_u32 s23, s23, {lds_base}""")
        kv_dma(a, "s22", "s23")
        a(f"s_add_u32 s22, s22, {KV_CHUNK}\ns_add_u32 s28, s23, {KV_CHUNK}")
        kv_dma(a, "s22", "s28")
        a(f"s_add_u32 s22, s22, {KV_CHUNK}")
    a(f"""v_add_u32 v{V_K1}, {lds_base}, v{V_DMA}
    v_add_u32 v{V_K2}, {lds_base + KV_KF2}, v{V_K2}
    v_lshrrev_b32 v6, 5, v0
    v_mul_u32_u24 v6, 320, v6
    v_subrev_u32 v7, 20, v5
    v_cmp_gt_u32 vcc, 20, v5
    s_nop 1
    v_cndmask_b32 v7, v7, v5, vcc
    v_lshlrev_b32 v7, 4, v7
    v_add_u32 v{V_V}, v6, v7
    v_add_u32 v{V_V}, {lds_base + KV_VT}, v{V_V}""")
    for b in (0, 1):
        a(f"v_mov_b32 v{KF2[b] + 1}, 0x3f80\nv_mov_b32 v{KF2[b] + 2}, 0\nv_mov_b32 v{KF2[b] + 3}, 0")
    for b in (0, 1):
        for f in (0, 1):
            for i in range(4):
                a(f"v_mov_b32 v{VF[b][f] + i}, 0")
    for i in range(8):
        a(f"v_mov_b32 v{PB + i}, 0")
    for i in range(16):
        a(f"v_mov_b32 v{OA + i}, 0\nv_mov_b32 v{OB + i}, 0")
    if stamps:
        a("v_mov_b32 v140, 0\ns_mov_b32 s50, 0")
    a(f"s_waitcnt vmcnt({5 if own_dma else 0})")
    if stamps:
        a("s_memtime s[52:53]\ns_waitcnt lgkmcnt(0)\ns_sub_u32 s52, s52, s60\nv_writelane_b32 v140, s52, 32")
    a("s_barrier")
    if stamps:
        a("s_memtime s[52:53]\ns_waitcnt lgkmcnt(0)\ns_sub_u32 s52, s52, s60\nv_writelane_b32 v140, s52, 33")
    a(f"ds_read_b128 {r(KF1[0])}, v{V_K1}\nds_read_b32 v{KF2[0]}, v{V_K2}\ns_waitcnt lgkmcnt(0)")
    a(mf(SA, KF1[0], QA1, None))
    a(mf(SB, KF1[0], QB1, None))
    a(mf(SA, KF2[0], QA2, SA))
    a(mf(SB, KF2[0], QB2, SB))
    a("s_nop 7\ns_nop 7")
    for (Sx, Q2, t) in ((SA, QA2, T0), (SB, QB2, T0 + 2)):
        a(f"v_max3_f32 v{t}, v{Sx}, v{Sx + 1}, v{Sx + 2}")
        for i in range(3, 15, 2):
            a(f"v_max3_f32 v{t}, v{t}, v{Sx + i}, v{Sx + i + 1}")
        a(f"v_max_f32 v{t}, v{t}, v{Sx + 15}")
        a(f"v_mov_b32 v{t + 1}, v{t}\ns_nop 1\nv_permlane32_swap_b32 v{t}, v{t + 1}\ns_nop 1")
        a(f"v_max_f32 v{t}, v{t}, v{t + 1}")
        a(f"v_add_f32 v{t}, {fbits(M_BIAS)}, v{t}")
        a(f"s_mov_b32 exec_hi, 0\nv_cvt_pk_bf16_f32 v{Q2 + 1}, -v{t}, 0\ns_mov_b32 exec_hi, -1")
    a("s_nop 1")
    a(mf(SA, KF1[0], QA1, None))
    a(mf(SA, KF2[0], QA2, SA))
    a("s_mov_b32 s30, 0\ns_mov_b32 s27, 0")
    if prio is not None:
        a(f"s_setprio {prio}")
    a("s_nop 7\ns_nop 3")
    a(f".p2align 6\n{L}_loop:")
    for i in range(8):
        kb, nb = i % 2, (i + 1) % 2
        if i == 7:
            if stamps:
                a("s_memtime s[52:53]\ns_waitcnt lgkmcnt(0)\ns_sub_u32 s52, s52, s60\ns_mov_b32 m0, s50\ns_nop 0\nv_writelane_b32 v140, s52, m0")
            a("s_waitcnt vmcnt(0)\ns_barrier" if own_dma else "s_barrier")
            if stamps:
                a("s_memtime s[52:53]\ns_waitcnt lgkmcnt(0)\ns_sub_u32 s52, s52, s60\ns_add_u32 m0, s50, 16\ns_nop 0\nv_writelane_b32 v140, s52, m0\ns_add_u32 s50, s50, 1")
            a(f"s_add_u32 s26, s27, {KV_CHUNK}\ns_cmp_eq_u32 s26, {R * KV_CHUNK}\ns_cselect_b32 s26, 0, s26")
            if own_dma:
                a(f"s_cmp_ge_u32 s30, 6\ns_cbranch_scc1 {L}_nodma")
                a(f"s_add_u32 s25, s26, {KV_CHUNK}\ns_cmp_eq_u32 s25, {R * KV_CHUNK}\ns_cselect_b32 s25, 0, s25\ns_add_u32 s25, s25, s23")
                kv_dma(a, "s22", "s25")
                a(f"s_add_u32 s22, s22, {KV_CHUNK}\n{L}_nodma:")
            a(f"s_sub_u32 s25, s26, s27\nv_add_u32 v{V_K1}, s25, v{V_K1}\nv_add_u32 v{V_K2}, s25, v{V_K2}")
        ki = (i + 1) % 8
        loads = {0: [f"ds_read_b128 {r(KF1[nb])}, v{V_K1} offset:{ki * 1024}",
                     f"ds_read_b32 v{KF2[nb]}, v{V_K2} offset:{ki * 128}"],
                 1: [f"ds_read_b128 {r(VF[kb][0])}, v{V_V} offset:{i * VT_TILE}",
                     f"ds_read_b128 {r(VF[kb][1])}, v{V_V} offset:{i * VT_TILE + 640}"]}
        phase(a, SA, PA, SB, PB, [mf(OB, VF[nb][0], PB, OB), mf(OB, VF[nb][1], PB + 4, OB)],
              [mf(SB, KF1[kb], QB1, None), mf(SB, KF2[kb], QB2, SB)], loads)
        if i == 7:
            a(f"v_add_u32 v{V_V}, s25, v{V_V}\ns_mov_b32 s27, s26")
        a("s_waitcnt lgkmcnt(0)")
        phase(a, SB, PB, SA, PA, [mf(OA, VF[kb][0], PA, OA), mf(OA, VF[kb][1], PA + 4, OA)],
              [mf(SA, KF1[nb], QA1, None), mf(SA, KF2[nb], QA2, SA)], {})
    a(f"s_add_u32 s30, s30, 1\ns_cmp_lt_u32 s30, 8\ns_cbranch_scc1 {L}_loop")
    a(f"s_nop 0\nv_cvt_pk_bf16_f32 v{PB + 7}, v{SB + 14}, v{SB + 15}\ns_nop 1")
    a(mf(OB, VF[1][0], PB, OB))
    a(mf(OB, VF[1][1], PB + 4, OB))
    a("s_nop 7\ns_nop 7")
    a(f"""s_mul_i32 s21, s18, {36 * 1024}
    s_lshl_b32 s19, s16, 10
    s_add_u32 s19, s19, s21
    s_lshr_b32 s24, s16, 3
    s_add_u32 s24, s24, 32
    s_lshl_b32 s24, s24, 10
    s_add_u32 s21, s21, s24
    s_and_b32 s24, s16, 4
    s_lshl_b32 s24, s24, 7
    s_add_u32 s21, s21, s24
    s_and_b32 s24, s16, 3
    s_lshl_b32 s24, s24, 2
    s_add_u32 s21, s21, s24""")
    for n, O in enumerate((OA, OB)):
        t = T0
        a(f"v_mov_b32 v{t}, v{O + 10}\nv_mov_b32 v{t + 1}, v{O + 10}\ns_nop 1\nv_permlane32_swap_b32 v{t}, v{t + 1}\ns_nop 1")
        a(f"v_rcp_f32 v{t}, v{t}\ns_nop 0")
        for i in range(10):
            a(f"v_mul_f32 v{O + i}, v{O + i}, v{t}")
        for i in range(5):
            a(f"v_cvt_pk_bf16_f32 v{O + i}, v{O + 2 * i}, v{O + 2 * i + 1}")
        a(f"buffer_store_dwordx4 {r(O)}, v{V_DMA}, s[32:35], s19 offen{sf}")
        a(f"s_mov_b32 exec_hi, 0\nbuffer_store_dword v{O + 4}, v{V_DMA}, s[32:35], s21 offen{sf}\ns_mov_b32 exec_hi, -1")
        if n == 0:
            a(f"s_add_u32 s19, s19, {36 * 1024}\ns_add_u32 s21, s21, {36 * 1024}")
    if stamps:
        a(f"""s_load_dwordx2 s[54:55], s[0:1], {KA_DBG}
        s_lshl_b32 s56, s2, 3
        s_add_u32 s56, s56, s20
        s_lshl_b32 s56, s56, 8
        s_add_u32 s56, s56, 8192
        v_lshlrev_b32 v141, 2, v0
        v_add_u32 v141, s56, v141
        s_waitcnt lgkmcnt(0)
        global_store_dword v141, v140, s[54:55]""")
    a("s_waitcnt vmcnt(0)")


def timing_store(a, start, wave):
    a(f"""s_memtime s[42:43]
    s_load_dwordx2 s[44:45], s[0:1], {KA_DBG}
    s_waitcnt lgkmcnt(0)
    s_sub_u32 s42, s42, {start}
    s_lshl_b32 s46, s2, 3
    s_add_u32 s46, s46, {wave}
    s_lshl_b32 s46, s46, 2
    v_mov_b32 v5, s46
    v_mov_b32 v6, s42
    global_store_dword v5, v6, s[44:45]
    s_waitcnt vmcnt(0)""")


def attn_kernel(L="attn_kernel", R=3, timing=False):
    a = Asm()
    if timing:
        a("s_memtime s[40:41]")
    a(f"""s_cmp_ge_u32 s2, 256
    s_cbranch_scc1 {L}_end
    s_load_dwordx2 s[6:7], s[0:1], {KA_WS}
    v_lshrrev_b32 v5, 6, v0
    v_and_b32 v0, 63, v0""")
    head_and_block(a, "s2")
    a("v_readfirstlane_b32 s20, v5\ns_waitcnt lgkmcnt(0)")
    attn_role(a, L, R, True)
    if timing:
        timing_store(a, "s40", "s20")
    a(f"{L}_end:\ns_endpgm")
    return kernel_head(L) + a.text() + kernel_desc(L, NVGPR)
```

```python
import struct
from asmlib import *
from layout import *


def fbits(x):
    return hex(struct.unpack("<I", struct.pack("<f", x))[0])


NS = 13
SLOT = 36864
NSLOT = 4
XB = 112
ACC = (16, 32, 48, 64, 80)
WF = (96, 100, 104, 108)
V_L16, V_VT, V_V3, V_QK, V_SC, V_CONST = 1, 2, 3, 4, 5, 6
V_AQ, V_AX, V_AV = 7, 8, 9
V_AS, V_AD0, V_AD1 = 10, 11, 12
V_T0 = 13


def r(base, n=4):
    return f"v[{base}:{base + n - 1}]"


def slot_kind(j):
    if j < 4:
        return ("q", j)
    if j == 4:
        return ("s", 0)
    return ("d", (j - 5) // 2, (j - 5) % 2)


def loader(a, L, timing=False, pf="", rot=True):
    a("s_sub_u32 s28, s26, 4\nv_mov_b32 v20, 0")
    if timing:
        a("s_memtime s[68:69]\ns_waitcnt lgkmcnt(0)\ns_sub_u32 s72, s68, s60\nv_writelane_b32 v20, s72, 38")
    a(f"""s_lshl_b32 s29, s24, 2
    s_add_u32 s29, s29, s28
    s_mul_i32 s29, s29, {32 * 1152}
    s_mul_i32 s41, s28, {SLOT}
    s_movk_i32 s30, 29128
    s_movk_i32 s31, 1152""")
    if rot:
        a("s_mul_i32 s33, s25, 9\ns_lshr_b32 s33, s33, 2")
    else:
        a("s_mov_b32 s33, 0")
    for q in range(36):
        a(f"""s_lshl_b32 s34, s33, 6
        v_add_u32 v2, s34, v0
        v_mul_u32_u24 v3, s30, v2
        v_lshrrev_b32 v3, 21, v3
        v_mul_u32_u24 v4, 72, v3
        v_sub_u32 v4, v2, v4
        v_lshrrev_b32 v5, 1, v3
        v_xor_b32 v5, v5, v4
        v_and_b32 v5, 7, v5
        v_and_b32 v4, 0x78, v4
        v_or_b32 v4, v4, v5
        v_lshlrev_b32 v4, 4, v4
        v_mad_u32_u24 v4, v3, s31, v4
        s_lshl_b32 s34, s33, 10
        s_add_u32 m0, s41, s34
        s_add_u32 s33, s33, 1
        buffer_load_dwordx4 v4, s[8:11], s29 offen lds
        s_cmp_eq_u32 s33, 36
        s_cselect_b32 s33, 0, s33""")
    a(f"""v_lshrrev_b32 v2, 4, v0
    s_movk_i32 s30, 3456
    v_mul_lo_u32 v2, v2, s30
    v_and_b32 v3, 15, v0
    v_lshrrev_b32 v4, 4, v0
    v_lshlrev_b32 v4, 2, v4
    v_xor_b32 v3, v3, v4
    v_cmp_lt_u32 vcc, 4, v3
    v_mov_b32 v5, {1152 - 80}
    v_lshlrev_b32 v6, 4, v3
    v_cndmask_b32 v5, 0, v5, vcc
    v_cmp_lt_u32 vcc, 9, v3
    v_mov_b32 v7, {1152 - 80}
    v_add_u32 v6, v6, v5
    v_cndmask_b32 v7, 0, v7, vcc
    v_add_u32 v6, v6, v7
    v_cmp_eq_u32 vcc, 15, v3
    v_mov_b32 v7, 0
    s_nop 0
    v_cndmask_b32 v6, v6, v7, vcc
    v_add_u32 v6, v6, v2""")
    a(f"""s_movk_i32 s31, 9216
    v_lshrrev_b32 v2, 2, v0
    v_mul_lo_u32 v2, v2, s31
    v_and_b32 v3, 3, v0
    v_lshlrev_b32 v3, 4, v3
    v_add_u32 v7, v2, v3
    v_lshrrev_b32 v2, 3, v0
    v_mul_lo_u32 v8, v2, s31
    v_bfe_u32 v2, v0, 4, 1
    v_bfe_u32 v4, v0, 2, 1
    v_xor_b32 v2, v2, v4
    v_lshlrev_b32 v2, 6, v2
    v_add3_u32 v8, v8, v2, v3""")
    a(f"""s_mul_i32 s32, s28, {9 * 4 * 3456}
    s_mul_i32 s33, s25, 72
    s_add_u32 s32, s32, s33
    s_and_b32 s33, s25, 1
    s_mul_i32 s35, s25, 576
    s_mul_i32 s34, s28, {9 * 16 * 9216}
    s_add_u32 s34, s34, s35
    s_cmp_eq_u32 s33, 0
    s_cselect_b32 s36, 512, 0
    s_add_u32 s34, s34, s36
    s_mul_i32 s40, s28, {9 * 8 * 9216}
    s_add_u32 s40, s40, s35
    s_lshl_b32 s36, s33, 6
    s_add_u32 s40, s40, s36
    s_mul_i32 s41, s28, {9 * 1024}""")

    def issue(j):
        kind = slot_kind(j)
        base = (j % NSLOT) * SLOT
        for n in range(9):
            a(f"s_add_u32 m0, s41, {base + n * 1024}")
            if kind[0] == "q":
                a(f"s_add_u32 s29, s32, {(kind[1] * 144 + n * 4) * 3456}")
                a("buffer_load_dwordx4 v6, s[16:19], s29 offen lds")
            elif kind[0] == "s":
                a(f"s_add_u32 s29, s34, {n * 16 * 9216}")
                a("buffer_load_dwordx4 v7, s[20:23], s29 offen lds")
            else:
                a(f"s_add_u32 s29, s40, {(kind[2] * 288 + n * 8) * 9216 + kind[1] * 128}")
                a("buffer_load_dwordx4 v8, s[20:23], s29 offen lds")

    def stamp(lane):
        if timing:
            a(f"s_memtime s[68:69]\ns_waitcnt lgkmcnt(0)\ns_sub_u32 s72, s68, s60\nv_writelane_b32 v20, s72, {lane}")
    stamp(34)
    if timing:
        a("s_waitcnt vmcnt(27)")
        stamp(35)
        a("s_waitcnt vmcnt(18)")
        stamp(36)
        a("s_waitcnt vmcnt(9)")
        stamp(37)
    a("s_waitcnt vmcnt(0)")
    stamp(32)
    a("s_barrier")
    a("s_barrier")
    stamp(33)
    for j in range(2):
        issue(j)
    issued = 2
    for j in range(NS):
        a(f"s_waitcnt vmcnt({9 * (issued - 1 - j)})")
        stamp(16 + j)
        a("s_barrier")
        stamp(j)
        if j + 2 < NS:
            issue(j + 2)
            issued += 1
    if timing:
        a(f"""s_load_dwordx2 s[64:65], s[0:1], {KA_DBG}
        s_lshl_b32 s66, s2, 2
        s_add_u32 s66, s66, s28
        s_lshl_b32 s66, s66, 8
        s_add_u32 s66, s66, 4096
        v_lshlrev_b32 v21, 2, v0
        v_add_u32 v21, s66, v21
        s_waitcnt lgkmcnt(0)
        global_store_dword v21, v20, s[64:65]
        s_waitcnt vmcnt(0)""")
    a(f"s_branch {L}_end")


def pack(A, f):
    return [f"v_cvt_pk_bf16_f32 v{A + 4 * f + i}, v{A + 8 * f + 2 * i}, v{A + 8 * f + 2 * i + 1}" for i in range(4)]


def epi_ffn(A, soff, sf):
    it = []
    for f in range(2):
        it += pack(A, f)
        it += [f"v_pk_max_i16 v{A + 4 * f + i}, v{A + 4 * f + i}, 0" for i in range(4)]
        it.append(f"s_add_u32 s29, {soff}, {f * 1024}\nbuffer_store_dwordx4 {r(A + 4 * f)}, v{V_L16}, s[12:15], s29 offen{sf}")
    return it


def epi_qkv(sf):
    Q, K, V, X = ACC[0], ACC[1], ACC[2], ACC[3]
    it = [f"v_mul_f32 v{Q + i}, s47, v{Q + i}" for i in range(16)]
    it += [f"v_mul_f32 v{X + i}, v{V_SC}, v{X + i}" for i in range(16)]
    for f in range(2):
        it += pack(K, f)
        it.append(f"s_add_u32 s29, s46, {f * KV_HEAD}\nbuffer_store_dwordx4 {r(K + 4 * f)}, v{V_L16}, s[12:15], s29 offen{sf}")
    for f in range(2):
        it += pack(Q, f)
        it.append(f"s_add_u32 s29, s45, {f * 65536}\nbuffer_store_dwordx4 {r(Q + 4 * f)}, v{V_L16}, s[12:15], s29 offen{sf}")
    for f in range(2):
        it += pack(V, f)
        it.append(f"buffer_store_dwordx4 {r(V + 4 * f)}, v{V_VT}, s[12:15], s48 offen offset:{640 * f}{sf}")
    T, P = K + 8, Q + 8
    for b in range(2):
        it += [f"v_mov_b32_dpp v{T + i}, v{X + 8 * b + i} quad_perm:[1,0,3,2] row_mask:0xf bank_mask:0xf" for i in range(8)]
        it += [f"v_cvt_pk_bf16_f32 v{P + 4 * b + i}, v{X + 8 * b + 2 * i}, v{X + 8 * b + 2 * i + 1}" for i in range(4)]
        it += [f"v_cvt_pk_bf16_f32 v{X + 8 * b + i}, v{X + 8 * b + i}, v{T + i}" for i in range(8)]
        it += [f"v_cndmask_b32 v{P + 4 * b + i}, v{P + 4 * b + i}, v{V_CONST}, s[50:51]" for i in range(4)]
        it.append(f"s_mov_b64 exec, s[52:53]\nbuffer_store_dwordx4 {r(P + 4 * b)}, v{V_V3}, s[12:15], s48 offen offset:{640 * b}{sf}\ns_mov_b64 exec, -1")
        for g in (2 * b, 2 * b + 1):
            it.append(f"s_mov_b64 exec, s[54:55]\nbuffer_store_dwordx4 {r(X + 4 * g)}, v{V_QK}, s[12:15], 0 offen offset:{32 * g}{sf}\ns_mov_b64 exec, -1")
    return it


def prefetch(a, mode):
    if "w" in mode:
        a(f"""s_lshl_b32 s28, s2, 2
        s_and_b32 s29, s26, 3
        s_add_u32 s28, s28, s29
        v_lshlrev_b32 v16, 7, v0
        s_mul_i32 s30, s28, {41 * 128}
        s_mov_b32 exec_hi, 0x1ff
        buffer_load_dword v14, v16, s[20:23], s30 offen
        s_mul_i32 s30, s28, {16 * 128}
        s_mov_b32 exec_hi, 0
        s_mov_b32 exec_lo, 0xffff
        buffer_load_dword v14, v16, s[16:19], s30 offen
        s_mov_b64 exec, -1""")


def prefetch2_setup(a):
    a(f"""s_load_dwordx2 s[74:75], s[0:1], {KA_W2}
    s_load_dwordx2 s[76:77], s[0:1], {KA_WO}
    s_waitcnt lgkmcnt(0)""")
    a.srd(68, 74, F * D * 2)
    a.srd(76, 76, D * D * 2) if False else None
    a(f"""s_mov_b32 s72, s76
    s_and_b32 s73, s77, 0xffff
    s_mov_b32 s74, {D * D * 2}
    s_mov_b32 s75, 0x20000
    s_lshl_b32 s78, s2, 2
    s_and_b32 s79, s26, 3
    s_add_u32 s78, s78, s79
    s_mul_i32 s79, s78, {6 * 128}
    s_mul_i32 s78, s78, {41 * 128}""")


def prefetch2_issue():
    return ["v_lshlrev_b32 v15, 7, v0",
            "s_mov_b32 exec_hi, 0x1ff\nbuffer_load_dword v14, v15, s[68:71], s78 offen\ns_mov_b64 exec, -1",
            "s_mov_b32 exec_hi, 0\ns_mov_b32 exec_lo, 0x3f\nbuffer_load_dword v14, v15, s[72:75], s79 offen\ns_mov_b64 exec, -1"]


def consumer(a, L, sf, pf=""):
    prefetch(a, pf)
    if "2" in pf:
        prefetch2_setup(a)
    t0, t1, t2 = V_T0, V_T0 + 1, V_T0 + 2
    a(f"""v_and_b32 v16, 31, v0
    v_lshrrev_b32 v17, 5, v0
    v_lshlrev_b32 v{V_L16}, 4, v0
    v_and_b32 v18, 15, v0
    v_lshrrev_b32 v19, 2, v18
    v_and_b32 v20, 3, v18
    v_bfe_u32 v21, v0, 4, 1
    v_lshlrev_b32 v22, 3, v17
    v_add_u32 v22, v22, v19""")
    a(f"""v_lshlrev_b32 v23, 6, v22
    v_lshlrev_b32 v24, 3, v20
    v_lshlrev_b32 v25, 5, v21
    v_add3_u32 v{V_AS}, v23, v24, v25
    v_lshlrev_b32 v23, 7, v22
    v_bfe_u32 v26, v19, 1, 1
    v_lshlrev_b32 v26, 6, v26
    v_add3_u32 v23, v23, v24, v25
    v_add_u32 v{V_AD0}, v23, v26
    v_xor_b32 v26, 64, v26
    v_add_u32 v{V_AD1}, v23, v26""")
    a(f"""v_lshlrev_b32 v23, 8, v22
    v_lshlrev_b32 v26, 3, v19
    v_add_u32 v26, v23, v26""") if False else None
    a(f"""v_lshlrev_b32 v23, 8, v22
    v_lshlrev_b32 v26, 3, v19
    v_lshlrev_b32 v27, 2, v21
    v_add_u32 v27, v27, v20""")
    a(f"""v_cmp_lt_u32 vcc, 3, v27
    v_add_u32 v28, 1, v27
    s_nop 0
    v_cndmask_b32 v28, v27, v28, vcc
    v_xor_b32 v29, v28, v26
    v_lshlrev_b32 v29, 3, v29
    v_add_u32 v{V_AQ}, v23, v29
    v_add_u32 v28, 20, v27
    v_xor_b32 v29, v28, v26
    v_lshlrev_b32 v29, 3, v29
    v_add_u32 v{V_AV}, v23, v29
    v_cmp_eq_u32 vcc, 1, v20
    v_mov_b32 v28, 28
    v_mov_b32 v29, 4
    v_cndmask_b32 v28, v28, v29, vcc
    v_cmp_eq_u32 vcc, 2, v20
    v_mov_b32 v29, 14
    s_nop 0
    v_cndmask_b32 v28, v28, v29, vcc
    v_xor_b32 v29, v28, v26
    v_lshlrev_b32 v29, 3, v29
    v_add_u32 v{V_AX}, v23, v29""")
    a(f"""v_cmp_lt_u32 vcc, 3, v27
    v_add_u32 v28, 11, v27
    v_add_u32 v29, 10, v27
    v_cndmask_b32 v28, v29, v28, vcc
    v_xor_b32 v29, v28, v26
    v_lshlrev_b32 v29, 3, v29
    v_add_u32 v{t0}, v23, v29""")
    V_AK = t0
    a(f"""v_mul_u32_u24 v23, 320, v17
    v_cmp_lt_u32 vcc, 17, v16
    v_subrev_u32 v24, 18, v16
    v_mov_b32 v25, {KV_HEAD}
    v_cndmask_b32 v24, v16, v24, vcc
    v_cndmask_b32 v25, 0, v25, vcc
    v_lshlrev_b32 v24, 4, v24
    v_add3_u32 v{V_VT}, v23, v24, v25""")
    a(f"""v_add_u32 v24, 14, v16
    v_lshlrev_b32 v24, 4, v24
    v_add_u32 v24, {KV_HEAD}, v24
    v_subrev_u32 v25, 12, v16
    v_and_b32 v26, 1, v25
    v_add_u32 v26, 18, v26
    v_lshlrev_b32 v26, 4, v26
    v_lshrrev_b32 v25, 1, v25
    v_and_b32 v25, 1, v25
    v_mul_u32_u24 v25, {KV_HEAD}, v25
    v_add_u32 v25, v25, v26
    v_cmp_lt_u32 vcc, 3, v16
    s_nop 1
    v_cndmask_b32 v24, v24, v25, vcc
    v_add_u32 v{V_V3}, v23, v24
    v_and_b32 v24, 1, v16
    v_cmp_eq_u32 vcc, 0, v24
    v_mov_b32 v25, 0x3f803f80
    s_nop 0
    v_cndmask_b32 v{V_CONST}, 0, v25, vcc
    s_mov_b32 s50, 0xf000
    s_mov_b32 s51, 0xf000
    s_mov_b32 s52, 0xf00f
    s_mov_b32 s53, 0xf00f
    s_mov_b32 s54, 0x550
    s_mov_b32 s55, 0x550""")
    a(f"""s_lshl_b32 s28, s25, 1
    s_lshl_b32 s29, s28, 13
    s_lshl_b32 s30, s27, 7
    s_add_u32 s29, s29, s30
    s_add_u32 s29, s29, {WS_QF2}
    s_mul_i32 s30, s28, {KV_HEAD}
    s_lshr_b32 s31, s27, 3
    s_mul_i32 s31, s31, {KV_CHUNK}
    s_add_u32 s30, s30, s31
    s_add_u32 s30, s30, {WS_KV}
    s_and_b32 s31, s27, 7
    s_lshl_b32 s32, s31, 10
    s_add_u32 s46, s30, s32
    s_mul_i32 s32, s31, {VT_TILE}
    s_add_u32 s48, s30, s32
    s_add_u32 s48, s48, {KV_VT}
    s_lshl_b32 s32, s31, 7
    s_add_u32 s30, s30, s32
    s_add_u32 s30, s30, {KV_KF2}
    v_bfe_u32 v24, v16, 1, 1
    v_mul_u32_u24 v25, 8192, v24
    v_add_u32 v25, s29, v25
    v_mul_u32_u24 v26, {KV_HEAD}, v24
    v_add_u32 v26, s30, v26
    v_cmp_lt_u32 vcc, 7, v16
    v_lshlrev_b32 v24, 4, v17
    s_nop 0
    v_cndmask_b32 v25, v25, v26, vcc
    v_add_u32 v{V_QK}, v25, v24
    v_cmp_lt_u32 vcc, 3, v16
    v_mov_b32 v25, {fbits(QSCALE)}
    s_nop 0
    v_cndmask_b32 v24, 1.0, v25, vcc
    v_cmp_lt_u32 vcc, 7, v16
    s_nop 1
    v_cndmask_b32 v{V_SC}, v24, 1.0, vcc
    s_mov_b32 s47, {fbits(QSCALE)}
    s_lshl_b32 s45, s28, 16
    s_lshl_b32 s32, s27, 10
    s_add_u32 s45, s45, s32
    s_add_u32 s45, s45, {WS_QF1}
    s_mul_i32 s44, s27, {288 * 1024}
    s_mul_i32 s32, s25, {18 * 1024}
    s_add_u32 s44, s44, s32
    s_add_u32 s44, s44, {WS_HF}
    s_and_b32 s32, s25, 1
    s_cmp_eq_u32 s32, 0
    s_cselect_b32 s33, {16 * 1024}, 0
    s_add_u32 s42, s44, s33
    s_lshl_b32 s32, s32, 11
    s_add_u32 s43, s44, s32""")
    a(f"""s_and_b32 s32, s26, 3
    s_mul_i32 s32, s32, {SLOT}
    v_mul_u32_u24 v23, 1152, v16
    v_add_u32 v23, s32, v23
    v_lshrrev_b32 v24, 1, v16
    v_and_b32 v24, 7, v24""")
    for c4 in range(4):
        a(f"""v_lshlrev_b32 v25, 0, v17
        v_add_u32 v25, {2 * c4}, v25
        v_xor_b32 v25, v25, v24
        v_lshlrev_b32 v25, 4, v25
        v_add_u32 v{28 + c4}, v23, v25""")
    a("s_barrier")
    if "W" in pf:
        prefetch(a, "w")
    TMP = 32
    a("s_mov_b32 s56, 0x3f803f80\ns_mov_b32 s57, 0xffff0000")
    for i in range(8):
        a(f"v_mov_b32 v{TMP + i}, 0")
    dots = []
    for x in range(XB, XB + 144):
        i = x % 4
        dots.append(f"v_dot2_f32_bf16 v{TMP + i}, v{x}, s56, v{TMP + i}")
        dots.append(f"v_dot2_f32_bf16 v{TMP + 4 + i}, v{x}, v{x}, v{TMP + 4 + i}")
    done = 0
    for k in range(36):
        a(f"ds_read_b128 {r(XB + 4 * k)}, v{28 + k % 4} offset:{(k // 4) * 128}")
        if k >= 12:
            a("s_waitcnt lgkmcnt(12)")
            for ins in dots[done:done + 2]:
                a(ins)
            done += 2
    a("s_waitcnt lgkmcnt(0)\ns_barrier")
    for ins in dots[done:]:
        a(ins)
    a(f"""s_nop 2
    v_add_f32 v{TMP}, v{TMP}, v{TMP + 1}
    v_add_f32 v{TMP + 2}, v{TMP + 2}, v{TMP + 3}
    v_add_f32 v{TMP + 4}, v{TMP + 4}, v{TMP + 5}
    v_add_f32 v{TMP + 6}, v{TMP + 6}, v{TMP + 7}
    v_add_f32 v{TMP}, v{TMP}, v{TMP + 2}
    v_add_f32 v{TMP + 4}, v{TMP + 4}, v{TMP + 6}
    v_mov_b32 v{TMP + 1}, v{TMP}
    v_mov_b32 v{TMP + 5}, v{TMP + 4}
    s_nop 1
    v_permlane32_swap_b32 v{TMP}, v{TMP + 1}
    v_permlane32_swap_b32 v{TMP + 4}, v{TMP + 5}
    s_nop 1
    v_add_f32 v{TMP}, v{TMP}, v{TMP + 1}
    v_add_f32 v{TMP + 4}, v{TMP + 4}, v{TMP + 5}
    v_mul_f32 v{TMP}, {fbits(1.0 / 576)}, v{TMP}
    v_mul_f32 v{TMP + 4}, {fbits(1.0 / 576)}, v{TMP + 4}
    v_fma_f32 v{TMP + 4}, -v{TMP}, v{TMP}, v{TMP + 4}
    v_max_f32 v{TMP + 4}, 0, v{TMP + 4}
    v_add_f32 v{TMP + 4}, {fbits(1e-5)}, v{TMP + 4}
    v_rsq_f32 v{TMP + 4}, v{TMP + 4}
    s_nop 0
    v_mul_f32 v{TMP + 6}, v{TMP}, v{TMP + 4}
    v_sub_f32 v{TMP + 6}, 0, v{TMP + 6}""")
    for x in range(XB, XB + 144):
        t = TMP + 8 + 2 * (x % 4)
        a(f"v_lshlrev_b32 v{t}, 16, v{x}")
        a(f"v_and_b32 v{t + 1}, s57, v{x}")
        a(f"v_pk_fma_f32 v[{t}:{t + 1}], v[{t}:{t + 1}], v[{TMP + 4}:{TMP + 5}], v[{TMP + 6}:{TMP + 7}] op_sel_hi:[1,0,0]")
        a(f"v_cvt_pk_bf16_f32 v{x}, v{t}, v{t + 1}")

    steps = []
    pair_acc = {0: (ACC[0], ACC[1]), 1: (ACC[2], ACC[3]), 2: (ACC[0], ACC[1]), 3: (ACC[2], ACC[3])}
    for j in range(NS):
        kind = slot_kind(j)
        if kind[0] == "q":
            for k in range(9):
                xs = kind[1] * 9 + k
                for (reg, acc, tr) in ((V_AQ, ACC[0], False), (V_AK, ACC[1], False), (V_AV, ACC[2], True), (V_AX, ACC[3], True)):
                    steps.append((j, reg, k * 4096, 1024, acc, xs, xs == 0, tr))
        elif kind[0] == "s":
            for k in range(36):
                steps.append((j, V_AS, k * 1024, 256, ACC[4], k, k == 0, False))
        else:
            for k in range(18):
                xs = kind[2] * 18 + k
                for T, reg in enumerate((V_AD0, V_AD1)):
                    steps.append((j, reg, k * 2048, 512, pair_acc[kind[1]][T], xs, xs == 0, False))
    total = len(steps)
    assert total == 36 * NS
    cur_base = {V_AQ: 0, V_AK: 0, V_AV: 0, V_AX: 0, V_AS: 0, V_AD0: 0, V_AD1: 0}

    def reads(g):
        j, reg, off, second, acc, xs, first, tr = steps[g]
        base = (j % NSLOT) * SLOT
        out = []
        if cur_base[reg] != base:
            d = base - cur_base[reg]
            out.append(f"v_add_u32 v{reg}, {d & 0xffffffff:#x}, v{reg}")
            cur_base[reg] = base
        buf = WF[g % 4]
        out.append(f"ds_read_b64_tr_b16 v[{buf}:{buf + 1}], v{reg} offset:{off}")
        out.append(f"ds_read_b64_tr_b16 v[{buf + 2}:{buf + 3}], v{reg} offset:{off + second}")
        return out

    a("s_barrier")
    for g in range(3):
        for ins in reads(g):
            a(ins)
    fill = []
    for g in range(total):
        j, reg, off, second, acc, xs, first, tr = steps[g]
        k = g % 36
        if k == 0:
            assert not fill, (j, len(fill))
            if j == 4:
                fill = epi_qkv(sf)
            elif j == 5:
                fill = epi_ffn(ACC[4], "s42", sf)
            elif j == 6 and "2" in pf:
                fill = prefetch2_issue()
            elif j >= 7 and (j - 5) % 2 == 0:
                d = (j - 5) // 2 - 1
                fill = []
                for T in range(2):
                    a(f"s_add_u32 s{58 + T}, s43, {(2 * d + T) * 2048}")
                    fill += epi_ffn(pair_acc[d][T], f"s{58 + T}", sf)
        left = min(2, total - 1 - g)
        a(f"s_waitcnt lgkmcnt({2 * left})")
        c = "0" if first else r(acc, 16)
        x = r(XB + 4 * xs)
        w = r(WF[g % 4])
        if tr:
            a(f"v_mfma_f32_32x32x16_bf16 {r(acc, 16)}, {x}, {w}, {c}")
        else:
            a(f"v_mfma_f32_32x32x16_bf16 {r(acc, 16)}, {w}, {x}, {c}")
        if k == 32 and j + 1 < NS:
            a("s_barrier")
        if g + 3 < total:
            for ins in reads(g + 3):
                a(ins)
        if k >= 6 and fill:
            n = -(-len(fill) // (36 - k))
            for _ in range(n):
                a(fill.pop(0))
    a("s_nop 7\ns_nop 7")
    for T in range(2):
        a(f"s_add_u32 s58, s43, {(2 * 3 + T) * 2048}")
        for it in epi_ffn(pair_acc[3][T], "s58", sf):
            a(it)
    a("s_waitcnt vmcnt(0)")


def k1_kernel(L="k1_kernel", mapping="84", sf="", timing=False, rt=False, pf="W2", rot=True):
    a = Asm()
    if rt:
        rt_stamp_begin(a)
    if timing:
        a("s_memtime s[60:61]")
    a(f"""s_cmp_ge_u32 s2, 256
    s_cbranch_scc1 {L}_end
    s_load_dwordx2 s[4:5], s[0:1], {KA_X}
    s_load_dwordx2 s[6:7], s[0:1], {KA_WS}
    s_load_dwordx2 s[36:37], s[0:1], {KA_WQKV}
    s_load_dwordx2 s[38:39], s[0:1], {KA_W1}
    v_lshrrev_b32 v1, 6, v0
    v_and_b32 v0, 63, v0
    s_and_b32 s28, s2, 7
    v_readfirstlane_b32 s26, v1
    s_lshr_b32 s29, s2, 3""")
    if mapping == "84":
        a("""s_and_b32 s25, s28, 3
        s_lshl_b32 s25, s25, 2
        s_and_b32 s30, s29, 3
        s_add_u32 s25, s25, s30
        s_lshr_b32 s24, s28, 2
        s_lshl_b32 s24, s24, 3
        s_lshr_b32 s30, s29, 2
        s_add_u32 s24, s24, s30""")
    else:
        a("""s_and_b32 s25, s28, 1
        s_lshl_b32 s25, s25, 3
        s_and_b32 s30, s29, 7
        s_add_u32 s25, s25, s30
        s_lshr_b32 s24, s28, 1
        s_lshl_b32 s24, s24, 2
        s_lshr_b32 s30, s29, 3
        s_add_u32 s24, s24, s30""")
    a("""s_and_b32 s27, s26, 3
    s_lshl_b32 s30, s24, 2
    s_add_u32 s27, s27, s30
    s_waitcnt lgkmcnt(0)""")
    a.srd(8, 4, S * D * 2)
    a.srd(12, 6, WS_PART)
    a.srd(16, 36, D * 3 * D * 2)
    a.srd(20, 38, D * F * 2)
    a(f"s_cmp_lt_u32 s26, 4\ns_cbranch_scc1 {L}_consumer")
    loader(a, L, timing, pf, rot)
    a(f"{L}_consumer:")
    consumer(a, L, sf, pf)
    if timing:
        a(f"""s_memtime s[62:63]
        s_load_dwordx2 s[64:65], s[0:1], {KA_DBG}
        s_waitcnt lgkmcnt(0)
        s_sub_u32 s62, s62, s60
        s_lshl_b32 s66, s2, 2
        s_add_u32 s66, s66, s26
        s_lshl_b32 s66, s66, 2
        v_mov_b32 v20, s66
        v_mov_b32 v21, s62
        global_store_dword v20, v21, s[64:65]
        s_waitcnt vmcnt(0)""")
    if rt:
        rt_stamp_end(a, 0, L)
    a(f"{L}_end:\ns_endpgm")
    return kernel_head(L) + a.text() + kernel_desc(L, 256)


K1_LDS = NSLOT * SLOT
```

```python
from asmlib import *
from layout import *
import attn
from attn import r, fbits

R = 3
W2_SLOT = 46080
W2_BASE = R * KV_CHUNK
K2_LDS = W2_BASE + 2 * W2_SLOT
FACC = 16
WF = [96 + 4 * i for i in range(8)]
HF = [128 + 4 * i for i in range(6)]
V_L16, V_WA0, V_WA1 = 1, 2, 3
V_PAT = [4, 5, 6, 7, 8]
NSTEP = 72
HDIST, WDIST = 4, 4


class Queue:
    def __init__(self):
        self.n = 0
        self.pos = {}

    def issue(self, tag=None):
        self.n += 1
        if tag is not None:
            self.pos[tag] = self.n

    def need(self, tag):
        return self.n - self.pos[tag]


def ffn_role(a, L, sf="", off=(), stamps=False):
    a(f"""s_sub_u32 s21, s20, 4
    s_and_b32 s22, s2, 7
    s_lshr_b32 s23, s2, 3
    s_lshr_b32 s24, s22, 1
    s_and_b32 s22, s22, 1
    s_lshl_b32 s22, s22, 3
    s_lshr_b32 s25, s23, 2
    s_add_u32 s22, s22, s25
    s_and_b32 s23, s23, 3
    s_lshl_b32 s22, s22, 2
    s_add_u32 s22, s22, s21""")
    a("""s_lshl_b32 s25, s23, 2
    s_lshr_b32 s26, s23, 1
    s_add_u32 s25, s25, s26""")
    a.srd(8, 6, KV_BYTES, WS_KV)
    a.srd(12, 6, HF_BYTES, WS_HF)
    a.srd(48, 36, F * D * 2)
    a.srd(32, 6, 4 * 64 * 18 * 2048, WS_PART)
    a(f"""v_lshlrev_b32 v{V_L16}, 4, v0
    s_mul_i32 s38, s16, {KV_HEAD}
    s_mul_i32 s39, s21, {5 * 1024}
    s_add_u32 s38, s38, s39
    s_mul_i32 s40, s24, {1152 * 1152}
    s_mul_i32 s41, s21, {36 * 1152}
    s_add_u32 s40, s40, s41
    s_lshl_b32 s41, s25, 6
    s_add_u32 s40, s40, s41
    s_mul_i32 s41, s21, {36 * 320}
    s_add_u32 s41, s41, {W2_BASE}
    s_mul_i32 s42, s22, {288 * 1024}
    s_mul_i32 s43, s24, {72 * 1024}
    s_add_u32 s42, s42, s43""")
    a("s_movk_i32 s43, 3277\ns_movk_i32 s44, 1152")
    for n in range(5):
        a(f"""v_add_u32 v10, {64 * n}, v0
        v_mul_u32_u24 v11, s43, v10
        v_lshrrev_b32 v11, 16, v11
        v_mul_u32_u24 v12, 20, v11
        v_sub_u32 v12, v10, v12
        v_lshlrev_b32 v12, 4, v12
        v_mad_u32_u24 v{V_PAT[n]}, v11, s44, v12""")
    vq = Queue()

    def kv_piece(c, i):
        a(f"s_add_u32 m0, s39, {(c % R) * KV_CHUNK + i * 1024}")
        a(f"s_add_u32 s29, s38, {c * KV_CHUNK + i * 1024}")
        a(f"buffer_load_dwordx4 v{V_L16}, s[8:11], s29 offen lds")
        vq.issue(("kv", c))

    def w2_piece(p, n):
        a(f"s_add_u32 m0, s41, {(p % 2) * W2_SLOT + n * 1024}")
        a(f"s_add_u32 s29, s40, {(p * 144 + (n // 5) * 16) * 1152}")
        if n == 11:
            a("s_mov_b64 exec, 0xffff")
        a(f"buffer_load_dwordx4 v{V_PAT[n % 5]}, s[48:51], s29 offen lds")
        if n == 11:
            a("s_mov_b64 exec, -1")
        vq.issue(("w2", p))

    def h_load(k):
        a(f"s_add_u32 s29, s42, {k * 1024}")
        a(f"buffer_load_dwordx4 {r(HF[k % len(HF)])}, v{V_L16}, s[12:15], s29 offen")
        vq.issue(("h", k))

    for i in range(5):
        kv_piece(0, i)
    for n in range(12):
        w2_piece(0, n)
    for k in range(HDIST):
        h_load(k)
    a(f"""v_and_b32 v10, 15, v0
    v_lshrrev_b32 v11, 2, v10
    v_lshrrev_b32 v12, 5, v0
    v_lshlrev_b32 v12, 2, v12
    v_add_u32 v11, v11, v12
    v_mul_u32_u24 v11, 320, v11
    v_and_b32 v12, 3, v10
    v_lshlrev_b32 v12, 3, v12
    v_bfe_u32 v13, v0, 4, 1
    v_lshlrev_b32 v13, 5, v13
    v_add3_u32 v11, v11, v12, v13
    v_add_u32 v{V_WA0}, {W2_BASE}, v11
    v_add_u32 v{V_WA1}, {W2_BASE + W2_SLOT}, v11""")
    def stamp(lane):
        if stamps:
            a(f"s_memtime s[52:53]\ns_waitcnt lgkmcnt(0)\ns_sub_u32 s52, s52, s60\nv_writelane_b32 v156, s52, {lane}")
    if stamps:
        a("v_mov_b32 v156, 0")
    stamp(34)
    a(f"s_waitcnt vmcnt({min(vq.need(('kv', 0)), vq.need(('w2', 0)))})")
    stamp(32)
    a("s_barrier")
    stamp(33)

    units = [(k, t) for k in range(NSTEP) for t in range(5)]
    lq = Queue()

    def w_reads(g):
        k, t = units[g]
        p, kk = divmod(k, 9)
        ad = V_WA0 if p % 2 == 0 else V_WA1
        buf = WF[g % len(WF)]
        if "read" in off:
            lq.issue(); lq.issue(g)
            return
        a(f"ds_read_b64_tr_b16 v[{buf}:{buf + 1}], v{ad} offset:{kk * 5120 + t * 64}")
        lq.issue()
        a(f"ds_read_b64_tr_b16 v[{buf + 2}:{buf + 3}], v{ad} offset:{kk * 5120 + t * 64 + 2560}")
        lq.issue(g)

    nread = 0
    todo = []
    for g, (k, t) in enumerate(units):
        p, kk = divmod(k, 9)
        if kk == 0 and t == 0:
            todo = []
            if p + 1 < 8:
                todo = [("kv", p + 1, i) for i in range(5)] + [("w2", p + 1, n) for n in range(12)]
            while nread < g + WDIST:
                w_reads(nread)
                nread += 1
        if t == 0:
            a(f"s_waitcnt vmcnt({vq.need(('h', k))})")
        a(f"s_waitcnt lgkmcnt({lq.need(g)})")
        acc = FACC + 16 * t
        c = "0" if k == 0 else r(acc, 16)
        if "mfma" not in off:
            a(f"v_mfma_f32_32x32x16_bf16 {r(acc, 16)}, {r(WF[g % len(WF)])}, {r(HF[k % len(HF)])}, {c}")
        nxt = g + WDIST
        if nxt < len(units) and units[nxt][0] // 9 == p and nread <= nxt:
            w_reads(nread)
            nread += 1
        if t == 4 and k + HDIST < NSTEP:
            h_load(k + HDIST)
        if t in (0, 2) and todo:
            item = todo.pop(0)
            if item[0] == "kv":
                kv_piece(item[1], item[2])
            else:
                w2_piece(item[1], item[2])
        if kk == 8 and t == 4:
            assert not todo
            stamp(40 + p)
            if p + 1 < 8:
                need = [vq.need(("w2", p + 1)), vq.need(("kv", p + 1))]
                a(f"s_waitcnt vmcnt({min(need)})")
            stamp(p)
            a("s_barrier")
            stamp(16 + p)
    a(f"""s_nop 7
    s_nop 7
    s_mul_i32 s43, s24, {64 * 18 * 2048}
    s_mul_i32 s44, s22, {18 * 2048}
    s_add_u32 s43, s43, s44
    s_lshl_b32 s44, s25, 11
    s_add_u32 s43, s43, s44
    s_and_b32 s44, s23, 1""")
    for t in range(5):
        A = FACC + 16 * t
        if t == 0:
            a(f"s_cmp_eq_u32 s44, 1\ns_cbranch_scc1 {L}_skip0")
        for f in range(2):
            for i in range(4):
                a(f"v_cvt_pk_bf16_f32 v{A + 4 * f + i}, v{A + 8 * f + 2 * i}, v{A + 8 * f + 2 * i + 1}")
            a(f"s_add_u32 s29, s43, {t * 2048 + f * 1024}")
            a(f"buffer_store_dwordx4 {r(A + 4 * f)}, v{V_L16}, s[32:35], s29 offen{sf}")
        if t == 0:
            a(f"{L}_skip0:")
    if stamps:
        a(f"""s_load_dwordx2 s[54:55], s[0:1], {KA_DBG}
        s_lshl_b32 s56, s2, 3
        s_add_u32 s56, s56, s20
        s_lshl_b32 s56, s56, 8
        s_add_u32 s56, s56, 8192
        v_lshlrev_b32 v157, 2, v0
        v_add_u32 v157, s56, v157
        s_waitcnt lgkmcnt(0)
        global_store_dword v157, v156, s[54:55]""")
    a("s_waitcnt vmcnt(0)")


def k2_kernel(L="k2_kernel", timing=False, prio=None, fprio=None, sf="", off=(), rt=False, pattern="E"):
    attn.PATTERN = pattern
    a = Asm()
    if rt:
        rt_stamp_begin(a)
    if timing:
        a("s_memtime s[60:61]")
    a(f"""s_cmp_ge_u32 s2, 256
    s_cbranch_scc1 {L}_end
    s_load_dwordx2 s[6:7], s[0:1], {KA_WS}
    s_load_dwordx2 s[36:37], s[0:1], {KA_W2}
    v_lshrrev_b32 v5, 6, v0
    v_and_b32 v0, 63, v0""")
    attn.head_and_block(a, "s2")
    a(f"v_readfirstlane_b32 s20, v5\ns_waitcnt lgkmcnt(0)\ns_cmp_lt_u32 s20, 4\ns_cbranch_scc1 {L}_attn")
    if fprio is not None:
        a(f"s_setprio {fprio}")
    ffn_role(a, L, sf, off, timing)
    a(f"s_branch {L}_fin\n{L}_attn:")
    if "attn" in off:
        for i in range(9):
            a("s_barrier")
    else:
        attn.attn_role(a, L, R, False, prio=prio, sf=sf, stamps=timing)
    a(f"{L}_fin:")
    if timing:
        attn.timing_store(a, "s60", "s20")
    if rt:
        rt_stamp_end(a, 1, L)
    a(f"{L}_end:\ns_endpgm")
    return kernel_head(L) + a.text() + kernel_desc(L, 160)
```

```python
from asmlib import *
from layout import *
from attn import r, fbits

WO_IMG = 576 * 128
K3_LDS = WO_IMG + 3 * 4096
NPART = 4
OFB = 112
ACC = (16, 32)
PB = 48


def k3_kernel(L="k3_kernel", timing=False, sf="", rowmap="lin", rt=False):
    a = Asm()
    if rt:
        rt_stamp_begin(a)
    if timing:
        a("s_memtime s[60:61]")
    a(f"""s_and_b32 s16, s2, 7
    s_lshr_b32 s17, s2, 3
    s_mul_i32 s18, s16, 63
    s_add_u32 s18, s18, 1
    s_lshr_b32 s18, s18, 1
    s_add_u32 s19, s16, 1
    s_mul_i32 s19, s19, 63
    s_add_u32 s19, s19, 1
    s_lshr_b32 s19, s19, 1
    s_add_u32 s18, s18, s17
    s_cmp_ge_u32 s2, 256
    s_cbranch_scc1 {L}_end
    s_cmp_ge_u32 s18, s19
    s_cbranch_scc1 {L}_end""")
    a(f"""s_load_dwordx2 s[4:5], s[0:1], {KA_X}
    s_load_dwordx2 s[6:7], s[0:1], {KA_WS}
    s_load_dwordx2 s[36:37], s[0:1], {KA_WO}
    s_load_dwordx2 s[38:39], s[0:1], {KA_OUT}
    s_mul_i32 s21, s18, 7282
    s_lshr_b32 s21, s21, 16
    s_mul_i32 s22, s21, 9
    s_sub_u32 s22, s18, s22
    v_lshrrev_b32 v1, 6, v0
    v_and_b32 v0, 63, v0
    s_mul_i32 s23, s21, 3
    s_lshl_b32 s24, s21, 1
    s_add_u32 s24, s24, 8
    s_cmp_lt_u32 s21, 8
    s_cselect_b32 s23, s23, s24
    s_cselect_b32 s25, 3, 2
    v_readfirstlane_b32 s20, v1
    s_waitcnt lgkmcnt(0)""")
    a.srd(8, 4, S * D * 2)
    a.srd(12, 6, OF_BYTES, WS_OF)
    a.srd(40, 6, NPART * 64 * 18 * 2048, WS_PART)
    a.srd(44, 36, D * D * 2)
    a.srd(48, 38, S * D * 2)
    a("s_add_u32 s26, s23, s20")
    a(f"""v_lshrrev_b32 v2, 3, v0
    s_movk_i32 s27, 1152
    v_mul_lo_u32 v3, v2, s27
    v_bfe_u32 v4, v0, 4, 1
    v_bfe_u32 v5, v0, 2, 1
    v_xor_b32 v4, v4, v5
    v_lshlrev_b32 v4, 6, v4
    v_and_b32 v5, 3, v0
    v_lshlrev_b32 v5, 4, v5
    v_add3_u32 v3, v3, v4, v5
    s_lshl_b32 s28, s22, 7
    s_mul_i32 s29, s20, {24 * 8 * 1152}
    s_add_u32 s28, s28, s29
    s_mul_i32 s30, s20, {24 * 1024}
    v_lshlrev_b32 v1, 4, v0""")
    a(f"s_cmp_ge_u32 s20, s25\ns_cbranch_scc1 {L}_dma_only")
    a(f"""v_lshrrev_b32 v6, 1, v2
    v_and_b32 v7, 7, v0
    s_lshl_b32 s31, s20, 12
    s_add_u32 s31, s31, {WO_IMG}
    s_mul_i32 s32, s26, {32 * 1152}
    s_lshl_b32 s33, s22, 7
    s_add_u32 s32, s32, s33""")
    for q in range(4):
        a(f"""v_add_u32 v8, {4 * q}, v6
        v_and_b32 v8, 7, v8
        v_xor_b32 v8, v8, v7
        v_lshlrev_b32 v8, 4, v8
        v_mad_u32_u24 v8, v2, s27, v8
        s_add_u32 m0, s31, {q * 1024}
        s_add_u32 s29, s32, {q * 8 * 1152}
        buffer_load_dwordx4 v8, s[8:11], s29 offen lds""")
    a(f"s_mul_i32 s33, s26, {36 * 1024}")
    for k in range(36):
        a(f"s_add_u32 s29, s33, {k * 1024}")
        a(f"buffer_load_dwordx4 {r(OFB + 4 * k)}, v1, s[12:15], s29 offen")
    a(f"""s_mul_i32 s33, s26, {18 * 2048}
    s_lshl_b32 s34, s22, 12
    s_add_u32 s33, s33, s34""")
    for t in range(NPART):
        for T in range(2):
            for f in range(2):
                reg = PB + 16 * t + 8 * T + 4 * f
                a(f"s_add_u32 s29, s33, {t * 64 * 18 * 2048 + T * 2048 + f * 1024}")
                a(f"buffer_load_dwordx4 {r(reg)}, v1, s[40:43], s29 offen")
    a(f"{L}_dma_only:")
    for q in range(24):
        a(f"s_add_u32 m0, s30, {q * 1024}\ns_add_u32 s29, s28, {q * 8 * 1152}")
        a("buffer_load_dwordx4 v3, s[44:47], s29 offen lds")
    a(f"s_cmp_ge_u32 s20, s25\ns_cbranch_scc1 {L}_idle")
    a(f"""v_and_b32 v2, 15, v0
    v_lshrrev_b32 v3, 2, v2
    v_and_b32 v4, 3, v2
    v_lshlrev_b32 v4, 3, v4
    v_bfe_u32 v5, v0, 4, 1
    v_lshlrev_b32 v5, 5, v5
    v_add_u32 v4, v4, v5
    v_lshrrev_b32 v5, 5, v0
    v_lshrrev_b32 v6, 1, v3
    v_lshlrev_b32 v7, 6, v6
    v_lshlrev_b32 v8, 2, v5
    v_add_u32 v9, v8, v3
    v_lshlrev_b32 v9, 7, v9
    v_add3_u32 v10, v9, v4, v7
    v_xor_b32 v7, 64, v7
    v_add3_u32 v11, v9, v4, v7
    v_xor_b32 v7, 64, v7
    v_add_u32 v9, v8, v6
    v_mul_u32_u24 v9, 18, v9
    v_and_b32 v3, 1, v3
    v_add3_u32 v9, v9, v3, 16
    v_lshlrev_b32 v9, 7, v9
    v_add3_u32 v12, v9, v4, v7
    v_xor_b32 v7, 64, v7
    v_add3_u32 v13, v9, v4, v7
    v_add_u32 v14, {16 * 2304}, v10
    v_add_u32 v15, {16 * 2304}, v11""")
    a("""v_and_b32 v2, 31, v0
    v_lshrrev_b32 v3, 5, v0
    v_lshlrev_b32 v3, 2, v3
    v_sub_u32 v2, v2, v3
    v_mov_b32 v4, 0x3f80
    v_mov_b32 v5, 0x3f800000""")
    for f in range(2):
        for d in range(4):
            i0 = 2 * d
            n0 = 16 * f + (i0 & 3) + 8 * (i0 >> 2)
            a(f"""v_cmp_eq_u32 vcc, {n0}, v2
            v_cmp_eq_u32 s[52:53], {n0 + 1}, v2
            s_nop 0
            v_cndmask_b32 v6, 0, v4, vcc
            v_cndmask_b32 v7, 0, v5, s[52:53]
            v_or_b32 v6, v6, v7
            v_accvgpr_write_b32 a{4 * f + d}, v6""")
    a(f"""v_and_b32 v2, 31, v0
    v_lshrrev_b32 v3, 1, v2
    v_and_b32 v3, 7, v3
    v_lshlrev_b32 v2, 7, v2
    v_lshrrev_b32 v4, 5, v0
    v_lshlrev_b32 v4, 3, v4
    v_add3_u32 v2, v2, v4, s31""")
    a("s_waitcnt vmcnt(0)\ns_barrier")
    first = [True, True]

    def mm(T, A, B):
        c = "0" if first[T] else r(ACC[T], 16)
        first[T] = False
        a(f"v_mfma_f32_32x32x16_bf16 {r(ACC[T], 16)}, {A}, {B}, {c}")
    for T in range(2):
        for f in range(2):
            for piece in range(2):
                c = 4 * T + 2 * f + piece
                a(f"v_xor_b32 v5, {c}, v3\nv_lshlrev_b32 v5, 4, v5\nv_add_u32 v5, v5, v2")
                a(f"ds_read_b64 v[{6 + 2 * piece}:{7 + 2 * piece}], v5")
            a("s_waitcnt lgkmcnt(0)")
            mm(T, f"a[{4 * f}:{4 * f + 3}]", "v[6:9]")
    for t in range(NPART):
        for T in range(2):
            for f in range(2):
                mm(T, f"a[{4 * f}:{4 * f + 3}]", r(PB + 16 * t + 8 * T + 4 * f))
    RING = [48 + 4 * i for i in range(8)]
    units = [(j, T) for j in range(36) for T in range(2)]

    def wread(g):
        j, T = units[g]
        buf = RING[g % 8]
        if j < 32:
            sw = T ^ (j & 1)
            reg = (10 + sw) if j < 16 else (14 + sw)
            off = (j % 16) * 2304
            second = 1024
        else:
            reg = 12 + T
            off = (j - 32) * 18432
            second = 4608
        a(f"ds_read_b64_tr_b16 v[{buf}:{buf + 1}], v{reg} offset:{off}")
        a(f"ds_read_b64_tr_b16 v[{buf + 2}:{buf + 3}], v{reg} offset:{off + second}")
    a("s_nop 7")
    for g in range(4):
        wread(g)
    for g, (j, T) in enumerate(units):
        left = min(3, len(units) - 1 - g)
        a(f"s_waitcnt lgkmcnt({2 * left})")
        mm(T, r(RING[g % 8]), r(OFB + 4 * j))
        if g + 4 < len(units):
            wread(g + 4)
    a("s_nop 7\ns_nop 7")
    a(f"""v_and_b32 v2, 31, v0
    v_lshrrev_b32 v3, 1, v2
    v_and_b32 v3, 7, v3
    v_lshlrev_b32 v2, 7, v2
    v_lshrrev_b32 v4, 5, v0
    v_lshlrev_b32 v4, 3, v4
    v_add3_u32 v2, v2, v4, s31""")
    for T in range(2):
        A = ACC[T]
        for g in range(4):
            a(f"v_cvt_pk_bf16_f32 v{A + 2 * g}, v{A + 4 * g}, v{A + 4 * g + 1}")
            a(f"v_cvt_pk_bf16_f32 v{A + 2 * g + 1}, v{A + 4 * g + 2}, v{A + 4 * g + 3}")
        for g in range(4):
            c = 4 * T + g
            a(f"v_xor_b32 v5, {c}, v3\nv_lshlrev_b32 v5, 4, v5\nv_add_u32 v5, v5, v2")
            a(f"ds_write_b64 v5, v[{A + 2 * g}:{A + 2 * g + 1}]")
    a(f"""v_lshrrev_b32 v2, 3, v0
    v_lshrrev_b32 v6, 1, v2
    v_and_b32 v7, 7, v0
    v_add_u32 v9, s31, v1
    s_waitcnt lgkmcnt(0)""")
    for q in range(4):
        a(f"ds_read_b128 {r(48 + 4 * q)}, v9 offset:{q * 1024}")
    for q in range(4):
        a(f"""v_add_u32 v8, {4 * q}, v6
        v_and_b32 v8, 7, v8
        v_xor_b32 v8, v8, v7
        v_lshlrev_b32 v8, 4, v8
        v_mad_u32_u24 v8, v2, s27, v8
        s_add_u32 s29, s32, {q * 8 * 1152}
        s_waitcnt lgkmcnt({3 - q})
        buffer_store_dwordx4 {r(48 + 4 * q)}, v8, s[48:51], s29 offen{sf}""")
    a(f"s_waitcnt vmcnt(0)\ns_branch {L}_fin\n{L}_idle:\ns_waitcnt vmcnt(0)\ns_barrier\n{L}_fin:")
    if timing:
        a(f"""s_memtime s[62:63]
        s_load_dwordx2 s[64:65], s[0:1], {KA_DBG}
        s_waitcnt lgkmcnt(0)
        s_sub_u32 s62, s62, s60
        s_lshl_b32 s66, s2, 2
        s_add_u32 s66, s66, s20
        s_lshl_b32 s66, s66, 2
        v_mov_b32 v20, s66
        v_mov_b32 v21, s62
        global_store_dword v20, v21, s[64:65]
        s_waitcnt vmcnt(0)""")
    if rt:
        rt_stamp_end(a, 2, L)
    a(f"{L}_end:\ns_endpgm")
    desc = kernel_desc(L, 264, accum=256)
    return kernel_head(L) + a.text() + desc
```

```python
import struct
from asmlib import *
from layout import *


def fbits(x):
    return hex(struct.unpack("<I", struct.pack("<f", x))[0])


QA1, QA2, QB1, QB2 = 8, 12, 16, 20
KF1 = (24, 32)
KF2 = (28, 36)
VF = ((40, 44), (48, 52))
PA, PB = 56, 64
SA, SB = 72, 88
OA, OB = 104, 120
T0 = 136
V_DMA, V_K1, V_K2, V_V = 1, 2, 3, 4
NVGPR = 144


def r(base, n=4):
    return f"v[{base}:{base + n - 1}]"


def mf(d, a, b, c):
    cs = "0" if c is None else r(c, 16)
    return f"v_mfma_f32_32x32x16_bf16 {r(d, 16)}, {r(a)}, {r(b)}, {cs}"


PATTERN = "E"
VZERO = True


def phase(a, Sx, Px, Sprev, Pprev, pv, sm, extra):
    e = lambda i: f"v_exp_f32 v{Sx + i}, v{Sx + i}"
    c = lambda i: f"v_cvt_pk_bf16_f32 v{Px + i}, v{Sx + 2 * i}, v{Sx + 2 * i + 1}"
    cp = f"v_cvt_pk_bf16_f32 v{Pprev + 7}, v{Sprev + 14}, v{Sprev + 15}"
    x0, x1 = extra.get(0, []), extra.get(1, [])
    if PATTERN == "A":
        seq = ([pv[0]] + x0 + [cp, e(0), e(1), e(2), c(0), e(3), sm[0]] + x1 + [e(4), c(1), e(5), e(6), c(2), e(7), sm[1],
               e(8), c(3), e(9), e(10), c(4), e(11), pv[1], e(12), c(5), e(13), e(14), c(6), e(15)])
    elif PATTERN == "B":
        seq = ([pv[0]] + (x0 or ["s_nop 0"]) + [cp, e(0), e(1), pv[1]] + x1 + [e(2), e(3), c(0), e(4), c(1), e(5), e(6), c(2), e(7),
               sm[0], e(8), e(9), e(10), sm[1], c(3), e(11), c(4), e(12), e(13), c(5), e(14), e(15), c(6)])
    elif PATTERN == "E":
        seq = ([pv[0]] + (x0 or ["s_nop 0"]) + [cp, e(0), e(1), pv[1]] + x1 + [e(2), e(3), c(0), e(4), c(1), e(5), sm[0],
               e(6), c(2), e(7), e(8), c(3), e(9), e(10), sm[1], c(4), e(11), e(12), c(5), e(13), e(14), c(6), e(15)])
    last = max(i for i, x in enumerate(seq) if x == sm[1])
    assert (len(seq) - 1 - last) + 4 >= 12, (PATTERN, len(seq) - 1 - last)
    for ins in seq:
        a(ins)


def head_and_block(a, wgid):
    a(f"""s_and_b32 s16, {wgid}, 7
    s_lshr_b32 s17, {wgid}, 3
    s_lshl_b32 s16, s16, 2
    s_and_b32 s18, s17, 3
    s_add_u32 s16, s16, s18
    s_lshr_b32 s17, s17, 2""")


def kv_dma(a, src, slot, srd="s[8:11]", voff=V_DMA, tmp="s29"):
    for i in range(5):
        a(f"s_add_u32 m0, {slot}, {i * 1024}")
        a(f"s_add_u32 {tmp}, {src}, {i * 1024}")
        a(f"buffer_load_dwordx4 v{voff}, {srd}, {tmp} offen lds")


def attn_role(a, L, R, own_dma, lds_base=0, prio=None, sf="", stamps=False, lf=""):
    a(f"""v_lshlrev_b32 v{V_DMA}, 4, v0
    s_lshl_b32 s18, s17, 3
    s_lshl_b32 s19, s20, 1
    s_add_u32 s18, s18, s19""")
    if own_dma:
        a.srd(8, 6, KV_BYTES, WS_KV)
    a.srd(12, 6, QF1_BYTES + QF2_BYTES, WS_QF1)
    a.srd(32, 6, OF_BYTES, WS_OF)
    a(f"""s_lshl_b32 s21, s16, 16
    s_lshl_b32 s22, s18, 10
    s_add_u32 s21, s21, s22
    buffer_load_dwordx4 {r(QA1)}, v{V_DMA}, s[12:15], s21 offen{lf}
    buffer_load_dwordx4 {r(QB1)}, v{V_DMA}, s[12:15], s21 offen offset:1024{lf}
    v_and_b32 v5, 31, v0
    v_lshlrev_b32 v{V_K2}, 2, v5
    s_lshl_b32 s21, s16, 13
    s_lshl_b32 s22, s18, 7
    s_add_u32 s21, s21, s22
    s_add_u32 s21, s21, {QF1_BYTES}""")
    for x in (QA2, QB2):
        for i in range(4):
            a(f"v_mov_b32 v{x + i}, 0")
    a(f"""s_mov_b32 exec_hi, 0
    buffer_load_dword v{QA2}, v{V_K2}, s[12:15], s21 offen{lf}
    buffer_load_dword v{QB2}, v{V_K2}, s[12:15], s21 offen offset:128{lf}
    s_mov_b32 exec_hi, -1""")
    if own_dma:
        a(f"""s_mul_i32 s22, s16, {KV_HEAD}
        s_mul_i32 s23, s20, {5 * 1024}
        s_add_u32 s22, s22, s23
        s_add_u32 s23, s23, {lds_base}""")
        kv_dma(a, "s22", "s23")
        a(f"s_add_u32 s22, s22, {KV_CHUNK}\ns_add_u32 s28, s23, {KV_CHUNK}")
        kv_dma(a, "s22", "s28")
        a(f"s_add_u32 s22, s22, {KV_CHUNK}")
    VROW = ("v_min_u32 v7, 19, v5" if VZERO else
            "v_subrev_u32 v7, 20, v5\nv_cmp_gt_u32 vcc, 20, v5\ns_nop 1\nv_cndmask_b32 v7, v7, v5, vcc")
    a(f"""v_add_u32 v{V_K1}, {lds_base}, v{V_DMA}
    v_add_u32 v{V_K2}, {lds_base + KV_KF2}, v{V_K2}
    v_lshrrev_b32 v6, 5, v0
    v_mul_u32_u24 v6, 320, v6
    {VROW}
    v_lshlrev_b32 v7, 4, v7
    v_add_u32 v{V_V}, v6, v7
    v_add_u32 v{V_V}, {lds_base + KV_VT}, v{V_V}""")
    for b in (0, 1):
        a(f"v_mov_b32 v{KF2[b] + 1}, 0x3f80\nv_mov_b32 v{KF2[b] + 2}, 0\nv_mov_b32 v{KF2[b] + 3}, 0")
    for b in (0, 1):
        for f in (0, 1):
            for i in range(4):
                a(f"v_mov_b32 v{VF[b][f] + i}, 0")
    for i in range(8):
        a(f"v_mov_b32 v{PB + i}, 0")
    for i in range(16):
        a(f"v_mov_b32 v{OA + i}, 0\nv_mov_b32 v{OB + i}, 0")
    if stamps:
        a("v_mov_b32 v140, 0\ns_mov_b32 s50, 0")
    a(f"s_waitcnt vmcnt({5 if own_dma else 0})")
    if stamps:
        a("s_memtime s[52:53]\ns_waitcnt lgkmcnt(0)\ns_sub_u32 s52, s52, s60\nv_writelane_b32 v140, s52, 32")
    a("s_barrier")
    if stamps:
        a("s_memtime s[52:53]\ns_waitcnt lgkmcnt(0)\ns_sub_u32 s52, s52, s60\nv_writelane_b32 v140, s52, 33")
    a(f"ds_read_b128 {r(KF1[0])}, v{V_K1}\nds_read_b32 v{KF2[0]}, v{V_K2}\ns_waitcnt lgkmcnt(0)")
    a(mf(SA, KF1[0], QA1, None))
    a(mf(SB, KF1[0], QB1, None))
    a(mf(SA, KF2[0], QA2, SA))
    a(mf(SB, KF2[0], QB2, SB))
    a("s_nop 7\ns_nop 7")
    for (Sx, Q2, t) in ((SA, QA2, T0), (SB, QB2, T0 + 2)):
        a(f"v_max3_f32 v{t}, v{Sx}, v{Sx + 1}, v{Sx + 2}")
        for i in range(3, 15, 2):
            a(f"v_max3_f32 v{t}, v{t}, v{Sx + i}, v{Sx + i + 1}")
        a(f"v_max_f32 v{t}, v{t}, v{Sx + 15}")
        a(f"v_mov_b32 v{t + 1}, v{t}\ns_nop 1\nv_permlane32_swap_b32 v{t}, v{t + 1}\ns_nop 1")
        a(f"v_max_f32 v{t}, v{t}, v{t + 1}")
        a(f"v_add_f32 v{t}, {fbits(M_BIAS)}, v{t}")
        a(f"s_mov_b32 exec_hi, 0\nv_cvt_pk_bf16_f32 v{Q2 + 1}, -v{t}, 0\ns_mov_b32 exec_hi, -1")
    a("s_nop 1")
    a(mf(SA, KF1[0], QA1, None))
    a(mf(SA, KF2[0], QA2, SA))
    a("s_mov_b32 s30, 0\ns_mov_b32 s27, 0")
    if prio is not None:
        a(f"s_setprio {prio}")
    a("s_nop 7\ns_nop 3")
    a(f".p2align 6\n{L}_loop:")
    for i in range(8):
        kb, nb = i % 2, (i + 1) % 2
        if i == 7:
            if stamps:
                a("s_memtime s[52:53]\ns_waitcnt lgkmcnt(0)\ns_sub_u32 s52, s52, s60\ns_mov_b32 m0, s50\ns_nop 0\nv_writelane_b32 v140, s52, m0")
            a("s_waitcnt vmcnt(0)\ns_barrier" if own_dma else "s_barrier")
            if stamps:
                a("s_memtime s[52:53]\ns_waitcnt lgkmcnt(0)\ns_sub_u32 s52, s52, s60\ns_add_u32 m0, s50, 16\ns_nop 0\nv_writelane_b32 v140, s52, m0\ns_add_u32 s50, s50, 1")
            a(f"s_add_u32 s26, s27, {KV_CHUNK}\ns_cmp_eq_u32 s26, {R * KV_CHUNK}\ns_cselect_b32 s26, 0, s26")
            if own_dma:
                a(f"s_cmp_ge_u32 s30, 6\ns_cbranch_scc1 {L}_nodma")
                a(f"s_add_u32 s25, s26, {KV_CHUNK}\ns_cmp_eq_u32 s25, {R * KV_CHUNK}\ns_cselect_b32 s25, 0, s25\ns_add_u32 s25, s25, s23")
                kv_dma(a, "s22", "s25")
                a(f"s_add_u32 s22, s22, {KV_CHUNK}\n{L}_nodma:")
            a(f"s_sub_u32 s25, s26, s27\nv_add_u32 v{V_K1}, s25, v{V_K1}\nv_add_u32 v{V_K2}, s25, v{V_K2}")
        ki = (i + 1) % 8
        loads = {0: [f"ds_read_b128 {r(KF1[nb])}, v{V_K1} offset:{ki * 1024}",
                     f"ds_read_b32 v{KF2[nb]}, v{V_K2} offset:{ki * 128}"],
                 1: [f"ds_read_b128 {r(VF[kb][0])}, v{V_V} offset:{i * VT_TILE}",
                     f"ds_read_b128 {r(VF[kb][1])}, v{V_V} offset:{i * VT_TILE + 640}"]}
        phase(a, SA, PA, SB, PB, [mf(OB, VF[nb][0], PB, OB), mf(OB, VF[nb][1], PB + 4, OB)],
              [mf(SB, KF1[kb], QB1, None), mf(SB, KF2[kb], QB2, SB)], loads)
        if i == 7:
            a(f"v_add_u32 v{V_V}, s25, v{V_V}\ns_mov_b32 s27, s26")
        a("s_waitcnt lgkmcnt(0)")
        phase(a, SB, PB, SA, PA, [mf(OA, VF[kb][0], PA, OA), mf(OA, VF[kb][1], PA + 4, OA)],
              [mf(SA, KF1[nb], QA1, None), mf(SA, KF2[nb], QA2, SA)], {})
    a(f"s_add_u32 s30, s30, 1\ns_cmp_lt_u32 s30, 8\ns_cbranch_scc1 {L}_loop")
    a(f"s_nop 0\nv_cvt_pk_bf16_f32 v{PB + 7}, v{SB + 14}, v{SB + 15}\ns_nop 1")
    a(mf(OB, VF[1][0], PB, OB))
    a(mf(OB, VF[1][1], PB + 4, OB))
    a("s_nop 7\ns_nop 7")
    a(f"""s_mul_i32 s21, s18, {36 * 1024}
    s_lshl_b32 s19, s16, 10
    s_add_u32 s19, s19, s21
    s_lshr_b32 s24, s16, 3
    s_add_u32 s24, s24, 32
    s_lshl_b32 s24, s24, 10
    s_add_u32 s21, s21, s24
    s_and_b32 s24, s16, 4
    s_lshl_b32 s24, s24, 7
    s_add_u32 s21, s21, s24
    s_and_b32 s24, s16, 3
    s_lshl_b32 s24, s24, 2
    s_add_u32 s21, s21, s24""")
    for n, O in enumerate((OA, OB)):
        t = T0
        a(f"v_mov_b32 v{t}, v{O + 10}\nv_mov_b32 v{t + 1}, v{O + 10}\ns_nop 1\nv_permlane32_swap_b32 v{t}, v{t + 1}\ns_nop 1")
        a(f"v_rcp_f32 v{t}, v{t}\ns_nop 0")
        for i in range(10):
            a(f"v_mul_f32 v{O + i}, v{O + i}, v{t}")
        for i in range(5):
            a(f"v_cvt_pk_bf16_f32 v{O + i}, v{O + 2 * i}, v{O + 2 * i + 1}")
        a(f"buffer_store_dwordx4 {r(O)}, v{V_DMA}, s[32:35], s19 offen{sf}")
        a(f"s_mov_b32 exec_hi, 0\nbuffer_store_dword v{O + 4}, v{V_DMA}, s[32:35], s21 offen{sf}\ns_mov_b32 exec_hi, -1")
        if n == 0:
            a(f"s_add_u32 s19, s19, {36 * 1024}\ns_add_u32 s21, s21, {36 * 1024}")
    if stamps:
        a(f"""s_load_dwordx2 s[54:55], s[0:1], {KA_DBG}
        s_lshl_b32 s56, s2, 3
        s_add_u32 s56, s56, s20
        s_lshl_b32 s56, s56, 8
        s_add_u32 s56, s56, 8192
        v_lshlrev_b32 v141, 2, v0
        v_add_u32 v141, s56, v141
        s_waitcnt lgkmcnt(0)
        global_store_dword v141, v140, s[54:55]""")
    a("s_waitcnt vmcnt(0)")


def timing_store(a, start, wave):
    a(f"""s_memtime s[42:43]
    s_load_dwordx2 s[44:45], s[0:1], {KA_DBG}
    s_waitcnt lgkmcnt(0)
    s_sub_u32 s42, s42, {start}
    s_lshl_b32 s46, s2, 3
    s_add_u32 s46, s46, {wave}
    s_lshl_b32 s46, s46, 2
    v_mov_b32 v5, s46
    v_mov_b32 v6, s42
    global_store_dword v5, v6, s[44:45]
    s_waitcnt vmcnt(0)""")


def attn_kernel(L="attn_kernel", R=3, timing=False):
    a = Asm()
    if timing:
        a("s_memtime s[40:41]")
    a(f"""s_cmp_ge_u32 s2, 256
    s_cbranch_scc1 {L}_end
    s_load_dwordx2 s[6:7], s[0:1], {KA_WS}
    v_lshrrev_b32 v5, 6, v0
    v_and_b32 v0, 63, v0""")
    head_and_block(a, "s2")
    a("v_readfirstlane_b32 s20, v5\ns_waitcnt lgkmcnt(0)")
    attn_role(a, L, R, True)
    if timing:
        timing_store(a, "s40", "s20")
    a(f"{L}_end:\ns_endpgm")
    return kernel_head(L) + a.text() + kernel_desc(L, NVGPR)
```

```python
import sys
sys.path.insert(0, "gen")
from asmlib import *
import k1, k2
import p3 as k3


def build(k1kw=None, k2kw=None, k3kw=None, fused=None):
    if fused is not None:
        import fused as fz
        L = NAME + '_kernel'
        launches = [(L, (256, 1, 1), (512, 1, 1), fz.FUSED_LDS)]
        src = LAYOUT_COMMENT + f'; @launch grid=(256,1,1) block=(512,1,1) lds={fz.FUSED_LDS}\n' + '.amdgcn_target "amdgcn-amd-amdhsa--gfx950"\n.text\n'
        src += fz.fused_kernel(L, **fused)
        return src, launches
    fuse3 = bool(k2kw and k2kw.get("fuse3"))
    launches = [("k1_kernel", (256, 1, 1), (512, 1, 1), k1.K1_LDS),
                ("k2_kernel", (256, 1, 1), (512, 1, 1), max(k2.K2_LDS, k3.P3_LDS) if fuse3 else k2.K2_LDS)]
    if not fuse3:
        launches.append(("k3_kernel", (256, 1, 1), (k3.K3_BLOCK, 1, 1), k3.K3_LDS))
    src = file_head(launches)
    src += k1.k1_kernel("k1_kernel", **(k1kw or {}))
    src += k2.k2_kernel("k2_kernel", **(k2kw or {}))
    if not fuse3:
        src += k3.k3_kernel("k3_kernel", **(k3kw or {}))
    return src, launches


if __name__ == "__main__":
    out = sys.argv[1] if len(sys.argv) > 1 else "v1.s"
    src, _ = build()
    open(out, "w").write(src)
    print(out, len(src))
```

```python
from asmlib import *
from layout import *
import k1, k2, p3, attn

FUSED_LDS = 160 * 1024


def fused_kernel(L=NAME + "_kernel", rt=False, k1kw=None, pattern="E"):
    attn.PATTERN = pattern
    attn.VZERO = True
    a = Asm()
    if rt:
        rt_stamp_begin(a)
    a(f"s_cmp_ge_u32 s2, 256\ns_cbranch_scc1 {L}_end")
    k1.p1_body(a, L, sf=" sc1", fused=True, **(k1kw or {}))
    a(f"""{L}_p2:
    s_mov_b32 s20, s26
    s_load_dwordx2 s[6:7], s[0:1], {KA_WS}
    s_load_dwordx2 s[36:37], s[0:1], {KA_W2}""")
    k2.p2_body(a, L, sf=" sc1", fuse3=True, fused1=True)
    if rt:
        a("s_waitcnt vmcnt(0)")
        rt_stamp_end(a, 0, L)
    a(f"{L}_end:\ns_endpgm")
    return kernel_head(L) + a.text() + kernel_desc(L, 256)
```

```python
import struct
from asmlib import *
from layout import *
import p3


def fbits(x):
    return hex(struct.unpack("<I", struct.pack("<f", x))[0])


NS = 13
SLOT = 36864
NSLOT = 4
PF2_SLOT = 6
WB_WGS = 8
XB = 112
ACC = (16, 32, 48, 64, 80)
WF = (96, 100, 104, 108)
V_L16, V_VT, V_V3, V_QK, V_SC, V_CONST = 1, 2, 3, 4, 5, 6
V_AQ, V_AX, V_AV = 7, 8, 9
V_AS, V_AD0, V_AD1 = 10, 11, 12
V_T0 = 13


def r(base, n=4):
    return f"v[{base}:{base + n - 1}]"


def slot_kind(j):
    if j < 4:
        return ("q", j)
    if j == 4:
        return ("s", 0)
    return ("d", (j - 5) // 2, (j - 5) % 2)


def loader(a, L, timing=False, pf="", rot=True, wb=(), fused=False):
    a("s_sub_u32 s28, s26, 4\nv_mov_b32 v20, 0")
    a(f"""s_cmp_eq_u32 s2, 0
    s_cbranch_scc0 {L}_nozero
    s_cmp_eq_u32 s28, 0
    s_cbranch_scc0 {L}_nozero
    v_lshlrev_b32 v2, 7, v0
    v_add_u32 v2, {WS_CNT}, v2
    buffer_store_dword v20, v2, s[12:15], 0 offen{" sc1" if fused else ""}
    {L}_nozero:""")
    if timing:
        a("s_memtime s[68:69]\ns_waitcnt lgkmcnt(0)\ns_sub_u32 s72, s68, s60\nv_writelane_b32 v20, s72, 38")
    a(f"""s_lshl_b32 s29, s24, 2
    s_add_u32 s29, s29, s28
    s_mul_i32 s29, s29, {32 * 1152}
    s_mul_i32 s41, s28, {SLOT}
    s_movk_i32 s30, 29128
    s_movk_i32 s31, 1152""")
    if rot:
        a("s_mul_i32 s33, s25, 9\ns_lshr_b32 s33, s33, 2")
    else:
        a("s_mov_b32 s33, 0")
    for q in range(36):
        a(f"""s_lshl_b32 s34, s33, 6
        v_add_u32 v2, s34, v0
        v_mul_u32_u24 v3, s30, v2
        v_lshrrev_b32 v3, 21, v3
        v_mul_u32_u24 v4, 72, v3
        v_sub_u32 v4, v2, v4
        v_lshrrev_b32 v5, 1, v3
        v_xor_b32 v5, v5, v4
        v_and_b32 v5, 7, v5
        v_and_b32 v4, 0x78, v4
        v_or_b32 v4, v4, v5
        v_lshlrev_b32 v4, 4, v4
        v_mad_u32_u24 v4, v3, s31, v4
        s_lshl_b32 s34, s33, 10
        s_add_u32 m0, s41, s34
        s_add_u32 s33, s33, 1
        buffer_load_dwordx4 v4, s[8:11], s29 offen lds
        s_cmp_eq_u32 s33, 36
        s_cselect_b32 s33, 0, s33""")
    a(f"""v_lshrrev_b32 v2, 4, v0
    s_movk_i32 s30, 3456
    v_mul_lo_u32 v2, v2, s30
    v_and_b32 v3, 15, v0
    v_lshrrev_b32 v4, 4, v0
    v_lshlrev_b32 v4, 2, v4
    v_xor_b32 v3, v3, v4
    v_mul_u32_u24 v5, 13108, v3
    v_lshrrev_b32 v5, 16, v5
    v_mul_u32_u24 v7, 5, v5
    v_sub_u32 v7, v3, v7
    v_lshlrev_b32 v6, 4, v7
    v_cmp_eq_u32 vcc, 4, v7
    v_mov_b32 v9, 56
    v_mul_u32_u24 v10, 1152, v5
    v_cndmask_b32 v6, v6, v9, vcc
    v_add_u32 v6, v6, v10
    s_xor_b32 s33, s25, 1
    s_sub_u32 s33, s33, s25
    s_mul_i32 s33, s33, 72
    v_cmp_eq_u32 vcc, 1, v5
    v_mov_b32 v9, s33
    s_nop 0
    v_cndmask_b32 v9, 0, v9, vcc
    v_add_u32 v6, v6, v9
    v_cmp_eq_u32 vcc, 15, v3
    v_mov_b32 v9, 0x40000000
    s_nop 0
    v_cndmask_b32 v6, v6, v9, vcc
    v_add_u32 v6, v6, v2""")
    a(f"""s_movk_i32 s31, 9216
    v_lshrrev_b32 v2, 2, v0
    v_mul_lo_u32 v2, v2, s31
    v_and_b32 v3, 3, v0
    v_lshlrev_b32 v3, 4, v3
    v_add_u32 v7, v2, v3
    v_lshrrev_b32 v2, 3, v0
    v_mul_lo_u32 v8, v2, s31
    v_bfe_u32 v2, v0, 4, 1
    v_bfe_u32 v4, v0, 2, 1
    v_xor_b32 v2, v2, v4
    v_lshlrev_b32 v2, 6, v2
    v_add3_u32 v8, v8, v2, v3""")
    a(f"""s_mul_i32 s32, s28, {9 * 4 * 3456}
    s_mul_i32 s33, s25, 72
    s_add_u32 s32, s32, s33
    s_and_b32 s33, s25, 1
    s_mul_i32 s35, s25, 576
    s_mul_i32 s34, s28, {9 * 16 * 9216}
    s_add_u32 s34, s34, s35
    s_cmp_eq_u32 s33, 0
    s_cselect_b32 s36, 512, 0
    s_add_u32 s34, s34, s36
    s_mul_i32 s40, s28, {9 * 8 * 9216}
    s_add_u32 s40, s40, s35
    s_lshl_b32 s36, s33, 6
    s_add_u32 s40, s40, s36
    s_mul_i32 s41, s28, {9 * 1024}""")

    def issue(j):
        kind = slot_kind(j)
        base = (j % NSLOT) * SLOT
        for n in range(9):
            a(f"s_add_u32 m0, s41, {base + n * 1024}")
            if kind[0] == "q":
                a(f"s_add_u32 s29, s32, {(kind[1] * 144 + n * 4) * 3456}")
                a("buffer_load_dwordx4 v6, s[16:19], s29 offen lds")
            elif kind[0] == "s":
                a(f"s_add_u32 s29, s34, {n * 16 * 9216}")
                a("buffer_load_dwordx4 v7, s[20:23], s29 offen lds")
            else:
                a(f"s_add_u32 s29, s40, {(kind[2] * 288 + n * 8) * 9216 + kind[1] * 128}")
                a("buffer_load_dwordx4 v8, s[20:23], s29 offen lds")

    def stamp(lane):
        if timing:
            a(f"s_memtime s[68:69]\ns_memrealtime s[70:71]\ns_waitcnt lgkmcnt(0)\ns_sub_u32 s72, s68, s60\nv_writelane_b32 v20, s72, {lane}")
            if lane < 16 or lane in (32, 33):
                a(f"s_sub_u32 s72, s70, s62\nv_writelane_b32 v20, s72, {lane + 40 if lane < 16 else lane + 8 - 10}")
    stamp(34)
    if timing:
        a("s_waitcnt vmcnt(27)")
        stamp(35)
        a("s_waitcnt vmcnt(18)")
        stamp(36)
        a("s_waitcnt vmcnt(9)")
        stamp(37)
    a("s_waitcnt vmcnt(0)")
    stamp(32)
    if fused:
        a(f"s_cmp_eq_u32 s2, 0\ns_cbranch_scc0 {L}_nozs\ns_cmp_eq_u32 s28, 0\ns_cbranch_scc0 {L}_nozs")
        p3.signal(a, p3.DBG_ZERO, 1, tmpv=(22, 23))
        a(f"{L}_nozs:")
    a("s_barrier")
    a("s_barrier")
    stamp(33)
    for j in range(2):
        issue(j)
    issued = 2
    for j in range(NS):
        a(f"s_waitcnt vmcnt({9 * (issued - 1 - j)})")
        stamp(16 + j)
        a("s_barrier")
        stamp(j)
        if fused and j == 7:
            a(f"s_cmp_eq_u32 s28, 0\ns_cbranch_scc0 {L}_noq\ns_lshl_b32 s73, s25, 2")
            p3.signal(a, "s73", 1, tmpv=(22, 23))
            a(f"{L}_noq:")
        if j + 2 < NS:
            issue(j + 2)
            issued += 1
        if j in wb:
            a(f"s_cmp_lt_u32 s2, {WB_WGS}\ns_cbranch_scc0 {L}_nowb{j}\ns_cmp_eq_u32 s26, 4\ns_cbranch_scc0 {L}_nowb{j}\nbuffer_wbl2 sc1\n{L}_nowb{j}:")
    if timing:
        a(f"""s_load_dwordx2 s[64:65], s[0:1], {KA_DBG}
        s_lshl_b32 s66, s2, 2
        s_add_u32 s66, s66, s28
        s_lshl_b32 s66, s66, 8
        s_add_u32 s66, s66, 4096
        v_lshlrev_b32 v21, 2, v0
        v_add_u32 v21, s66, v21
        s_waitcnt lgkmcnt(0)
        global_store_dword v21, v20, s[64:65]
        s_waitcnt vmcnt(0)""")
    if fused:
        a(f"""s_cmp_eq_u32 s28, 0
        s_cbranch_scc0 {L}_noqp
        s_and_b32 s73, s2, 7
        s_lshl_b32 s73, s73, 1
        s_bfe_u32 s74, s2, 0x10004
        s_add_u32 s73, s73, s74
        s_lshl_b32 s73, s73, 2
        s_xor_b32 s74, s73, 4""")
        p3.poll(a, L, "qkv", [("s73", 16), ("s74", 16), (p3.DBG_ZERO, 1)], base="s[90:91]", tmpv=(22, 24))
        a(f"""{L}_noqp:
        s_barrier
        s_cmp_eq_u32 s28, 0
        s_cbranch_scc0 {L}_noh
        s_lshl_b32 s73, s24, 2
        s_add_u32 s73, s73, {p3.DBG_H}
        s_lshr_b32 s74, s25, 2
        s_lshl_b32 s74, s74, 3
        s_lshl_b32 s74, 1, s74""")
        p3.signal(a, "s73", "s74", tmpv=(22, 23))
        a(f"{L}_noh:\ns_branch {L}_p2")
    else:
        a(f"s_branch {L}_end")


def pack(A, f):
    return [f"v_cvt_pk_bf16_f32 v{A + 4 * f + i}, v{A + 8 * f + 2 * i}, v{A + 8 * f + 2 * i + 1}" for i in range(4)]


def epi_ffn(A, soff, sf):
    it = []
    for f in range(2):
        it += pack(A, f)
        it += [f"v_pk_max_i16 v{A + 4 * f + i}, v{A + 4 * f + i}, 0" for i in range(4)]
        it.append(f"s_add_u32 s29, {soff}, {f * 1024}\nbuffer_store_dwordx4 {r(A + 4 * f)}, v{V_L16}, s[12:15], s29 offen{sf}")
    return it


def epi_qkv(sf):
    Q, K, V, X = ACC[0], ACC[1], ACC[2], ACC[3]
    it = [f"v_mul_f32 v{Q + i}, s47, v{Q + i}" for i in range(16)]
    it += [f"v_mul_f32 v{X + i}, v{V_SC}, v{X + i}" for i in range(16)]
    for f in range(2):
        it += pack(K, f)
        it.append(f"s_add_u32 s29, s46, {f * KV_HEAD}\nbuffer_store_dwordx4 {r(K + 4 * f)}, v{V_L16}, s[12:15], s29 offen{sf}")
    for f in range(2):
        it += pack(Q, f)
        it.append(f"s_add_u32 s29, s45, {f * 65536}\nbuffer_store_dwordx4 {r(Q + 4 * f)}, v{V_L16}, s[12:15], s29 offen{sf}")
    for f in range(2):
        it += pack(V, f)
        it.append(f"buffer_store_dwordx4 {r(V + 4 * f)}, v{V_VT}, s[12:15], s48 offen offset:{640 * f}{sf}")
    T, P = K + 8, Q + 8
    for b in range(2):
        it += [f"v_mov_b32_dpp v{T + i}, v{X + 8 * b + i} quad_perm:[1,0,3,2] row_mask:0xf bank_mask:0xf" for i in range(8)]
        it += [f"v_cvt_pk_bf16_f32 v{P + 4 * b + i}, v{X + 8 * b + 2 * i}, v{X + 8 * b + 2 * i + 1}" for i in range(4)]
        it += [f"v_cvt_pk_bf16_f32 v{X + 8 * b + i}, v{X + 8 * b + i}, v{T + i}" for i in range(8)]
        it += [f"v_cndmask_b32 v{P + 4 * b + i}, v{P + 4 * b + i}, v{V_CONST}, s[50:51]" for i in range(4)]
        it.append(f"s_mov_b64 exec, s[52:53]\nbuffer_store_dwordx4 {r(P + 4 * b)}, v{V_V3}, s[12:15], s48 offen offset:{640 * b}{sf}\ns_mov_b64 exec, -1")
        for g in (2 * b, 2 * b + 1):
            it.append(f"s_mov_b64 exec, s[54:55]\nbuffer_store_dwordx4 {r(X + 4 * g)}, v{V_QK}, s[12:15], 0 offen offset:{32 * g}{sf}\ns_mov_b64 exec, -1")
    return it


def prefetch(a, mode):
    a(f"""s_lshl_b32 s28, s2, 2
    s_and_b32 s29, s26, 3
    s_add_u32 s28, s28, s29
    v_lshlrev_b32 v16, 7, v0""")
    if "q" in mode:
        a(f"""s_mul_i32 s30, s28, {16 * 128}
        s_mov_b32 exec_hi, 0
        s_mov_b32 exec_lo, 0xffff
        buffer_load_dword v14, v16, s[16:19], s30 offen
        s_mov_b64 exec, -1""")
    if "w" in mode:
        a(f"""s_mul_i32 s30, s28, {41 * 128}
        s_mov_b32 exec_hi, 0x1ff
        buffer_load_dword v14, v16, s[20:23], s30 offen
        s_mov_b64 exec, -1""")


def prefetch2_setup(a):
    a(f"""s_load_dwordx2 s[74:75], s[0:1], {KA_W2}
    s_load_dwordx2 s[76:77], s[0:1], {KA_WO}
    s_waitcnt lgkmcnt(0)""")
    a.srd(68, 74, F * D * 2)
    a.srd(76, 76, D * D * 2) if False else None
    a(f"""s_mov_b32 s72, s76
    s_and_b32 s73, s77, 0xffff
    s_mov_b32 s74, {D * D * 2}
    s_mov_b32 s75, 0x20000
    s_lshl_b32 s78, s2, 2
    s_and_b32 s79, s26, 3
    s_add_u32 s78, s78, s79
    s_mul_i32 s79, s78, {6 * 128}
    s_mul_i32 s78, s78, {41 * 128}""")


def prefetch2_issue():
    return ["v_lshlrev_b32 v15, 7, v0",
            "s_mov_b32 exec_hi, 0x1ff\nbuffer_load_dword v14, v15, s[68:71], s78 offen\ns_mov_b64 exec, -1",
            "s_mov_b32 exec_hi, 0\ns_mov_b32 exec_lo, 0x3f\nbuffer_load_dword v14, v15, s[72:75], s79 offen\ns_mov_b64 exec, -1"]


def consumer(a, L, sf, pf="", fused=False):
    if "q" in pf:
        prefetch(a, "q")
    if "2" in pf:
        prefetch2_setup(a)
    t0, t1, t2 = V_T0, V_T0 + 1, V_T0 + 2
    a(f"""v_and_b32 v16, 31, v0
    v_lshrrev_b32 v17, 5, v0
    v_lshlrev_b32 v{V_L16}, 4, v0
    v_and_b32 v18, 15, v0
    v_lshrrev_b32 v19, 2, v18
    v_and_b32 v20, 3, v18
    v_bfe_u32 v21, v0, 4, 1
    v_lshlrev_b32 v22, 3, v17
    v_add_u32 v22, v22, v19""")
    a(f"""v_lshlrev_b32 v23, 6, v22
    v_lshlrev_b32 v24, 3, v20
    v_lshlrev_b32 v25, 5, v21
    v_add3_u32 v{V_AS}, v23, v24, v25
    v_lshlrev_b32 v23, 7, v22
    v_bfe_u32 v26, v19, 1, 1
    v_lshlrev_b32 v26, 6, v26
    v_add3_u32 v23, v23, v24, v25
    v_add_u32 v{V_AD0}, v23, v26
    v_xor_b32 v26, 64, v26
    v_add_u32 v{V_AD1}, v23, v26""")
    a(f"""v_lshlrev_b32 v23, 8, v22
    v_lshlrev_b32 v26, 3, v19
    v_add_u32 v26, v23, v26""") if False else None
    a(f"""v_lshlrev_b32 v23, 8, v22
    v_lshlrev_b32 v26, 3, v19
    v_lshlrev_b32 v27, 2, v21
    v_add_u32 v27, v27, v20""")
    a(f"""v_cmp_lt_u32 vcc, 3, v27
    v_add_u32 v28, 1, v27
    s_nop 0
    v_cndmask_b32 v28, v27, v28, vcc
    v_cmp_eq_u32 vcc, 7, v27
    v_mov_b32 v29, 9
    s_nop 0
    v_cndmask_b32 v28, v28, v29, vcc
    v_xor_b32 v29, v28, v26
    v_lshlrev_b32 v29, 3, v29
    v_add_u32 v{V_AQ}, v23, v29
    v_add_u32 v28, 10, v28
    v_xor_b32 v29, v28, v26
    v_lshlrev_b32 v29, 3, v29
    v_add_u32 v{t0}, v23, v29
    v_add_u32 v28, 20, v27
    v_xor_b32 v29, v28, v26
    v_lshlrev_b32 v29, 3, v29
    v_add_u32 v{V_AV}, v23, v29
    v_mov_b32 v28, 30
    v_cmp_eq_u32 vcc, 0, v27
    v_mov_b32 v29, 29
    s_nop 0
    v_cndmask_b32 v28, v28, v29, vcc
    v_cmp_eq_u32 vcc, 1, v27
    v_mov_b32 v29, 4
    s_nop 0
    v_cndmask_b32 v28, v28, v29, vcc
    v_cmp_eq_u32 vcc, 2, v27
    v_mov_b32 v29, 14
    s_nop 0
    v_cndmask_b32 v28, v28, v29, vcc
    v_xor_b32 v29, v28, v26
    v_lshlrev_b32 v29, 3, v29
    v_add_u32 v{V_AX}, v23, v29""")
    V_AK = t0
    a(f"""v_mul_u32_u24 v23, 320, v17
    v_cmp_lt_u32 vcc, 17, v16
    v_subrev_u32 v24, 18, v16
    v_mov_b32 v25, {KV_HEAD}
    v_cndmask_b32 v24, v16, v24, vcc
    v_cndmask_b32 v25, 0, v25, vcc
    v_lshlrev_b32 v24, 4, v24
    v_add3_u32 v{V_VT}, v23, v24, v25""")
    a(f"""v_add_u32 v24, 14, v16
    v_lshlrev_b32 v24, 4, v24
    v_add_u32 v24, {KV_HEAD}, v24
    v_subrev_u32 v25, 12, v16
    v_and_b32 v26, 1, v25
    v_add_u32 v26, 18, v26
    v_lshlrev_b32 v26, 4, v26
    v_lshrrev_b32 v25, 1, v25
    v_and_b32 v25, 1, v25
    v_mul_u32_u24 v25, {KV_HEAD}, v25
    v_add_u32 v25, v25, v26
    v_cmp_lt_u32 vcc, 3, v16
    s_nop 1
    v_cndmask_b32 v24, v24, v25, vcc
    v_add_u32 v{V_V3}, v23, v24
    v_and_b32 v24, 1, v16
    v_cmp_eq_u32 vcc, 0, v24
    v_mov_b32 v25, 0x3f803f80
    s_nop 0
    v_cndmask_b32 v{V_CONST}, 0, v25, vcc
    s_mov_b32 s50, 0xf000
    s_mov_b32 s51, 0xf000
    s_mov_b32 s52, 0xf00f
    s_mov_b32 s53, 0xf00f
    s_mov_b32 s54, 0x550
    s_mov_b32 s55, 0x550""")
    a(f"""s_lshl_b32 s28, s25, 1
    s_lshl_b32 s29, s28, 13
    s_lshl_b32 s30, s27, 7
    s_add_u32 s29, s29, s30
    s_add_u32 s29, s29, {WS_QF2}
    s_mul_i32 s30, s28, {KV_HEAD}
    s_lshr_b32 s31, s27, 3
    s_mul_i32 s31, s31, {KV_CHUNK}
    s_add_u32 s30, s30, s31
    s_add_u32 s30, s30, {WS_KV}
    s_and_b32 s31, s27, 7
    s_mul_i32 s32, s31, {VT_TILE}
    s_add_u32 s48, s30, s32
    s_add_u32 s48, s48, {KV_VT}
    s_xor_b32 s32, s25, 1
    s_sub_u32 s32, s32, s25
    s_mul_i32 s32, s32, {2 * KV_HEAD}
    s_add_u32 s30, s30, s32
    s_lshl_b32 s32, s31, 10
    s_add_u32 s46, s30, s32
    s_lshl_b32 s32, s31, 7
    s_add_u32 s30, s30, s32
    s_add_u32 s30, s30, {KV_KF2}
    v_bfe_u32 v24, v16, 1, 1
    v_mul_u32_u24 v25, 8192, v24
    v_add_u32 v25, s29, v25
    v_mul_u32_u24 v26, {KV_HEAD}, v24
    v_add_u32 v26, s30, v26
    v_cmp_lt_u32 vcc, 7, v16
    v_lshlrev_b32 v24, 4, v17
    s_nop 0
    v_cndmask_b32 v25, v25, v26, vcc
    v_add_u32 v{V_QK}, v25, v24
    v_cmp_lt_u32 vcc, 3, v16
    v_mov_b32 v25, {fbits(QSCALE)}
    s_nop 0
    v_cndmask_b32 v24, 1.0, v25, vcc
    v_cmp_lt_u32 vcc, 7, v16
    s_nop 1
    v_cndmask_b32 v{V_SC}, v24, 1.0, vcc
    s_mov_b32 s47, {fbits(QSCALE)}
    s_lshl_b32 s45, s28, 16
    s_lshl_b32 s32, s27, 10
    s_add_u32 s45, s45, s32
    s_add_u32 s45, s45, {WS_QF1}
    s_mul_i32 s44, s27, {288 * 1024}
    s_mul_i32 s32, s25, {18 * 1024}
    s_add_u32 s44, s44, s32
    s_add_u32 s44, s44, {WS_HF}
    s_and_b32 s32, s25, 1
    s_cmp_eq_u32 s32, 0
    s_cselect_b32 s33, {16 * 1024}, 0
    s_add_u32 s42, s44, s33
    s_lshl_b32 s32, s32, 11
    s_add_u32 s43, s44, s32""")
    a(f"""s_and_b32 s32, s26, 3
    s_mul_i32 s32, s32, {SLOT}
    v_mul_u32_u24 v23, 1152, v16
    v_add_u32 v23, s32, v23
    v_lshrrev_b32 v24, 1, v16
    v_and_b32 v24, 7, v24""")
    for c4 in range(4):
        a(f"""v_lshlrev_b32 v25, 0, v17
        v_add_u32 v25, {2 * c4}, v25
        v_xor_b32 v25, v25, v24
        v_lshlrev_b32 v25, 4, v25
        v_add_u32 v{28 + c4}, v23, v25""")
    a("s_barrier")
    if "W" in pf:
        prefetch(a, "w" if "q" in pf else "qw")
    TMP = 32
    a("s_mov_b32 s56, 0x3f803f80\ns_mov_b32 s57, 0xffff0000")
    for i in range(8):
        a(f"v_mov_b32 v{TMP + i}, 0")
    dots = []
    for x in range(XB, XB + 144):
        i = x % 4
        dots.append(f"v_dot2_f32_bf16 v{TMP + i}, v{x}, s56, v{TMP + i}")
        dots.append(f"v_dot2_f32_bf16 v{TMP + 4 + i}, v{x}, v{x}, v{TMP + 4 + i}")
    done = 0
    for k in range(36):
        a(f"ds_read_b128 {r(XB + 4 * k)}, v{28 + k % 4} offset:{(k // 4) * 128}")
        if k >= 12:
            a("s_waitcnt lgkmcnt(12)")
            for ins in dots[done:done + 2]:
                a(ins)
            done += 2
    a("s_waitcnt lgkmcnt(0)\ns_barrier")
    for ins in dots[done:]:
        a(ins)
    a(f"""s_nop 2
    v_add_f32 v{TMP}, v{TMP}, v{TMP + 1}
    v_add_f32 v{TMP + 2}, v{TMP + 2}, v{TMP + 3}
    v_add_f32 v{TMP + 4}, v{TMP + 4}, v{TMP + 5}
    v_add_f32 v{TMP + 6}, v{TMP + 6}, v{TMP + 7}
    v_add_f32 v{TMP}, v{TMP}, v{TMP + 2}
    v_add_f32 v{TMP + 4}, v{TMP + 4}, v{TMP + 6}
    v_mov_b32 v{TMP + 1}, v{TMP}
    v_mov_b32 v{TMP + 5}, v{TMP + 4}
    s_nop 1
    v_permlane32_swap_b32 v{TMP}, v{TMP + 1}
    v_permlane32_swap_b32 v{TMP + 4}, v{TMP + 5}
    s_nop 1
    v_add_f32 v{TMP}, v{TMP}, v{TMP + 1}
    v_add_f32 v{TMP + 4}, v{TMP + 4}, v{TMP + 5}
    v_mul_f32 v{TMP}, {fbits(1.0 / 576)}, v{TMP}
    v_mul_f32 v{TMP + 4}, {fbits(1.0 / 576)}, v{TMP + 4}
    v_fma_f32 v{TMP + 4}, -v{TMP}, v{TMP}, v{TMP + 4}
    v_max_f32 v{TMP + 4}, 0, v{TMP + 4}
    v_add_f32 v{TMP + 4}, {fbits(1e-5)}, v{TMP + 4}
    v_rsq_f32 v{TMP + 4}, v{TMP + 4}
    s_nop 0
    v_mul_f32 v{TMP + 6}, v{TMP}, v{TMP + 4}
    v_sub_f32 v{TMP + 6}, 0, v{TMP + 6}""")
    for x in range(XB, XB + 144):
        t = TMP + 8 + 2 * (x % 4)
        a(f"v_lshlrev_b32 v{t}, 16, v{x}")
        a(f"v_and_b32 v{t + 1}, s57, v{x}")
        a(f"v_pk_fma_f32 v[{t}:{t + 1}], v[{t}:{t + 1}], v[{TMP + 4}:{TMP + 5}], v[{TMP + 6}:{TMP + 7}] op_sel_hi:[1,0,0]")
        a(f"v_cvt_pk_bf16_f32 v{x}, v{t}, v{t + 1}")

    steps = []
    pair_acc = {0: (ACC[0], ACC[1]), 1: (ACC[2], ACC[3]), 2: (ACC[0], ACC[1]), 3: (ACC[2], ACC[3])}
    for j in range(NS):
        kind = slot_kind(j)
        if kind[0] == "q":
            for k in range(9):
                xs = kind[1] * 9 + k
                for (reg, acc, tr) in ((V_AQ, ACC[0], False), (V_AK, ACC[1], False), (V_AV, ACC[2], True), (V_AX, ACC[3], True)):
                    steps.append((j, reg, k * 4096, 1024, acc, xs, xs == 0, tr))
        elif kind[0] == "s":
            for k in range(36):
                steps.append((j, V_AS, k * 1024, 256, ACC[4], k, k == 0, False))
        else:
            for k in range(18):
                xs = kind[2] * 18 + k
                for T, reg in enumerate((V_AD0, V_AD1)):
                    steps.append((j, reg, k * 2048, 512, pair_acc[kind[1]][T], xs, xs == 0, False))
    total = len(steps)
    assert total == 36 * NS
    cur_base = {V_AQ: 0, V_AK: 0, V_AV: 0, V_AX: 0, V_AS: 0, V_AD0: 0, V_AD1: 0}

    def reads(g):
        j, reg, off, second, acc, xs, first, tr = steps[g]
        base = (j % NSLOT) * SLOT
        out = []
        if cur_base[reg] != base:
            d = base - cur_base[reg]
            out.append(f"v_add_u32 v{reg}, {d & 0xffffffff:#x}, v{reg}")
            cur_base[reg] = base
        buf = WF[g % 4]
        out.append(f"ds_read_b64_tr_b16 v[{buf}:{buf + 1}], v{reg} offset:{off}")
        out.append(f"ds_read_b64_tr_b16 v[{buf + 2}:{buf + 3}], v{reg} offset:{off + second}")
        return out

    a("s_barrier")
    for g in range(3):
        for ins in reads(g):
            a(ins)
    fill = []
    for g in range(total):
        j, reg, off, second, acc, xs, first, tr = steps[g]
        k = g % 36
        if k == 0 and j == 6 and fused:
            assert PF2_SLOT != 6
            a("s_waitcnt vmcnt(2)")
        if k == 0:
            assert not fill, (j, len(fill))
            if j == 4:
                fill = epi_qkv(sf)
            elif j == 5:
                fill = epi_ffn(ACC[4], "s42", sf)
            elif j == PF2_SLOT and "2" in pf:
                fill = prefetch2_issue()
            elif j >= 7 and (j - 5) % 2 == 0:
                d = (j - 5) // 2 - 1
                fill = []
                for T in range(2):
                    a(f"s_add_u32 s{58 + T}, s43, {(2 * d + T) * 2048}")
                    fill += epi_ffn(pair_acc[d][T], f"s{58 + T}", sf)
        left = min(2, total - 1 - g)
        a(f"s_waitcnt lgkmcnt({2 * left})")
        c = "0" if first else r(acc, 16)
        x = r(XB + 4 * xs)
        w = r(WF[g % 4])
        if tr:
            a(f"v_mfma_f32_32x32x16_bf16 {r(acc, 16)}, {x}, {w}, {c}")
        else:
            a(f"v_mfma_f32_32x32x16_bf16 {r(acc, 16)}, {w}, {x}, {c}")
        if k == 32 and j + 1 < NS:
            a("s_barrier")
        if g + 3 < total:
            for ins in reads(g + 3):
                a(ins)
        if k >= 6 and fill:
            n = -(-len(fill) // (36 - k))
            for _ in range(n):
                a(fill.pop(0))
    a("s_nop 7\ns_nop 7")
    for T in range(2):
        a(f"s_add_u32 s58, s43, {(2 * 3 + T) * 2048}")
        for it in epi_ffn(pair_acc[3][T], "s58", sf):
            a(it)
    a("s_waitcnt vmcnt(0)")
    if fused:
        a("s_barrier")


def p1_body(a, L, mapping="84", sf="", timing=False, pf="qW2", rot=True, pf2slot=8, wb=(), wbwgs=8, fused=False):
    global PF2_SLOT, WB_WGS
    PF2_SLOT = pf2slot
    WB_WGS = wbwgs
    a(f"""s_load_dwordx2 s[4:5], s[0:1], {KA_X}
    s_load_dwordx2 s[6:7], s[0:1], {KA_WS}
    s_load_dwordx2 s[36:37], s[0:1], {KA_WQKV}
    s_load_dwordx2 s[38:39], s[0:1], {KA_W1}""")
    if fused:
        a(f"s_load_dwordx2 s[90:91], s[0:1], {KA_DBG}")
    a("""v_lshrrev_b32 v1, 6, v0
    v_and_b32 v0, 63, v0
    s_and_b32 s28, s2, 7
    v_readfirstlane_b32 s26, v1
    s_lshr_b32 s29, s2, 3""")
    if mapping == "84":
        a("""s_and_b32 s25, s28, 3
        s_lshl_b32 s25, s25, 2
        s_and_b32 s30, s29, 3
        s_add_u32 s25, s25, s30
        s_lshr_b32 s24, s28, 2
        s_lshl_b32 s24, s24, 3
        s_lshr_b32 s30, s29, 2
        s_add_u32 s24, s24, s30""")
    else:
        assert not fused
        a("""s_and_b32 s25, s28, 1
        s_lshl_b32 s25, s25, 3
        s_and_b32 s30, s29, 7
        s_add_u32 s25, s25, s30
        s_lshr_b32 s24, s28, 1
        s_lshl_b32 s24, s24, 2
        s_lshr_b32 s30, s29, 3
        s_add_u32 s24, s24, s30""")
    a("""s_and_b32 s27, s26, 3
    s_lshl_b32 s30, s24, 2
    s_add_u32 s27, s27, s30
    s_waitcnt lgkmcnt(0)""")
    a.srd(8, 4, S * D * 2)
    a.srd(12, 6, WS_END)
    a.srd(16, 36, D * 3 * D * 2)
    a.srd(20, 38, D * F * 2)
    a(f"s_cmp_lt_u32 s26, 4\ns_cbranch_scc1 {L}_consumer")
    loader(a, L, timing, pf, rot, wb, fused)
    a(f"{L}_consumer:")
    consumer(a, L, sf, pf, fused)


def k1_kernel(L="k1_kernel", mapping="84", sf="", timing=False, rt=False, **kw):
    a = Asm()
    if rt:
        rt_stamp_begin(a)
    if timing:
        a("s_memtime s[60:61]\ns_memrealtime s[62:63]")
    a(f"s_cmp_ge_u32 s2, 256\ns_cbranch_scc1 {L}_end")
    p1_body(a, L, mapping, sf, timing, **kw)
    if timing:
        a(f"""s_memtime s[62:63]
        s_load_dwordx2 s[64:65], s[0:1], {KA_DBG}
        s_waitcnt lgkmcnt(0)
        s_sub_u32 s62, s62, s60
        s_lshl_b32 s66, s2, 2
        s_add_u32 s66, s66, s26
        s_lshl_b32 s66, s66, 2
        v_mov_b32 v20, s66
        v_mov_b32 v21, s62
        global_store_dword v20, v21, s[64:65]
        s_waitcnt vmcnt(0)""")
    if rt:
        rt_stamp_end(a, 0, L)
    a(f"{L}_end:\ns_endpgm")
    return kernel_head(L) + a.text() + kernel_desc(L, 256)


K1_LDS = NSLOT * SLOT
```

```python
from asmlib import *
from layout import *
import attn
import p3
from attn import r, fbits

R = 3
W2_SLOT = 46080
W2_BASE = R * KV_CHUNK
K2_LDS = W2_BASE + 2 * W2_SLOT
FACC = 16
WF = [96 + 4 * i for i in range(8)]
HF = [128 + 4 * i for i in range(6)]
V_L16, V_WA0, V_WA1 = 1, 2, 3
V_PAT = [4, 5, 6, 7, 8]
NSTEP = 72
HDIST, WDIST = 4, 4


class Queue:
    def __init__(self):
        self.n = 0
        self.pos = {}

    def issue(self, tag=None):
        self.n += 1
        if tag is not None:
            self.pos[tag] = self.n

    def need(self, tag):
        return self.n - self.pos[tag]


def ffn_role(a, L, sf="", off=(), stamps=False, fused1=False):
    lf = " sc1" if fused1 else ""
    if fused1:
        a("""s_sub_u32 s21, s20, 4
        s_and_b32 s22, s2, 7
        s_lshr_b32 s23, s2, 3
        s_and_b32 s24, s22, 3
        s_lshr_b32 s22, s22, 2
        s_lshl_b32 s22, s22, 3
        s_lshr_b32 s25, s23, 2
        s_add_u32 s22, s22, s25
        s_and_b32 s23, s23, 3
        s_lshl_b32 s22, s22, 2
        s_add_u32 s22, s22, s21""")
    else:
        a(f"""s_sub_u32 s21, s20, 4
        s_and_b32 s22, s2, 7
        s_lshr_b32 s23, s2, 3
        s_lshr_b32 s24, s22, 1
        s_and_b32 s22, s22, 1
        s_lshl_b32 s22, s22, 3
        s_lshr_b32 s25, s23, 2
        s_add_u32 s22, s22, s25
        s_and_b32 s23, s23, 3
        s_lshl_b32 s22, s22, 2
        s_add_u32 s22, s22, s21""")
    a("""s_lshl_b32 s25, s23, 2
    s_lshr_b32 s26, s23, 1
    s_add_u32 s25, s25, s26""")
    a.srd(8, 6, KV_BYTES, WS_KV)
    a.srd(12, 6, HF_BYTES, WS_HF)
    a.srd(48, 36, F * D * 2)
    a.srd(32, 6, 4 * 64 * 18 * 2048, WS_PART)
    a(f"""v_lshlrev_b32 v{V_L16}, 4, v0
    s_mul_i32 s38, s16, {KV_HEAD}
    s_mul_i32 s39, s21, {5 * 1024}
    s_add_u32 s38, s38, s39
    s_mul_i32 s40, s24, {1152 * 1152}
    s_mul_i32 s41, s21, {36 * 1152}
    s_add_u32 s40, s40, s41
    s_lshl_b32 s41, s25, 6
    s_add_u32 s40, s40, s41
    s_mul_i32 s41, s21, {36 * 320}
    s_add_u32 s41, s41, {W2_BASE}
    s_mul_i32 s42, s22, {288 * 1024}
    s_mul_i32 s43, s24, {72 * 1024}
    s_add_u32 s42, s42, s43""")
    a("s_movk_i32 s43, 3277\ns_movk_i32 s44, 1152")
    for n in range(5):
        a(f"""v_add_u32 v10, {64 * n}, v0
        v_mul_u32_u24 v11, s43, v10
        v_lshrrev_b32 v11, 16, v11
        v_mul_u32_u24 v12, 20, v11
        v_sub_u32 v12, v10, v12
        v_lshlrev_b32 v12, 4, v12
        v_mad_u32_u24 v{V_PAT[n]}, v11, s44, v12""")
    vq = Queue()

    def kv_piece(c, i):
        a(f"s_add_u32 m0, s39, {(c % R) * KV_CHUNK + i * 1024}")
        a(f"s_add_u32 s29, s38, {c * KV_CHUNK + i * 1024}")
        a(f"buffer_load_dwordx4 v{V_L16}, s[8:11], s29 offen{lf} lds")
        vq.issue(("kv", c))

    def w2_piece(p, n):
        a(f"s_add_u32 m0, s41, {(p % 2) * W2_SLOT + n * 1024}")
        a(f"s_add_u32 s29, s40, {(p * 144 + (n // 5) * 16) * 1152}")
        if n == 11:
            a("s_mov_b64 exec, 0xffff")
        a(f"buffer_load_dwordx4 v{V_PAT[n % 5]}, s[48:51], s29 offen lds")
        if n == 11:
            a("s_mov_b64 exec, -1")
        vq.issue(("w2", p))

    def h_load(k):
        a(f"s_add_u32 s29, s42, {k * 1024}")
        a(f"buffer_load_dwordx4 {r(HF[k % len(HF)])}, v{V_L16}, s[12:15], s29 offen{lf}")
        vq.issue(("h", k))

    for i in range(5):
        kv_piece(0, i)
    for n in range(12):
        w2_piece(0, n)
    if not fused1:
        for k in range(HDIST):
            h_load(k)
    else:
        a(f"v_mov_b32 v10, {K2_LDS}\nv_mov_b32 v11, 0\nds_write_b32 v10, v11")
    a(f"""v_and_b32 v10, 15, v0
    v_lshrrev_b32 v11, 2, v10
    v_lshrrev_b32 v12, 5, v0
    v_lshlrev_b32 v12, 2, v12
    v_add_u32 v11, v11, v12
    v_mul_u32_u24 v11, 320, v11
    v_and_b32 v12, 3, v10
    v_lshlrev_b32 v12, 3, v12
    v_bfe_u32 v13, v0, 4, 1
    v_lshlrev_b32 v13, 5, v13
    v_add3_u32 v11, v11, v12, v13
    v_add_u32 v{V_WA0}, {W2_BASE}, v11
    v_add_u32 v{V_WA1}, {W2_BASE + W2_SLOT}, v11""")
    def stamp(lane):
        if stamps:
            a(f"s_memtime s[52:53]\ns_waitcnt lgkmcnt(0)\ns_sub_u32 s52, s52, s60\nv_writelane_b32 v156, s52, {lane}")
    if stamps:
        a("v_mov_b32 v156, 0")
    stamp(34)
    a(f"s_waitcnt vmcnt({min(vq.need(('kv', 0)), vq.need(('w2', 0)))})")
    stamp(32)
    if fused1:
        a("s_waitcnt lgkmcnt(0)")
    a("s_barrier")
    stamp(33)
    if fused1:
        a(f"""s_cmp_eq_u32 s21, 0
        s_cbranch_scc0 {L}_hspin
        s_lshr_b32 s73, s22, 2
        s_lshl_b32 s73, s73, 2
        s_add_u32 s73, s73, {p3.DBG_H}
        s_lshl_b32 s74, s24, 3""")
        p3.poll(a, L, "h", [("s73", 4, "s74")], base="s[90:91]", tmpv=(12, 13), sleep=4)
        a(f"""v_mov_b32 v10, {K2_LDS}
        v_mov_b32 v11, 1
        ds_write_b32 v10, v11
        s_waitcnt lgkmcnt(0)
        s_branch {L}_hok
        {L}_hspin:
        v_mov_b32 v10, {K2_LDS}
        s_mov_b32 s94, {1 << 20}
        {L}_hspin2:
        ds_read_b32 v11, v10
        s_waitcnt lgkmcnt(0)
        v_readfirstlane_b32 s95, v11
        s_sub_u32 s94, s94, 1
        s_cmp_eq_u32 s94, 0
        s_cbranch_scc1 {L}_hok
        s_cmp_eq_u32 s95, 1
        s_cbranch_scc1 {L}_hok
        s_sleep 1
        s_branch {L}_hspin2
        {L}_hok:""")
        vq.n += 0
        for k in range(HDIST):
            h_load(k)

    units = [(k, t) for k in range(NSTEP) for t in range(5)]
    lq = Queue()

    def w_reads(g):
        k, t = units[g]
        p, kk = divmod(k, 9)
        ad = V_WA0 if p % 2 == 0 else V_WA1
        buf = WF[g % len(WF)]
        if "read" in off:
            lq.issue(); lq.issue(g)
            return
        a(f"ds_read_b64_tr_b16 v[{buf}:{buf + 1}], v{ad} offset:{kk * 5120 + t * 64}")
        lq.issue()
        a(f"ds_read_b64_tr_b16 v[{buf + 2}:{buf + 3}], v{ad} offset:{kk * 5120 + t * 64 + 2560}")
        lq.issue(g)

    nread = 0
    todo = []
    for g, (k, t) in enumerate(units):
        p, kk = divmod(k, 9)
        if kk == 0 and t == 0:
            todo = []
            if p + 1 < 8:
                todo = [("kv", p + 1, i) for i in range(5)] + [("w2", p + 1, n) for n in range(12)]
            while nread < g + WDIST:
                w_reads(nread)
                nread += 1
        if t == 0:
            a(f"s_waitcnt vmcnt({vq.need(('h', k))})")
        a(f"s_waitcnt lgkmcnt({lq.need(g)})")
        acc = FACC + 16 * t
        c = "0" if k == 0 else r(acc, 16)
        if "mfma" not in off:
            a(f"v_mfma_f32_32x32x16_bf16 {r(acc, 16)}, {r(WF[g % len(WF)])}, {r(HF[k % len(HF)])}, {c}")
        nxt = g + WDIST
        if nxt < len(units) and units[nxt][0] // 9 == p and nread <= nxt:
            w_reads(nread)
            nread += 1
        if t == 4 and k + HDIST < NSTEP:
            h_load(k + HDIST)
        if t in (0, 2) and todo:
            item = todo.pop(0)
            if item[0] == "kv":
                kv_piece(item[1], item[2])
            else:
                w2_piece(item[1], item[2])
        if kk == 8 and t == 4:
            assert not todo
            stamp(40 + p)
            if p + 1 < 8:
                need = [vq.need(("w2", p + 1)), vq.need(("kv", p + 1))]
                a(f"s_waitcnt vmcnt({min(need)})")
            stamp(p)
            a("s_barrier")
            stamp(16 + p)
    a(f"""s_nop 7
    s_nop 7
    s_mul_i32 s43, s24, {64 * 18 * 2048}
    s_mul_i32 s44, s22, {18 * 2048}
    s_add_u32 s43, s43, s44
    s_lshl_b32 s44, s25, 11
    s_add_u32 s43, s43, s44
    s_and_b32 s44, s23, 1""")
    for t in range(5):
        A = FACC + 16 * t
        if t == 0:
            a(f"s_cmp_eq_u32 s44, 1\ns_cbranch_scc1 {L}_skip0")
        for f in range(2):
            for i in range(4):
                a(f"v_cvt_pk_bf16_f32 v{A + 4 * f + i}, v{A + 8 * f + 2 * i}, v{A + 8 * f + 2 * i + 1}")
            a(f"s_add_u32 s29, s43, {t * 2048 + f * 1024}")
            a(f"buffer_store_dwordx4 {r(A + 4 * f)}, v{V_L16}, s[32:35], s29 offen{sf}")
        if t == 0:
            a(f"{L}_skip0:")
    if stamps:
        a(f"""s_load_dwordx2 s[54:55], s[0:1], {KA_DBG}
        s_lshl_b32 s56, s2, 3
        s_add_u32 s56, s56, s20
        s_lshl_b32 s56, s56, 8
        s_add_u32 s56, s56, 8192
        v_lshlrev_b32 v157, 2, v0
        v_add_u32 v157, s56, v157
        s_waitcnt lgkmcnt(0)
        global_store_dword v157, v156, s[54:55]""")
    a("s_waitcnt vmcnt(0)")


def p2_body(a, L, timing=False, prio=None, fprio=None, sf="", off=(), fuse3=False, fused1=False):
    attn.head_and_block(a, "s2")
    a(f"s_waitcnt lgkmcnt(0)\ns_cmp_lt_u32 s20, 4\ns_cbranch_scc1 {L}_attn")
    if fprio is not None:
        a(f"s_setprio {fprio}")
    ffn_role(a, L, sf, off, timing, fused1)
    a(f"s_branch {L}_fin\n{L}_attn:")
    if "attn" in off:
        for i in range(9):
            a("s_barrier")
    else:
        attn.attn_role(a, L, R, False, prio=prio, sf=sf, stamps=timing, lf=" sc1" if fused1 else "")
    a(f"{L}_fin:")
    if timing:
        attn.timing_store(a, "s60", "s20")
    if fuse3:
        a(f"""s_barrier
        s_cmp_eq_u32 s20, 4
        s_cbranch_scc0 {L}_nosig
        s_add_u32 s92, s6, {WS_CNT}
        s_addc_u32 s93, s7, 0
        s_add_u32 s54, s17, {p3.CNT_O}
        s_lshl_b32 s54, s54, 7
        s_lshr_b32 s55, s22, 2
        s_add_u32 s55, s55, {p3.CNT_PART}
        s_lshl_b32 s55, s55, 7
        v_mov_b32 v2, s54
        v_mov_b32 v3, s55
        v_mov_b32 v4, 1
        s_mov_b64 exec, 1
        global_atomic_add v2, v4, s[92:93] sc1
        global_atomic_add v3, v4, s[92:93] sc1
        s_mov_b64 exec, -1
        {L}_nosig:""")
        p3.p3_body(a, L, "s20", True, "", " sc1")


def k2_kernel(L="k2_kernel", timing=False, prio=None, fprio=None, sf="", off=(), rt=False, pattern="E", vzero=True, fuse3=False):
    attn.PATTERN = pattern
    attn.VZERO = vzero
    if fuse3:
        sf = " sc1"
    a = Asm()
    if rt:
        rt_stamp_begin(a)
    if timing:
        a("s_memtime s[60:61]")
    a(f"""s_cmp_ge_u32 s2, 256
    s_cbranch_scc1 {L}_end
    s_load_dwordx2 s[6:7], s[0:1], {KA_WS}
    s_load_dwordx2 s[36:37], s[0:1], {KA_W2}
    v_lshrrev_b32 v5, 6, v0
    v_and_b32 v0, 63, v0
    s_nop 0
    v_readfirstlane_b32 s20, v5""")
    p2_body(a, L, timing, prio, fprio, sf, off, fuse3)
    if rt:
        a("s_waitcnt vmcnt(0)")
        rt_stamp_end(a, 1, L)
    a(f"{L}_end:\ns_endpgm")
    return kernel_head(L) + a.text() + kernel_desc(L, 256 if fuse3 else 160)
```

```python
from asmlib import *
from layout import *
from attn import r, fbits

WO_IMG = 576 * 128
P3_LDS = WO_IMG + 3 * 4096
NPART = 4
OFB = 112
ACC = (16, 32)
RING = [48 + 4 * i for i in range(8)]
EM = (80, 84)
XR = 88
CNT_O, CNT_PART = 0, 8


class Queue:
    def __init__(self):
        self.n = 0
        self.pos = {}

    def issue(self, tag=None):
        self.n += 1
        if tag is not None:
            self.pos[tag] = self.n

    def need(self, tag):
        return self.n - self.pos[tag]


DBG_QKV, DBG_ZERO, DBG_H = 0, 64, 128


def poll(a, L, tag, conds, base="s[92:93]", tmpv=(2, 3), limit=1 << 16, sleep=8):
    va, vd = tmpv
    a(f"s_mov_b32 s94, {limit}\n{L}_poll_{tag}:")
    for n, c in enumerate(conds):
        a(f"v_mov_b32 v{va}, {c[0]}\nglobal_load_dword v{vd + n}, v{va}, {base} sc1")
    a("s_waitcnt vmcnt(0)")
    for n, c in enumerate(conds):
        a(f"v_readfirstlane_b32 s95, v{vd + n}\ns_nop 0")
        if len(c) > 2:
            a(f"s_lshr_b32 s95, s95, {c[2]}\ns_and_b32 s95, s95, 0xff")
        a(f"s_cmp_ge_u32 s95, {c[1]}\ns_cbranch_scc0 {L}_again_{tag}")
    a(f"""s_branch {L}_ok_{tag}
    {L}_again_{tag}:
    s_sub_u32 s94, s94, 1
    s_cmp_eq_u32 s94, 0
    s_cbranch_scc1 {L}_ok_{tag}
    s_sleep {sleep}
    s_branch {L}_poll_{tag}
    {L}_ok_{tag}:""")


def signal(a, off, inc, base="s[90:91]", tmpv=(2, 3)):
    a(f"""v_mov_b32 v{tmpv[0]}, {off}
    v_mov_b32 v{tmpv[1]}, {inc}
    s_mov_b64 exec, 1
    global_atomic_add v{tmpv[0]}, v{tmpv[1]}, {base} sc1
    s_mov_b64 exec, -1""")


def p3_body(a, L, wave="s20", fused=False, sf="", lf=""):
    a(f"""s_load_dwordx2 s[4:5], s[0:1], {KA_X}
    s_load_dwordx2 s[6:7], s[0:1], {KA_WS}
    s_load_dwordx2 s[36:37], s[0:1], {KA_WO}
    s_load_dwordx2 s[38:39], s[0:1], {KA_OUT}
    s_and_b32 s16, s2, 7
    s_lshr_b32 s17, s2, 3
    s_mul_i32 s18, s16, 63
    s_add_u32 s18, s18, 1
    s_lshr_b32 s18, s18, 1
    s_add_u32 s19, s16, 1
    s_mul_i32 s19, s19, 63
    s_add_u32 s19, s19, 1
    s_lshr_b32 s19, s19, 1
    s_add_u32 s18, s18, s17
    s_cmp_ge_u32 s18, s19
    s_cbranch_scc1 {L}_p3end""")
    a(f"""s_mul_i32 s21, s18, 7282
    s_lshr_b32 s21, s21, 16
    s_mul_i32 s22, s21, 9
    s_sub_u32 s22, s18, s22
    s_mul_i32 s23, s21, 3
    s_lshl_b32 s24, s21, 1
    s_add_u32 s24, s24, 8
    s_cmp_lt_u32 s21, 8
    s_cselect_b32 s23, s23, s24
    s_cselect_b32 s25, 3, 2
    v_lshrrev_b32 v2, 3, v0
    s_movk_i32 s27, 1152
    v_mul_lo_u32 v3, v2, s27
    v_bfe_u32 v4, v0, 4, 1
    v_bfe_u32 v5, v0, 2, 1
    v_xor_b32 v4, v4, v5
    v_lshlrev_b32 v4, 6, v4
    v_and_b32 v5, 3, v0
    v_lshlrev_b32 v5, 4, v5
    v_add3_u32 v3, v3, v4, v5
    v_lshlrev_b32 v1, 4, v0
    s_lshl_b32 s28, s22, 7
    s_mul_i32 s29, {wave}, {9 * 8 * 1152}
    s_add_u32 s28, s28, s29
    s_mul_i32 s30, {wave}, {9 * 1024}
    s_add_u32 s26, s23, {wave}
    s_waitcnt lgkmcnt(0)""")
    a.srd(44, 36, D * D * 2)
    vq = Queue()
    for q in range(9):
        a(f"s_add_u32 m0, s30, {q * 1024}\ns_add_u32 s29, s28, {q * 8 * 1152}")
        a("buffer_load_dwordx4 v3, s[44:47], s29 offen lds")
        vq.issue(("wo", q))
    a(f"s_cmp_ge_u32 {wave}, s25\ns_cbranch_scc1 {L}_p3idle")
    a.srd(12, 6, OF_BYTES, WS_OF)
    a.srd(8, 4, S * D * 2)
    a.srd(40, 6, NPART * 64 * 18 * 2048, WS_PART)
    a.srd(48, 38, S * D * 2)
    a(f"""s_lshl_b32 s31, {wave}, 12
    s_add_u32 s31, s31, {WO_IMG}
    s_mul_i32 s32, s26, {32 * 1152}
    s_lshl_b32 s34, s22, 7
    s_add_u32 s32, s32, s34
    s_mul_i32 s35, s26, {18 * 2048}
    s_lshl_b32 s34, s22, 12
    s_add_u32 s35, s35, s34
    s_mul_i32 s33, s26, {36 * 1024}
    v_lshrrev_b32 v6, 1, v2
    v_and_b32 v7, 7, v0""")
    for q in range(4):
        a(f"""v_add_u32 v8, {4 * q}, v6
        v_and_b32 v8, 7, v8
        v_xor_b32 v8, v8, v7
        v_lshlrev_b32 v8, 4, v8
        v_mad_u32_u24 v8, v2, s27, v8
        s_add_u32 m0, s31, {q * 1024}
        s_add_u32 s29, s32, {q * 8 * 1152}
        buffer_load_dwordx4 v8, s[8:11], s29 offen lds""")
        vq.issue(("x", q))
    a(f"""v_and_b32 v2, 15, v0
    v_lshrrev_b32 v3, 2, v2
    v_and_b32 v4, 3, v2
    v_lshlrev_b32 v4, 3, v4
    v_bfe_u32 v5, v0, 4, 1
    v_lshlrev_b32 v5, 5, v5
    v_add_u32 v4, v4, v5
    v_lshrrev_b32 v5, 5, v0
    v_lshrrev_b32 v6, 1, v3
    v_lshlrev_b32 v7, 6, v6
    v_lshlrev_b32 v8, 2, v5
    v_add_u32 v9, v8, v3
    v_lshlrev_b32 v9, 7, v9
    v_add3_u32 v10, v9, v4, v7
    v_xor_b32 v7, 64, v7
    v_add3_u32 v11, v9, v4, v7
    v_xor_b32 v7, 64, v7
    v_add_u32 v9, v8, v6
    v_mul_u32_u24 v9, 18, v9
    v_and_b32 v3, 1, v3
    v_add3_u32 v9, v9, v3, 16
    v_lshlrev_b32 v9, 7, v9
    v_add3_u32 v12, v9, v4, v7
    v_xor_b32 v7, 64, v7
    v_add3_u32 v13, v9, v4, v7
    v_add_u32 v14, {16 * 2304}, v10
    v_add_u32 v15, {16 * 2304}, v11""")
    a("""v_and_b32 v2, 31, v0
    v_lshrrev_b32 v3, 5, v0
    v_lshlrev_b32 v3, 2, v3
    v_sub_u32 v2, v2, v3
    v_mov_b32 v4, 0x3f80
    v_mov_b32 v5, 0x3f800000""")
    for f in range(2):
        for d in range(4):
            i0 = 2 * d
            n0 = 16 * f + (i0 & 3) + 8 * (i0 >> 2)
            a(f"""v_cmp_eq_u32 vcc, {n0}, v2
            v_cmp_eq_u32 s[52:53], {n0 + 1}, v2
            s_nop 0
            v_cndmask_b32 v6, 0, v4, vcc
            v_cndmask_b32 v7, 0, v5, s[52:53]
            v_or_b32 v{EM[f] + d}, v6, v7""")
    if fused:
        a(f"""s_cmp_eq_u32 {wave}, 0
        s_cbranch_scc0 {L}_p3nopoll
        s_add_u32 s92, s6, {WS_CNT}
        s_addc_u32 s93, s7, 0
        s_add_u32 s58, s23, s25
        s_sub_u32 s58, s58, 1
        s_lshr_b32 s54, s23, 3
        s_lshl_b32 s54, s54, 7
        s_lshr_b32 s55, s58, 3
        s_lshl_b32 s55, s55, 7
        s_lshr_b32 s56, s23, 2
        s_add_u32 s56, s56, {CNT_PART}
        s_lshl_b32 s56, s56, 7
        s_lshr_b32 s57, s58, 2
        s_add_u32 s57, s57, {CNT_PART}
        s_lshl_b32 s57, s57, 7""")
        poll(a, L, "p3", [("s54", 32), ("s55", 32), ("s56", 16), ("s57", 16)], tmpv=(2, 4))
        a(f"{L}_p3nopoll:\ns_waitcnt vmcnt(0)\ns_barrier")
        vq = Queue()
        vq.pos = {("wo", 8): 0, ("x", 3): 0}
    for k in range(36):
        a(f"s_add_u32 s29, s33, {k * 1024}")
        a(f"buffer_load_dwordx4 {r(OFB + 4 * k)}, v1, s[12:15], s29 offen{lf}")
        vq.issue(("of", k))
    if not fused:
        a(f"s_waitcnt vmcnt({min(63, vq.need(('wo', 8)))})\ns_barrier")
    first = [True, True]

    def mm(T, A, B):
        c = "0" if first[T] else r(ACC[T], 16)
        first[T] = False
        a(f"v_mfma_f32_32x32x16_bf16 {r(ACC[T], 16)}, {A}, {B}, {c}")
    units = [(j, T) for j in range(36) for T in range(2)]
    lq = Queue()

    def wread(g):
        j, T = units[g]
        buf = RING[g % 8]
        if j < 32:
            sw = T ^ (j & 1)
            reg = (10 + sw) if j < 16 else (14 + sw)
            off = (j % 16) * 2304
            second = 1024
        else:
            reg = 12 + T
            off = (j - 32) * 18432
            second = 4608
        a(f"ds_read_b64_tr_b16 v[{buf}:{buf + 1}], v{reg} offset:{off}")
        lq.issue()
        a(f"ds_read_b64_tr_b16 v[{buf + 2}:{buf + 3}], v{reg} offset:{off + second}")
        lq.issue(g)
    late = [(t, T, f) for t in range(NPART) for T in range(2) for f in range(2)]
    for g in range(5):
        wread(g)
    for g, (j, T) in enumerate(units):
        if T == 0:
            a(f"s_waitcnt vmcnt({min(63, vq.need(('of', j)))})")
        a(f"s_waitcnt lgkmcnt({lq.need(g)})")
        mm(T, r(RING[g % 8]), r(OFB + 4 * j))
        if g + 5 < len(units):
            wread(g + 5)
        if T == 1 and 2 <= j < 2 + len(late):
            t, TT, f = late[j - 2]
            a(f"s_add_u32 s29, s35, {t * 64 * 18 * 2048 + TT * 2048 + f * 1024}")
            a(f"buffer_load_dwordx4 {r(OFB + 4 * (j - 2))}, v1, s[40:43], s29 offen{lf}")
            vq.issue(("p", t, TT, f))
    a(f"""v_and_b32 v2, 31, v0
    v_lshrrev_b32 v3, 1, v2
    v_and_b32 v3, 7, v3
    v_lshlrev_b32 v2, 7, v2
    v_lshrrev_b32 v4, 5, v0
    v_lshlrev_b32 v4, 3, v4
    v_add3_u32 v2, v2, v4, s31""")
    for T in range(2):
        for f in range(2):
            for piece in range(2):
                c = 4 * T + 2 * f + piece
                d = XR + 8 * T + 4 * f + 2 * piece
                a(f"v_xor_b32 v5, {c}, v3\nv_lshlrev_b32 v5, 4, v5\nv_add_u32 v5, v5, v2")
                a(f"ds_read_b64 v[{d}:{d + 1}], v5")
    for n, (t, T, f) in enumerate(late):
        a(f"s_waitcnt vmcnt({vq.need(('p', t, T, f))})")
        mm(T, r(EM[f]), r(OFB + 4 * n))
    a("s_waitcnt lgkmcnt(0)")
    for T in range(2):
        for f in range(2):
            mm(T, r(EM[f]), r(XR + 8 * T + 4 * f))
    a("s_nop 7\ns_nop 7")
    for T in range(2):
        A = ACC[T]
        for g in range(4):
            a(f"v_cvt_pk_bf16_f32 v{A + 2 * g}, v{A + 4 * g}, v{A + 4 * g + 1}")
            a(f"v_cvt_pk_bf16_f32 v{A + 2 * g + 1}, v{A + 4 * g + 2}, v{A + 4 * g + 3}")
        for g in range(4):
            c = 4 * T + g
            a(f"v_xor_b32 v5, {c}, v3\nv_lshlrev_b32 v5, 4, v5\nv_add_u32 v5, v5, v2")
            a(f"ds_write_b64 v5, v[{A + 2 * g}:{A + 2 * g + 1}]")
    a(f"""v_lshrrev_b32 v2, 3, v0
    v_lshrrev_b32 v6, 1, v2
    v_and_b32 v7, 7, v0
    v_add_u32 v9, s31, v1
    s_waitcnt lgkmcnt(0)""")
    for q in range(4):
        a(f"ds_read_b128 {r(48 + 4 * q)}, v9 offset:{q * 1024}")
    for q in range(4):
        a(f"""v_add_u32 v8, {4 * q}, v6
        v_and_b32 v8, 7, v8
        v_xor_b32 v8, v8, v7
        v_lshlrev_b32 v8, 4, v8
        v_mad_u32_u24 v8, v2, s27, v8
        s_add_u32 s29, s32, {q * 8 * 1152}
        s_waitcnt lgkmcnt({3 - q})
        buffer_store_dwordx4 {r(48 + 4 * q)}, v8, s[48:51], s29 offen{sf}""")
    a(f"s_branch {L}_p3end\n{L}_p3idle:\ns_waitcnt vmcnt(0)\ns_barrier\n{L}_p3end:")


def k3_kernel(L="k3_kernel", timing=False, sf="", rt=False, lf=""):
    a = Asm()
    if rt:
        rt_stamp_begin(a)
    a(f"""s_cmp_ge_u32 s2, 256
    s_cbranch_scc1 {L}_end
    v_lshrrev_b32 v1, 6, v0
    v_and_b32 v0, 63, v0
    s_nop 0
    v_readfirstlane_b32 s20, v1
    s_nop 3""")
    p3_body(a, L, "s20", False, sf, lf)
    if rt:
        a("s_waitcnt vmcnt(0)")
        rt_stamp_end(a, 2, L)
    a(f"{L}_end:\ns_endpgm")
    return kernel_head(L) + a.text() + kernel_desc(L, 256)


K3_LDS = P3_LDS
K3_BLOCK = 512
```

```python
import sys
sys.path.insert(0, "gen")
import build
kind, out = sys.argv[1], sys.argv[2]
if kind == "fused":
    src, _ = build.build(fused={})
elif kind == "f23":
    src, _ = build.build(k2kw=dict(fuse3=True))
else:
    src, _ = build.build()
open(out, "w").write(src)
print(out, len(src))
```

```python
NAME = "parallel_sum__softmax_full_mha__dense_activation_relu__prompt"

KA_X, KA_WQKV, KA_WO, KA_BX, KA_W1, KA_W2, KA_OUT, KA_DBG, KA_WS = 0, 8, 16, 24, 32, 40, 48, 56, 64

LAYOUT_COMMENT = """; Kernarg layout for this problem (72 bytes, ptrs only, base s[0:1]):
"""


class Asm:
    def __init__(self):
        self.lines = []

    def __call__(self, s=""):
        for ln in s.split("\n"):
            ln = ln.strip()
            if ln:
                self.lines.append(("" if ln.endswith(":") else "    ") + ln)
        return self

    def text(self):
        return "\n".join(self.lines) + "\n"

    def srd(self, dst, ptr, nbytes, offset=0):
        if offset:
            self(f"s_add_u32 s{dst}, s{ptr}, {offset}")
            self(f"s_addc_u32 s{dst + 1}, s{ptr + 1}, 0")
            self(f"s_and_b32 s{dst + 1}, s{dst + 1}, 0xffff")
        else:
            self(f"s_mov_b32 s{dst}, s{ptr}")
            self(f"s_and_b32 s{dst + 1}, s{ptr + 1}, 0xffff")
        self(f"s_mov_b32 s{dst + 2}, {nbytes}")
        self(f"s_mov_b32 s{dst + 3}, 0x20000")


def kernel_head(label):
    return f".globl {label}\n.p2align 8\n.type {label},@function\n{label}:\n"


def kernel_desc(label, vgpr, sgpr=102, accum=None, wg_y=False):
    accum = accum if accum is not None else min(256, (vgpr + 3) // 4 * 4)
    y = "  .amdhsa_system_sgpr_workgroup_id_y 1\n" if wg_y else ""
    return f""".section .rodata,"a"
.p2align 6
.amdhsa_kernel {label}
  .amdhsa_next_free_vgpr {vgpr}
  .amdhsa_next_free_sgpr {sgpr}
  .amdhsa_accum_offset {accum}
  .amdhsa_group_segment_fixed_size 0
  .amdhsa_kernarg_size 72
  .amdhsa_user_sgpr_count 2
  .amdhsa_user_sgpr_kernarg_segment_ptr 1
  .amdhsa_system_sgpr_workgroup_id_x 1
{y}.end_amdhsa_kernel
.text
"""


def file_head(launches):
    s = LAYOUT_COMMENT
    for (label, g, b, lds) in launches:
        s += f"; @launch kernel={label} grid=({g[0]},{g[1]},{g[2]}) block=({b[0]},{b[1]},{b[2]}) lds={lds}\n"
    s += '.amdgcn_target "amdgcn-amd-amdhsa--gfx950"\n.text\n'
    return s


def rt_stamp_begin(a):
    a("s_memrealtime s[80:81]\ns_memtime s[82:83]")


def rt_stamp_end(a, kidx, L):
    a(f"""s_memrealtime s[84:85]
    s_memtime s[86:87]
    s_load_dwordx2 s[88:89], s[0:1], {KA_DBG}
    s_waitcnt lgkmcnt(0)
    s_sub_u32 s86, s86, s82
    s_lshl_b32 s90, s2, 4
    s_add_u32 s90, s90, {600000 + kidx * 4096}
    v_mov_b32 v2, s90
    v_mov_b32 v4, s80
    v_mov_b32 v5, s84
    v_mov_b32 v6, s86
    v_mov_b32 v7, s81
    global_store_dwordx4 v2, v[4:7], s[88:89]
    s_waitcnt vmcnt(0)""")


PHASE_STAMPS = False


def phase_stamp(a, idx, wave_sgpr, wave=4, L="", tmp=254):
    if not PHASE_STAMPS:
        return
    lab = f"{L}_ps{idx}_{wave}"
    a(f"""s_cmp_eq_u32 {wave_sgpr}, {wave}
    s_cbranch_scc0 {lab}
    s_memrealtime s[96:97]
    s_load_dwordx2 s[98:99], s[0:1], {KA_DBG}
    s_lshl_b32 s100, s2, 8
    s_add_u32 s100, s100, {700000 + idx * 4}
    s_waitcnt lgkmcnt(0)
    v_mov_b32 v{tmp}, s100
    v_mov_b32 v{tmp + 1}, s96
    global_store_dword v{tmp}, v{tmp + 1}, s[98:99]
    {lab}:""")
```

```python
import struct
from asmlib import *
from layout import *


def fbits(x):
    return hex(struct.unpack("<I", struct.pack("<f", x))[0])


QA1, QA2, QB1, QB2 = 8, 12, 16, 20
KF1 = (24, 32)
KF2 = (28, 36)
VF = ((40, 44), (48, 52))
PA, PB = 56, 64
SA, SB = 72, 88
OA, OB = 104, 120
T0 = 136
V_DMA, V_K1, V_K2, V_V = 1, 2, 3, 4
NVGPR = 144


def r(base, n=4):
    return f"v[{base}:{base + n - 1}]"


def mf(d, a, b, c):
    cs = "0" if c is None else r(c, 16)
    return f"v_mfma_f32_32x32x16_bf16 {r(d, 16)}, {r(a)}, {r(b)}, {cs}"


PATTERN = "E"
VZERO = True


def phase(a, Sx, Px, Sprev, Pprev, pv, sm, extra):
    e = lambda i: f"v_exp_f32 v{Sx + i}, v{Sx + i}"
    c = lambda i: f"v_cvt_pk_bf16_f32 v{Px + i}, v{Sx + 2 * i}, v{Sx + 2 * i + 1}"
    cp = f"v_cvt_pk_bf16_f32 v{Pprev + 7}, v{Sprev + 14}, v{Sprev + 15}"
    x0, x1 = extra.get(0, []), extra.get(1, [])
    if PATTERN == "A":
        seq = ([pv[0]] + x0 + [cp, e(0), e(1), e(2), c(0), e(3), sm[0]] + x1 + [e(4), c(1), e(5), e(6), c(2), e(7), sm[1],
               e(8), c(3), e(9), e(10), c(4), e(11), pv[1], e(12), c(5), e(13), e(14), c(6), e(15)])
    elif PATTERN == "B":
        seq = ([pv[0]] + (x0 or ["s_nop 0"]) + [cp, e(0), e(1), pv[1]] + x1 + [e(2), e(3), c(0), e(4), c(1), e(5), e(6), c(2), e(7),
               sm[0], e(8), e(9), e(10), sm[1], c(3), e(11), c(4), e(12), e(13), c(5), e(14), e(15), c(6)])
    elif PATTERN == "E":
        seq = ([pv[0]] + (x0 or ["s_nop 0"]) + [cp, e(0), e(1), pv[1]] + x1 + [e(2), e(3), c(0), e(4), c(1), e(5), sm[0],
               e(6), c(2), e(7), e(8), c(3), e(9), e(10), sm[1], c(4), e(11), e(12), c(5), e(13), e(14), c(6), e(15)])
    last = max(i for i, x in enumerate(seq) if x == sm[1])
    assert (len(seq) - 1 - last) + 4 >= 12, (PATTERN, len(seq) - 1 - last)
    for ins in seq:
        a(ins)


def head_and_block(a, wgid):
    a(f"""s_and_b32 s16, {wgid}, 7
    s_lshr_b32 s17, {wgid}, 3
    s_lshl_b32 s16, s16, 2
    s_and_b32 s18, s17, 3
    s_add_u32 s16, s16, s18
    s_lshr_b32 s17, s17, 2""")


def kv_dma(a, src, slot, srd="s[8:11]", voff=V_DMA, tmp="s29"):
    for i in range(5):
        a(f"s_add_u32 m0, {slot}, {i * 1024}")
        a(f"s_add_u32 {tmp}, {src}, {i * 1024}")
        a(f"buffer_load_dwordx4 v{voff}, {srd}, {tmp} offen lds")


def attn_role(a, L, R, own_dma, lds_base=0, prio=None, sf="", stamps=False, lf="", kvs=KV_CHUNK):
    a(f"""v_lshlrev_b32 v{V_DMA}, 4, v0
    s_lshl_b32 s18, s17, 3
    s_lshl_b32 s19, s20, 1
    s_add_u32 s18, s18, s19""")
    if own_dma:
        a.srd(8, 6, KV_BYTES, WS_KV)
    a.srd(12, 6, QF1_BYTES + QF2_BYTES, WS_QF1)
    a.srd(32, 6, OF_BYTES, WS_OF)
    a(f"""s_lshl_b32 s21, s16, 16
    s_lshl_b32 s22, s18, 10
    s_add_u32 s21, s21, s22
    buffer_load_dwordx4 {r(QA1)}, v{V_DMA}, s[12:15], s21 offen{lf}
    buffer_load_dwordx4 {r(QB1)}, v{V_DMA}, s[12:15], s21 offen offset:1024{lf}
    v_and_b32 v5, 31, v0
    v_lshlrev_b32 v{V_K2}, 2, v5
    s_lshl_b32 s21, s16, 13
    s_lshl_b32 s22, s18, 7
    s_add_u32 s21, s21, s22
    s_add_u32 s21, s21, {QF1_BYTES}""")
    for x in (QA2, QB2):
        for i in range(4):
            a(f"v_mov_b32 v{x + i}, 0")
    a(f"""s_mov_b32 exec_hi, 0
    buffer_load_dword v{QA2}, v{V_K2}, s[12:15], s21 offen{lf}
    buffer_load_dword v{QB2}, v{V_K2}, s[12:15], s21 offen offset:128{lf}
    s_mov_b32 exec_hi, -1""")
    if own_dma:
        a(f"""s_mul_i32 s22, s16, {KV_HEAD}
        s_mul_i32 s23, s20, {5 * 1024}
        s_add_u32 s22, s22, s23
        s_add_u32 s23, s23, {lds_base}""")
        kv_dma(a, "s22", "s23")
        a(f"s_add_u32 s22, s22, {KV_CHUNK}\ns_add_u32 s28, s23, {KV_CHUNK}")
        kv_dma(a, "s22", "s28")
        a(f"s_add_u32 s22, s22, {KV_CHUNK}")
    VROW = ("v_min_u32 v7, 19, v5" if VZERO else
            "v_subrev_u32 v7, 20, v5\nv_cmp_gt_u32 vcc, 20, v5\ns_nop 1\nv_cndmask_b32 v7, v7, v5, vcc")
    a(f"""v_add_u32 v{V_K1}, {lds_base}, v{V_DMA}
    v_add_u32 v{V_K2}, {lds_base + KV_KF2}, v{V_K2}
    v_lshrrev_b32 v6, 5, v0
    v_mul_u32_u24 v6, 320, v6
    {VROW}
    v_lshlrev_b32 v7, 4, v7
    v_add_u32 v{V_V}, v6, v7
    v_add_u32 v{V_V}, {lds_base + KV_VT}, v{V_V}""")
    for b in (0, 1):
        a(f"v_mov_b32 v{KF2[b] + 1}, 0x3f80\nv_mov_b32 v{KF2[b] + 2}, 0\nv_mov_b32 v{KF2[b] + 3}, 0")
    for b in (0, 1):
        for f in (0, 1):
            for i in range(4):
                a(f"v_mov_b32 v{VF[b][f] + i}, 0")
    for i in range(8):
        a(f"v_mov_b32 v{PB + i}, 0")
    for i in range(16):
        a(f"v_mov_b32 v{OA + i}, 0\nv_mov_b32 v{OB + i}, 0")
    if stamps:
        a("v_mov_b32 v140, 0\ns_mov_b32 s50, 0")
    a(f"s_waitcnt vmcnt({5 if own_dma else 0})")
    if stamps:
        a("s_memtime s[52:53]\ns_waitcnt lgkmcnt(0)\ns_sub_u32 s52, s52, s60\nv_writelane_b32 v140, s52, 32")
    a("s_barrier")
    if stamps:
        a("s_memtime s[52:53]\ns_waitcnt lgkmcnt(0)\ns_sub_u32 s52, s52, s60\nv_writelane_b32 v140, s52, 33")
    a(f"ds_read_b128 {r(KF1[0])}, v{V_K1}\nds_read_b32 v{KF2[0]}, v{V_K2}\ns_waitcnt lgkmcnt(0)")
    a(mf(SA, KF1[0], QA1, None))
    a(mf(SB, KF1[0], QB1, None))
    a(mf(SA, KF2[0], QA2, SA))
    a(mf(SB, KF2[0], QB2, SB))
    a("s_nop 7\ns_nop 7")
    for (Sx, Q2, t) in ((SA, QA2, T0), (SB, QB2, T0 + 2)):
        a(f"v_max3_f32 v{t}, v{Sx}, v{Sx + 1}, v{Sx + 2}")
        for i in range(3, 15, 2):
            a(f"v_max3_f32 v{t}, v{t}, v{Sx + i}, v{Sx + i + 1}")
        a(f"v_max_f32 v{t}, v{t}, v{Sx + 15}")
        a(f"v_mov_b32 v{t + 1}, v{t}\ns_nop 1\nv_permlane32_swap_b32 v{t}, v{t + 1}\ns_nop 1")
        a(f"v_max_f32 v{t}, v{t}, v{t + 1}")
        a(f"v_add_f32 v{t}, {fbits(M_BIAS)}, v{t}")
        a(f"s_mov_b32 exec_hi, 0\nv_cvt_pk_bf16_f32 v{Q2 + 1}, -v{t}, 0\ns_mov_b32 exec_hi, -1")
    a("s_nop 1")
    a(mf(SA, KF1[0], QA1, None))
    a(mf(SA, KF2[0], QA2, SA))
    a("s_mov_b32 s30, 0\ns_mov_b32 s27, 0")
    if prio is not None:
        a(f"s_setprio {prio}")
    a("s_nop 7\ns_nop 3")
    a(f".p2align 6\n{L}_loop:")
    for i in range(8):
        kb, nb = i % 2, (i + 1) % 2
        if i == 7:
            if stamps:
                a("s_memtime s[52:53]\ns_waitcnt lgkmcnt(0)\ns_sub_u32 s52, s52, s60\ns_mov_b32 m0, s50\ns_nop 0\nv_writelane_b32 v140, s52, m0")
            a("s_waitcnt vmcnt(0)\ns_barrier" if own_dma else "s_barrier")
            if stamps:
                a("s_memtime s[52:53]\ns_waitcnt lgkmcnt(0)\ns_sub_u32 s52, s52, s60\ns_add_u32 m0, s50, 16\ns_nop 0\nv_writelane_b32 v140, s52, m0\ns_add_u32 s50, s50, 1")
            a(f"s_add_u32 s26, s27, {kvs}\ns_cmp_eq_u32 s26, {R * kvs}\ns_cselect_b32 s26, 0, s26")
            if own_dma:
                a(f"s_cmp_ge_u32 s30, 6\ns_cbranch_scc1 {L}_nodma")
                a(f"s_add_u32 s25, s26, {KV_CHUNK}\ns_cmp_eq_u32 s25, {R * KV_CHUNK}\ns_cselect_b32 s25, 0, s25\ns_add_u32 s25, s25, s23")
                kv_dma(a, "s22", "s25")
                a(f"s_add_u32 s22, s22, {KV_CHUNK}\n{L}_nodma:")
            a(f"s_sub_u32 s25, s26, s27\nv_add_u32 v{V_K1}, s25, v{V_K1}\nv_add_u32 v{V_K2}, s25, v{V_K2}")
        ki = (i + 1) % 8
        loads = {0: [f"ds_read_b128 {r(KF1[nb])}, v{V_K1} offset:{ki * 1024}",
                     f"ds_read_b32 v{KF2[nb]}, v{V_K2} offset:{ki * 128}"],
                 1: [f"ds_read_b128 {r(VF[kb][0])}, v{V_V} offset:{i * VT_TILE}",
                     f"ds_read_b128 {r(VF[kb][1])}, v{V_V} offset:{i * VT_TILE + 640}"]}
        phase(a, SA, PA, SB, PB, [mf(OB, VF[nb][0], PB, OB), mf(OB, VF[nb][1], PB + 4, OB)],
              [mf(SB, KF1[kb], QB1, None), mf(SB, KF2[kb], QB2, SB)], loads)
        if i == 7:
            a(f"v_add_u32 v{V_V}, s25, v{V_V}\ns_mov_b32 s27, s26")
        a("s_waitcnt lgkmcnt(0)")
        phase(a, SB, PB, SA, PA, [mf(OA, VF[kb][0], PA, OA), mf(OA, VF[kb][1], PA + 4, OA)],
              [mf(SA, KF1[nb], QA1, None), mf(SA, KF2[nb], QA2, SA)], {})
    a(f"s_add_u32 s30, s30, 1\ns_cmp_lt_u32 s30, 8\ns_cbranch_scc1 {L}_loop")
    a(f"s_nop 0\nv_cvt_pk_bf16_f32 v{PB + 7}, v{SB + 14}, v{SB + 15}\ns_nop 1")
    a(mf(OB, VF[1][0], PB, OB))
    a(mf(OB, VF[1][1], PB + 4, OB))
    a("s_nop 7\ns_nop 7")
    a(f"""s_lshl_b32 s21, s18, 5
    s_add_u32 s21, s21, s16
    s_lshl_b32 s19, s21, 10
    s_lshl_b32 s21, s21, 7
    s_add_u32 s21, s21, {OFR_OFF}
    v_lshrrev_b32 v{T0 + 2}, 2, v{V_DMA}""")
    for n, O in enumerate((OA, OB)):
        t = T0
        a(f"v_mov_b32 v{t}, v{O + 10}\nv_mov_b32 v{t + 1}, v{O + 10}\ns_nop 1\nv_permlane32_swap_b32 v{t}, v{t + 1}\ns_nop 1")
        a(f"v_rcp_f32 v{t}, v{t}\ns_nop 0")
        for i in range(10):
            a(f"v_mul_f32 v{O + i}, v{O + i}, v{t}")
        for i in range(5):
            a(f"v_cvt_pk_bf16_f32 v{O + i}, v{O + 2 * i}, v{O + 2 * i + 1}")
        a(f"buffer_store_dwordx4 {r(O)}, v{V_DMA}, s[32:35], s19 offen{sf}")
        a(f"s_mov_b32 exec_hi, 0\nbuffer_store_dword v{O + 4}, v{T0 + 2}, s[32:35], s21 offen{sf}\ns_mov_b32 exec_hi, -1")
        if n == 0:
            a(f"s_add_u32 s19, s19, {32 * 1024}\ns_add_u32 s21, s21, {32 * 128}")
    if stamps:
        a(f"""s_load_dwordx2 s[54:55], s[0:1], {KA_DBG}
        s_lshl_b32 s56, s2, 3
        s_add_u32 s56, s56, s20
        s_lshl_b32 s56, s56, 8
        s_add_u32 s56, s56, 8192
        v_lshlrev_b32 v141, 2, v0
        v_add_u32 v141, s56, v141
        s_waitcnt lgkmcnt(0)
        global_store_dword v141, v140, s[54:55]""")
    a("s_waitcnt vmcnt(0)")


def timing_store(a, start, wave):
    a(f"""s_memtime s[42:43]
    s_load_dwordx2 s[44:45], s[0:1], {KA_DBG}
    s_waitcnt lgkmcnt(0)
    s_sub_u32 s42, s42, {start}
    s_lshl_b32 s46, s2, 3
    s_add_u32 s46, s46, {wave}
    s_lshl_b32 s46, s46, 2
    v_mov_b32 v5, s46
    v_mov_b32 v6, s42
    global_store_dword v5, v6, s[44:45]
    s_waitcnt vmcnt(0)""")


def attn_kernel(L="attn_kernel", R=3, timing=False):
    a = Asm()
    if timing:
        a("s_memtime s[40:41]")
    a(f"""s_cmp_ge_u32 s2, 256
    s_cbranch_scc1 {L}_end
    s_load_dwordx2 s[6:7], s[0:1], {KA_WS}
    v_lshrrev_b32 v5, 6, v0
    v_and_b32 v0, 63, v0""")
    head_and_block(a, "s2")
    a("v_readfirstlane_b32 s20, v5\ns_waitcnt lgkmcnt(0)")
    attn_role(a, L, R, True)
    if timing:
        timing_store(a, "s40", "s20")
    a(f"{L}_end:\ns_endpgm")
    return kernel_head(L) + a.text() + kernel_desc(L, NVGPR)
```

```python
import struct
from asmlib import *
from layout import *
import p3


def fbits(x):
    return hex(struct.unpack("<I", struct.pack("<f", x))[0])


NS = 13
SLOT = 36864
NSLOT = 4
PF2_SLOT = 6
LB = 0
WB_WGS = 8
CODE_PF = True
XB = 112
ACC = (16, 32, 48, 64, 80)
WF = (96, 100, 104, 108)
V_L16, V_VT, V_V3, V_QK, V_SC, V_CONST = 1, 2, 3, 4, 5, 6
V_AQ, V_AX, V_AV = 7, 8, 9
V_AS, V_AD0, V_AD1 = 10, 11, 12
V_T0 = 13


def r(base, n=4):
    return f"v[{base}:{base + n - 1}]"


def slot_kind(j):
    if j < 4:
        return ("q", j)
    if j == 4:
        return ("s", 0)
    return ("d", (j - 5) // 2, (j - 5) % 2)


def loader(a, L, timing=False, pf="", rot=True, wb=(), fused=False):
    a("s_sub_u32 s28, s26, 4\nv_mov_b32 v20, 0")
    phase_stamp(a, 0, "s26", L=L)
    if fused and CODE_PF:
        a(f"""s_getpc_b64 s[76:77]
        {L}_pc:
        s_sub_u32 s76, s76, {L}_pc-{L}
        s_subb_u32 s77, s77, 0
        s_and_b32 s77, s77, 0xffff
        s_mov_b32 s78, {L}_end-{L}
        s_mov_b32 s79, 0x20000
        s_lshr_b32 s73, s2, 3
        s_lshl_b32 s73, s73, 2
        s_add_u32 s73, s73, s28
        s_mul_i32 s73, s73, {6 * 128}
        v_lshlrev_b32 v2, 7, v0
        s_mov_b32 exec_hi, 0
        s_mov_b32 exec_lo, 0x3f
        buffer_load_dword v21, v2, s[76:79], s73 offen
        s_mov_b64 exec, -1""")
    a(f"""s_cmp_eq_u32 s2, 0
    s_cbranch_scc0 {L}_nozero
    s_cmp_eq_u32 s28, 0
    s_cbranch_scc0 {L}_nozero
    v_lshlrev_b32 v2, 7, v0
    v_add_u32 v2, {WS_CNT}, v2
    buffer_store_dword v20, v2, s[12:15], 0 offen{" sc1" if fused else ""}
    v_add_u32 v2, 8192, v2
    buffer_store_dword v20, v2, s[12:15], 0 offen{" sc1" if fused else ""}
    {L}_nozero:""")
    if timing:
        a("s_memtime s[68:69]\ns_waitcnt lgkmcnt(0)\ns_sub_u32 s72, s68, s60\nv_writelane_b32 v20, s72, 38")
    a(f"""s_lshl_b32 s29, s24, 2
    s_add_u32 s29, s29, s28
    s_mul_i32 s29, s29, {32 * 1152}
    s_mul_i32 s41, s28, {SLOT}
    s_add_u32 s41, s41, {LB}
    s_movk_i32 s30, 29128
    s_movk_i32 s31, 1152""")
    if rot:
        a("s_mul_i32 s33, s25, 9\ns_lshr_b32 s33, s33, 2")
    else:
        a("s_mov_b32 s33, 0")
    for q in range(36):
        a(f"""s_lshl_b32 s34, s33, 6
        v_add_u32 v2, s34, v0
        v_mul_u32_u24 v3, s30, v2
        v_lshrrev_b32 v3, 21, v3
        v_mul_u32_u24 v4, 72, v3
        v_sub_u32 v4, v2, v4
        v_lshrrev_b32 v5, 1, v3
        v_xor_b32 v5, v5, v4
        v_and_b32 v5, 7, v5
        v_and_b32 v4, 0x78, v4
        v_or_b32 v4, v4, v5
        v_lshlrev_b32 v4, 4, v4
        v_mad_u32_u24 v4, v3, s31, v4
        s_lshl_b32 s34, s33, 10
        s_add_u32 m0, s41, s34
        s_add_u32 s33, s33, 1
        buffer_load_dwordx4 v4, s[8:11], s29 offen lds
        s_cmp_eq_u32 s33, 36
        s_cselect_b32 s33, 0, s33""")
    a(f"""v_lshrrev_b32 v2, 4, v0
    s_movk_i32 s30, 3456
    v_mul_lo_u32 v2, v2, s30
    v_and_b32 v3, 15, v0
    v_lshrrev_b32 v4, 4, v0
    v_lshlrev_b32 v4, 2, v4
    v_xor_b32 v3, v3, v4
    v_mul_u32_u24 v5, 13108, v3
    v_lshrrev_b32 v5, 16, v5
    v_mul_u32_u24 v7, 5, v5
    v_sub_u32 v7, v3, v7
    v_lshlrev_b32 v6, 4, v7
    v_cmp_eq_u32 vcc, 4, v7
    v_mov_b32 v9, 56
    v_mul_u32_u24 v10, 1152, v5
    v_cndmask_b32 v6, v6, v9, vcc
    v_add_u32 v6, v6, v10
    s_xor_b32 s33, s25, 1
    s_sub_u32 s33, s33, s25
    s_mul_i32 s33, s33, 72
    v_cmp_eq_u32 vcc, 1, v5
    v_mov_b32 v9, s33
    s_nop 0
    v_cndmask_b32 v9, 0, v9, vcc
    v_add_u32 v6, v6, v9
    v_cmp_eq_u32 vcc, 15, v3
    v_mov_b32 v9, 0x40000000
    s_nop 0
    v_cndmask_b32 v6, v6, v9, vcc
    v_add_u32 v6, v6, v2""")
    a(f"""s_movk_i32 s31, 9216
    v_lshrrev_b32 v2, 2, v0
    v_mul_lo_u32 v2, v2, s31
    v_and_b32 v3, 3, v0
    v_lshlrev_b32 v3, 4, v3
    v_add_u32 v7, v2, v3
    v_lshrrev_b32 v2, 3, v0
    v_mul_lo_u32 v8, v2, s31
    v_bfe_u32 v2, v0, 4, 1
    v_bfe_u32 v4, v0, 2, 1
    v_xor_b32 v2, v2, v4
    v_lshlrev_b32 v2, 6, v2
    v_add3_u32 v8, v8, v2, v3""")
    a(f"""s_mul_i32 s32, s28, {9 * 4 * 3456}
    s_mul_i32 s33, s25, 72
    s_add_u32 s32, s32, s33
    s_and_b32 s33, s25, 1
    s_mul_i32 s35, s25, 576
    s_mul_i32 s34, s28, {9 * 16 * 9216}
    s_add_u32 s34, s34, s35
    s_cmp_eq_u32 s33, 0
    s_cselect_b32 s36, 512, 0
    s_add_u32 s34, s34, s36
    s_mul_i32 s40, s28, {9 * 8 * 9216}
    s_add_u32 s40, s40, s35
    s_lshl_b32 s36, s33, 6
    s_add_u32 s40, s40, s36
    s_mul_i32 s41, s28, {9 * 1024}""")

    def issue(j):
        kind = slot_kind(j)
        base = LB + (j % NSLOT) * SLOT
        for n in range(9):
            a(f"s_add_u32 m0, s41, {base + n * 1024}")
            if kind[0] == "q":
                a(f"s_add_u32 s29, s32, {(kind[1] * 144 + n * 4) * 3456}")
                a("buffer_load_dwordx4 v6, s[16:19], s29 offen lds")
            elif kind[0] == "s":
                a(f"s_add_u32 s29, s34, {n * 16 * 9216}")
                a("buffer_load_dwordx4 v7, s[20:23], s29 offen lds")
            else:
                a(f"s_add_u32 s29, s40, {(kind[2] * 288 + n * 8) * 9216 + kind[1] * 128}")
                a("buffer_load_dwordx4 v8, s[20:23], s29 offen lds")

    def stamp(lane):
        if timing:
            a(f"s_memtime s[68:69]\ns_memrealtime s[70:71]\ns_waitcnt lgkmcnt(0)\ns_sub_u32 s72, s68, s60\nv_writelane_b32 v20, s72, {lane}")
            if lane < 16 or lane in (32, 33):
                a(f"s_sub_u32 s72, s70, s62\nv_writelane_b32 v20, s72, {lane + 40 if lane < 16 else lane + 8 - 10}")
    stamp(34)
    if timing:
        a("s_waitcnt vmcnt(27)")
        stamp(35)
        a("s_waitcnt vmcnt(18)")
        stamp(36)
        a("s_waitcnt vmcnt(9)")
        stamp(37)
    a("s_waitcnt vmcnt(0)")
    stamp(32)
    if fused:
        a(f"s_cmp_eq_u32 s2, 0\ns_cbranch_scc0 {L}_nozs\ns_cmp_eq_u32 s28, 0\ns_cbranch_scc0 {L}_nozs")
        p3.signal(a, p3.DBG_ZERO, 1, tmpv=(22, 23))
        a(f"{L}_nozs:")
    a("s_barrier")
    a("s_barrier")
    stamp(33)
    for j in range(2):
        issue(j)
    issued = 2
    for j in range(NS):
        a(f"s_waitcnt vmcnt({9 * (issued - 1 - j)})")
        stamp(16 + j)
        if fused and j == NS - 1:
            a(f"""s_cmp_eq_u32 s28, 0
            s_cbranch_scc0 {L}_noqp
            s_and_b32 s73, s2, 7
            s_lshl_b32 s73, s73, 1
            s_bfe_u32 s74, s2, 0x10004
            s_add_u32 s73, s73, s74
            s_lshl_b32 s73, s73, 2
            s_xor_b32 s74, s73, 4""")
            p3.poll(a, L, "qkv", [("s73", 16), ("s74", 16), (p3.DBG_ZERO, 1)], base="s[90:91]", tmpv=(22, 24))
            phase_stamp(a, 4, "s26", L=L)
            a(f"{L}_noqp:")
        a("s_barrier")
        stamp(j)
        if j in (0, 4, 12):
            phase_stamp(a, {0: 1, 4: 2, 12: 3}[j], "s26", L=L)
        if fused and j == 7:
            a(f"s_cmp_eq_u32 s28, 0\ns_cbranch_scc0 {L}_noq\ns_lshl_b32 s73, s25, 2")
            p3.signal(a, "s73", 1, tmpv=(22, 23))
            a(f"{L}_noq:")
        if j + 2 < NS:
            issue(j + 2)
            issued += 1
        if j in wb:
            a(f"s_cmp_lt_u32 s2, {WB_WGS}\ns_cbranch_scc0 {L}_nowb{j}\ns_cmp_eq_u32 s26, 4\ns_cbranch_scc0 {L}_nowb{j}\nbuffer_wbl2 sc1\n{L}_nowb{j}:")
    if timing:
        a(f"""s_load_dwordx2 s[64:65], s[0:1], {KA_DBG}
        s_lshl_b32 s66, s2, 2
        s_add_u32 s66, s66, s28
        s_lshl_b32 s66, s66, 8
        s_add_u32 s66, s66, 4096
        v_lshlrev_b32 v21, 2, v0
        v_add_u32 v21, s66, v21
        s_waitcnt lgkmcnt(0)
        global_store_dword v21, v20, s[64:65]
        s_waitcnt vmcnt(0)""")
    if fused:
        a(f"s_branch {L}_p2")
    else:
        a(f"s_branch {L}_end")


def pack(A, f):
    return [f"v_cvt_pk_bf16_f32 v{A + 4 * f + i}, v{A + 8 * f + 2 * i}, v{A + 8 * f + 2 * i + 1}" for i in range(4)]


def epi_ffn(A, soff, sf):
    it = []
    for f in range(2):
        it += pack(A, f)
        it += [f"v_pk_max_i16 v{A + 4 * f + i}, v{A + 4 * f + i}, 0" for i in range(4)]
        it.append(f"s_add_u32 s29, {soff}, {f * 1024}\nbuffer_store_dwordx4 {r(A + 4 * f)}, v{V_L16}, s[12:15], s29 offen{sf}")
    return it


def epi_qkv(sf):
    Q, K, V, X = ACC[0], ACC[1], ACC[2], ACC[3]
    it = [f"v_mul_f32 v{Q + i}, s47, v{Q + i}" for i in range(16)]
    it += [f"v_mul_f32 v{X + i}, v{V_SC}, v{X + i}" for i in range(16)]
    for f in range(2):
        it += pack(K, f)
        it.append(f"s_add_u32 s29, s46, {f * KV_HEAD}\nbuffer_store_dwordx4 {r(K + 4 * f)}, v{V_L16}, s[12:15], s29 offen{sf}")
    for f in range(2):
        it += pack(Q, f)
        it.append(f"s_add_u32 s29, s45, {f * 65536}\nbuffer_store_dwordx4 {r(Q + 4 * f)}, v{V_L16}, s[12:15], s29 offen{sf}")
    for f in range(2):
        it += pack(V, f)
        it.append(f"buffer_store_dwordx4 {r(V + 4 * f)}, v{V_VT}, s[12:15], s48 offen offset:{640 * f}{sf}")
    T, P = K + 8, Q + 8
    for b in range(2):
        it += [f"v_mov_b32_dpp v{T + i}, v{X + 8 * b + i} quad_perm:[1,0,3,2] row_mask:0xf bank_mask:0xf" for i in range(8)]
        it += [f"v_cvt_pk_bf16_f32 v{P + 4 * b + i}, v{X + 8 * b + 2 * i}, v{X + 8 * b + 2 * i + 1}" for i in range(4)]
        it += [f"v_cvt_pk_bf16_f32 v{X + 8 * b + i}, v{X + 8 * b + i}, v{T + i}" for i in range(8)]
        it += [f"v_cndmask_b32 v{P + 4 * b + i}, v{P + 4 * b + i}, v{V_CONST}, s[50:51]" for i in range(4)]
        it.append(f"s_mov_b64 exec, s[52:53]\nbuffer_store_dwordx4 {r(P + 4 * b)}, v{V_V3}, s[12:15], s48 offen offset:{640 * b}{sf}\ns_mov_b64 exec, -1")
        for g in (2 * b, 2 * b + 1):
            it.append(f"s_mov_b64 exec, s[54:55]\nbuffer_store_dwordx4 {r(X + 4 * g)}, v{V_QK}, s[12:15], 0 offen offset:{32 * g}{sf}\ns_mov_b64 exec, -1")
    return it


def prefetch(a, mode):
    a(f"""s_lshl_b32 s28, s2, 2
    s_and_b32 s29, s26, 3
    s_add_u32 s28, s28, s29
    v_lshlrev_b32 v16, 7, v0""")
    if "q" in mode:
        a(f"""s_mul_i32 s30, s28, {16 * 128}
        s_mov_b32 exec_hi, 0
        s_mov_b32 exec_lo, 0xffff
        buffer_load_dword v14, v16, s[16:19], s30 offen
        s_mov_b64 exec, -1""")
    if "w" in mode:
        a(f"""s_mul_i32 s30, s28, {41 * 128}
        s_mov_b32 exec_hi, 0x1ff
        buffer_load_dword v14, v16, s[20:23], s30 offen
        s_mov_b64 exec, -1""")


def prefetch2_setup(a):
    a(f"""s_load_dwordx2 s[74:75], s[0:1], {KA_W2}
    s_load_dwordx2 s[76:77], s[0:1], {KA_WO}
    s_waitcnt lgkmcnt(0)""")
    a.srd(68, 74, F * D * 2)
    a.srd(76, 76, D * D * 2) if False else None
    a(f"""s_mov_b32 s72, s76
    s_and_b32 s73, s77, 0xffff
    s_mov_b32 s74, {D * D * 2}
    s_mov_b32 s75, 0x20000
    s_lshl_b32 s78, s2, 2
    s_and_b32 s79, s26, 3
    s_add_u32 s78, s78, s79
    s_mul_i32 s79, s78, {6 * 128}
    s_mul_i32 s78, s78, {41 * 128}""")


def prefetch2_issue():
    return ["v_lshlrev_b32 v15, 7, v0",
            "s_mov_b32 exec_hi, 0x1ff\nbuffer_load_dword v14, v15, s[68:71], s78 offen\ns_mov_b64 exec, -1",
            "s_mov_b32 exec_hi, 0\ns_mov_b32 exec_lo, 0x3f\nbuffer_load_dword v14, v15, s[72:75], s79 offen\ns_mov_b64 exec, -1"]


def consumer(a, L, sf, pf="", fused=False):
    if "q" in pf:
        prefetch(a, "q")
    if "2" in pf:
        prefetch2_setup(a)
    t0, t1, t2 = V_T0, V_T0 + 1, V_T0 + 2
    a(f"""v_and_b32 v16, 31, v0
    v_lshrrev_b32 v17, 5, v0
    v_lshlrev_b32 v{V_L16}, 4, v0
    v_and_b32 v18, 15, v0
    v_lshrrev_b32 v19, 2, v18
    v_and_b32 v20, 3, v18
    v_bfe_u32 v21, v0, 4, 1
    v_lshlrev_b32 v22, 3, v17
    v_add_u32 v22, v22, v19""")
    a(f"""v_lshlrev_b32 v23, 6, v22
    v_lshlrev_b32 v24, 3, v20
    v_lshlrev_b32 v25, 5, v21
    v_add3_u32 v{V_AS}, v23, v24, v25
    v_lshlrev_b32 v23, 7, v22
    v_bfe_u32 v26, v19, 1, 1
    v_lshlrev_b32 v26, 6, v26
    v_add3_u32 v23, v23, v24, v25
    v_add_u32 v{V_AD0}, v23, v26
    v_xor_b32 v26, 64, v26
    v_add_u32 v{V_AD1}, v23, v26""")
    a(f"""v_lshlrev_b32 v23, 8, v22
    v_lshlrev_b32 v26, 3, v19
    v_add_u32 v26, v23, v26""") if False else None
    a(f"""v_lshlrev_b32 v23, 8, v22
    v_lshlrev_b32 v26, 3, v19
    v_lshlrev_b32 v27, 2, v21
    v_add_u32 v27, v27, v20""")
    a(f"""v_cmp_lt_u32 vcc, 3, v27
    v_add_u32 v28, 1, v27
    s_nop 0
    v_cndmask_b32 v28, v27, v28, vcc
    v_cmp_eq_u32 vcc, 7, v27
    v_mov_b32 v29, 9
    s_nop 0
    v_cndmask_b32 v28, v28, v29, vcc
    v_xor_b32 v29, v28, v26
    v_lshlrev_b32 v29, 3, v29
    v_add_u32 v{V_AQ}, v23, v29
    v_add_u32 v28, 10, v28
    v_xor_b32 v29, v28, v26
    v_lshlrev_b32 v29, 3, v29
    v_add_u32 v{t0}, v23, v29
    v_add_u32 v28, 20, v27
    v_xor_b32 v29, v28, v26
    v_lshlrev_b32 v29, 3, v29
    v_add_u32 v{V_AV}, v23, v29
    v_mov_b32 v28, 30
    v_cmp_eq_u32 vcc, 0, v27
    v_mov_b32 v29, 29
    s_nop 0
    v_cndmask_b32 v28, v28, v29, vcc
    v_cmp_eq_u32 vcc, 1, v27
    v_mov_b32 v29, 4
    s_nop 0
    v_cndmask_b32 v28, v28, v29, vcc
    v_cmp_eq_u32 vcc, 2, v27
    v_mov_b32 v29, 14
    s_nop 0
    v_cndmask_b32 v28, v28, v29, vcc
    v_xor_b32 v29, v28, v26
    v_lshlrev_b32 v29, 3, v29
    v_add_u32 v{V_AX}, v23, v29""")
    V_AK = t0
    a(f"""v_mul_u32_u24 v23, 320, v17
    v_cmp_lt_u32 vcc, 17, v16
    v_subrev_u32 v24, 18, v16
    v_mov_b32 v25, {KV_HEAD}
    v_cndmask_b32 v24, v16, v24, vcc
    v_cndmask_b32 v25, 0, v25, vcc
    v_lshlrev_b32 v24, 4, v24
    v_add3_u32 v{V_VT}, v23, v24, v25""")
    a(f"""v_add_u32 v24, 14, v16
    v_lshlrev_b32 v24, 4, v24
    v_add_u32 v24, {KV_HEAD}, v24
    v_subrev_u32 v25, 12, v16
    v_and_b32 v26, 1, v25
    v_add_u32 v26, 18, v26
    v_lshlrev_b32 v26, 4, v26
    v_lshrrev_b32 v25, 1, v25
    v_and_b32 v25, 1, v25
    v_mul_u32_u24 v25, {KV_HEAD}, v25
    v_add_u32 v25, v25, v26
    v_cmp_lt_u32 vcc, 3, v16
    s_nop 1
    v_cndmask_b32 v24, v24, v25, vcc
    v_add_u32 v{V_V3}, v23, v24
    v_and_b32 v24, 1, v16
    v_cmp_eq_u32 vcc, 0, v24
    v_mov_b32 v25, 0x3f803f80
    s_nop 0
    v_cndmask_b32 v{V_CONST}, 0, v25, vcc
    s_mov_b32 s50, 0xf000
    s_mov_b32 s51, 0xf000
    s_mov_b32 s52, 0xf00f
    s_mov_b32 s53, 0xf00f
    s_mov_b32 s54, 0x550
    s_mov_b32 s55, 0x550""")
    a(f"""s_lshl_b32 s28, s25, 1
    s_lshl_b32 s29, s28, 13
    s_lshl_b32 s30, s27, 7
    s_add_u32 s29, s29, s30
    s_add_u32 s29, s29, {WS_QF2}
    s_mul_i32 s30, s28, {KV_HEAD}
    s_lshr_b32 s31, s27, 3
    s_mul_i32 s31, s31, {KV_CHUNK}
    s_add_u32 s30, s30, s31
    s_add_u32 s30, s30, {WS_KV}
    s_and_b32 s31, s27, 7
    s_mul_i32 s32, s31, {VT_TILE}
    s_add_u32 s48, s30, s32
    s_add_u32 s48, s48, {KV_VT}
    s_xor_b32 s32, s25, 1
    s_sub_u32 s32, s32, s25
    s_mul_i32 s32, s32, {2 * KV_HEAD}
    s_add_u32 s30, s30, s32
    s_lshl_b32 s32, s31, 10
    s_add_u32 s46, s30, s32
    s_lshl_b32 s32, s31, 7
    s_add_u32 s30, s30, s32
    s_add_u32 s30, s30, {KV_KF2}
    v_bfe_u32 v24, v16, 1, 1
    v_mul_u32_u24 v25, 8192, v24
    v_add_u32 v25, s29, v25
    v_mul_u32_u24 v26, {KV_HEAD}, v24
    v_add_u32 v26, s30, v26
    v_cmp_lt_u32 vcc, 7, v16
    v_lshlrev_b32 v24, 4, v17
    s_nop 0
    v_cndmask_b32 v25, v25, v26, vcc
    v_add_u32 v{V_QK}, v25, v24
    v_cmp_lt_u32 vcc, 3, v16
    v_mov_b32 v25, {fbits(QSCALE)}
    s_nop 0
    v_cndmask_b32 v24, 1.0, v25, vcc
    v_cmp_lt_u32 vcc, 7, v16
    s_nop 1
    v_cndmask_b32 v{V_SC}, v24, 1.0, vcc
    s_mov_b32 s47, {fbits(QSCALE)}
    s_lshl_b32 s45, s28, 16
    s_lshl_b32 s32, s27, 10
    s_add_u32 s45, s45, s32
    s_add_u32 s45, s45, {WS_QF1}
    s_mul_i32 s44, s27, {288 * 1024}
    s_mul_i32 s32, s25, {18 * 1024}
    s_add_u32 s44, s44, s32
    s_add_u32 s44, s44, {WS_HF}
    s_and_b32 s32, s25, 1
    s_cmp_eq_u32 s32, 0
    s_cselect_b32 s33, {16 * 1024}, 0
    s_add_u32 s42, s44, s33
    s_lshl_b32 s32, s32, 11
    s_add_u32 s43, s44, s32""")
    a(f"""s_and_b32 s32, s26, 3
    s_mul_i32 s32, s32, {SLOT}
    s_add_u32 s32, s32, {LB}
    v_mul_u32_u24 v23, 1152, v16
    v_add_u32 v23, s32, v23
    v_lshrrev_b32 v24, 1, v16
    v_and_b32 v24, 7, v24""")
    for c4 in range(4):
        a(f"""v_lshlrev_b32 v25, 0, v17
        v_add_u32 v25, {2 * c4}, v25
        v_xor_b32 v25, v25, v24
        v_lshlrev_b32 v25, 4, v25
        v_add_u32 v{28 + c4}, v23, v25""")
    a("s_barrier")
    if "W" in pf:
        prefetch(a, "w" if "q" in pf else "qw")
    TMP = 32
    a("s_mov_b32 s56, 0x3f803f80\ns_mov_b32 s57, 0xffff0000")
    for i in range(8):
        a(f"v_mov_b32 v{TMP + i}, 0")
    dots = []
    for x in range(XB, XB + 144):
        i = x % 4
        dots.append(f"v_dot2_f32_bf16 v{TMP + i}, v{x}, s56, v{TMP + i}")
        dots.append(f"v_dot2_f32_bf16 v{TMP + 4 + i}, v{x}, v{x}, v{TMP + 4 + i}")
    done = 0
    for k in range(36):
        a(f"ds_read_b128 {r(XB + 4 * k)}, v{28 + k % 4} offset:{(k // 4) * 128}")
        if k >= 12:
            a("s_waitcnt lgkmcnt(12)")
            for ins in dots[done:done + 2]:
                a(ins)
            done += 2
    a("s_waitcnt lgkmcnt(0)\ns_barrier")
    for ins in dots[done:]:
        a(ins)
    a(f"""s_nop 2
    v_add_f32 v{TMP}, v{TMP}, v{TMP + 1}
    v_add_f32 v{TMP + 2}, v{TMP + 2}, v{TMP + 3}
    v_add_f32 v{TMP + 4}, v{TMP + 4}, v{TMP + 5}
    v_add_f32 v{TMP + 6}, v{TMP + 6}, v{TMP + 7}
    v_add_f32 v{TMP}, v{TMP}, v{TMP + 2}
    v_add_f32 v{TMP + 4}, v{TMP + 4}, v{TMP + 6}
    v_mov_b32 v{TMP + 1}, v{TMP}
    v_mov_b32 v{TMP + 5}, v{TMP + 4}
    s_nop 1
    v_permlane32_swap_b32 v{TMP}, v{TMP + 1}
    v_permlane32_swap_b32 v{TMP + 4}, v{TMP + 5}
    s_nop 1
    v_add_f32 v{TMP}, v{TMP}, v{TMP + 1}
    v_add_f32 v{TMP + 4}, v{TMP + 4}, v{TMP + 5}
    v_mul_f32 v{TMP}, {fbits(1.0 / 576)}, v{TMP}
    v_mul_f32 v{TMP + 4}, {fbits(1.0 / 576)}, v{TMP + 4}
    v_fma_f32 v{TMP + 4}, -v{TMP}, v{TMP}, v{TMP + 4}
    v_max_f32 v{TMP + 4}, 0, v{TMP + 4}
    v_add_f32 v{TMP + 4}, {fbits(1e-5)}, v{TMP + 4}
    v_rsq_f32 v{TMP + 4}, v{TMP + 4}
    s_nop 0
    v_mul_f32 v{TMP + 6}, v{TMP}, v{TMP + 4}
    v_sub_f32 v{TMP + 6}, 0, v{TMP + 6}""")
    for x in range(XB, XB + 144):
        t = TMP + 8 + 2 * (x % 4)
        a(f"v_lshlrev_b32 v{t}, 16, v{x}")
        a(f"v_and_b32 v{t + 1}, s57, v{x}")
        a(f"v_pk_fma_f32 v[{t}:{t + 1}], v[{t}:{t + 1}], v[{TMP + 4}:{TMP + 5}], v[{TMP + 6}:{TMP + 7}] op_sel_hi:[1,0,0]")
        a(f"v_cvt_pk_bf16_f32 v{x}, v{t}, v{t + 1}")

    steps = []
    pair_acc = {0: (ACC[0], ACC[1]), 1: (ACC[2], ACC[3]), 2: (ACC[0], ACC[1]), 3: (ACC[2], ACC[3])}
    for j in range(NS):
        kind = slot_kind(j)
        if kind[0] == "q":
            for k in range(9):
                xs = kind[1] * 9 + k
                for (reg, acc, tr) in ((V_AQ, ACC[0], False), (V_AK, ACC[1], False), (V_AV, ACC[2], True), (V_AX, ACC[3], True)):
                    steps.append((j, reg, k * 4096, 1024, acc, xs, xs == 0, tr))
        elif kind[0] == "s":
            for k in range(36):
                steps.append((j, V_AS, k * 1024, 256, ACC[4], k, k == 0, False))
        else:
            for k in range(18):
                xs = kind[2] * 18 + k
                for T, reg in enumerate((V_AD0, V_AD1)):
                    steps.append((j, reg, k * 2048, 512, pair_acc[kind[1]][T], xs, xs == 0, False))
    total = len(steps)
    assert total == 36 * NS
    cur_base = {V_AQ: 0, V_AK: 0, V_AV: 0, V_AX: 0, V_AS: 0, V_AD0: 0, V_AD1: 0}

    def reads(g):
        j, reg, off, second, acc, xs, first, tr = steps[g]
        base = LB + (j % NSLOT) * SLOT
        out = []
        if cur_base[reg] != base:
            d = base - cur_base[reg]
            out.append(f"v_add_u32 v{reg}, {d & 0xffffffff:#x}, v{reg}")
            cur_base[reg] = base
        buf = WF[g % 4]
        out.append(f"ds_read_b64_tr_b16 v[{buf}:{buf + 1}], v{reg} offset:{off}")
        out.append(f"ds_read_b64_tr_b16 v[{buf + 2}:{buf + 3}], v{reg} offset:{off + second}")
        return out

    a("s_barrier")
    for g in range(3):
        for ins in reads(g):
            a(ins)
    fill = []
    for g in range(total):
        j, reg, off, second, acc, xs, first, tr = steps[g]
        k = g % 36
        if k == 0 and j == 6 and fused:
            assert PF2_SLOT != 6
            a("s_waitcnt vmcnt(2)")
        if k == 0:
            assert not fill, (j, len(fill))
            if j == 4:
                fill = epi_qkv(sf)
            elif j == 5:
                fill = epi_ffn(ACC[4], "s42", sf)
            elif j == PF2_SLOT and "2" in pf:
                fill = prefetch2_issue()
            elif j >= 7 and (j - 5) % 2 == 0:
                d = (j - 5) // 2 - 1
                fill = []
                for T in range(2):
                    a(f"s_add_u32 s{58 + T}, s43, {(2 * d + T) * 2048}")
                    fill += epi_ffn(pair_acc[d][T], f"s{58 + T}", sf)
        left = min(2, total - 1 - g)
        a(f"s_waitcnt lgkmcnt({2 * left})")
        c = "0" if first else r(acc, 16)
        x = r(XB + 4 * xs)
        w = r(WF[g % 4])
        if tr:
            a(f"v_mfma_f32_32x32x16_bf16 {r(acc, 16)}, {x}, {w}, {c}")
        else:
            a(f"v_mfma_f32_32x32x16_bf16 {r(acc, 16)}, {w}, {x}, {c}")
        if k == 32 and j + 1 < NS:
            a("s_barrier")
        if g + 3 < total:
            for ins in reads(g + 3):
                a(ins)
        if k >= 6 and fill:
            n = -(-len(fill) // (36 - k))
            for _ in range(n):
                a(fill.pop(0))
    a("s_nop 7\ns_nop 7")
    for T in range(2):
        a(f"s_add_u32 s58, s43, {(2 * 3 + T) * 2048}")
        for it in epi_ffn(pair_acc[3][T], "s58", sf):
            a(it)
    if not fused:
        a("s_waitcnt vmcnt(0)")


def p1_body(a, L, mapping="84", sf="", timing=False, pf="qW2", rot=True, pf2slot=8, wb=(), wbwgs=8, fused=False):
    global PF2_SLOT, WB_WGS, LB
    PF2_SLOT = pf2slot
    WB_WGS = wbwgs
    LB = 16384 if fused else 0
    a(f"""s_load_dwordx2 s[4:5], s[0:1], {KA_X}
    s_load_dwordx2 s[6:7], s[0:1], {KA_WS}
    s_load_dwordx2 s[36:37], s[0:1], {KA_WQKV}
    s_load_dwordx2 s[38:39], s[0:1], {KA_W1}""")
    if fused:
        a(f"s_load_dwordx2 s[90:91], s[0:1], {KA_DBG}")
    a("""v_lshrrev_b32 v1, 6, v0
    v_and_b32 v0, 63, v0
    s_and_b32 s28, s2, 7
    v_readfirstlane_b32 s26, v1
    s_lshr_b32 s29, s2, 3""")
    if mapping == "84":
        a("""s_and_b32 s25, s28, 3
        s_lshl_b32 s25, s25, 2
        s_and_b32 s30, s29, 3
        s_add_u32 s25, s25, s30
        s_lshr_b32 s24, s28, 2
        s_lshl_b32 s24, s24, 3
        s_lshr_b32 s30, s29, 2
        s_add_u32 s24, s24, s30""")
    else:
        assert not fused
        a("""s_and_b32 s25, s28, 1
        s_lshl_b32 s25, s25, 3
        s_and_b32 s30, s29, 7
        s_add_u32 s25, s25, s30
        s_lshr_b32 s24, s28, 1
        s_lshl_b32 s24, s24, 2
        s_lshr_b32 s30, s29, 3
        s_add_u32 s24, s24, s30""")
    a("""s_and_b32 s27, s26, 3
    s_lshl_b32 s30, s24, 2
    s_add_u32 s27, s27, s30
    s_waitcnt lgkmcnt(0)""")
    a.srd(8, 4, S * D * 2)
    a.srd(12, 6, WS_END)
    a.srd(16, 36, D * 3 * D * 2)
    a.srd(20, 38, D * F * 2)
    a(f"s_cmp_lt_u32 s26, 4\ns_cbranch_scc1 {L}_consumer")
    loader(a, L, timing, pf, rot, wb, fused)
    a(f"{L}_consumer:")
    consumer(a, L, sf, pf, fused)


def k1_kernel(L="k1_kernel", mapping="84", sf="", timing=False, rt=False, **kw):
    a = Asm()
    if rt:
        rt_stamp_begin(a)
    if timing:
        a("s_memtime s[60:61]\ns_memrealtime s[62:63]")
    a(f"s_cmp_ge_u32 s2, 256\ns_cbranch_scc1 {L}_end")
    p1_body(a, L, mapping, sf, timing, **kw)
    if timing:
        a(f"""s_memtime s[62:63]
        s_load_dwordx2 s[64:65], s[0:1], {KA_DBG}
        s_waitcnt lgkmcnt(0)
        s_sub_u32 s62, s62, s60
        s_lshl_b32 s66, s2, 2
        s_add_u32 s66, s66, s26
        s_lshl_b32 s66, s66, 2
        v_mov_b32 v20, s66
        v_mov_b32 v21, s62
        global_store_dword v20, v21, s[64:65]
        s_waitcnt vmcnt(0)""")
    if rt:
        rt_stamp_end(a, 0, L)
    a(f"{L}_end:\ns_endpgm")
    return kernel_head(L) + a.text() + kernel_desc(L, 256)


K1_LDS = NSLOT * SLOT
```

```python
from asmlib import *
from layout import *
import attn
import p3
from attn import r, fbits

R = 3
W2_SLOT = 46080
K2_LDS = R * KV_CHUNK + 2 * W2_SLOT
MAP_PLAIN = (0, KV_CHUNK, (R * KV_CHUNK, R * KV_CHUNK + W2_SLOT), None, None)
MAP_FUSED = (104448, 19456, (53248, 1024), (8192, 162816), 0)
STEPS_PLAIN = [9] * 8
STEPS_FUSED = [2] + [10] * 7
FACC = 16
WF = [96 + 4 * i for i in range(8)]
HF = [128 + 4 * i for i in range(6)]
V_L16, V_WA0, V_WA1 = 1, 2, 3
V_PAT = [4, 5, 6, 7, 8]
NSTEP = 72
HDIST, WDIST = 4, 4
EARLY_STORE = True


class Queue:
    def __init__(self):
        self.n = 0
        self.pos = {}

    def issue(self, tag=None):
        self.n += 1
        if tag is not None:
            self.pos[tag] = self.n

    def need(self, tag):
        return self.n - self.pos[tag]


def ffn_role(a, L, sf="", off=(), stamps=False, fused1=False):
    lf = " sc1" if fused1 else ""
    KVB, KVS, W2A, DUMMY, HFLAG = MAP_FUSED if fused1 else MAP_PLAIN
    PST = STEPS_FUSED if fused1 else STEPS_PLAIN
    CUM = [sum(PST[:i]) for i in range(9)]
    period_of = lambda k: max(p for p in range(8) if CUM[p] <= k)
    WREG = {n: ((54, 55), (56, 57))[i] for i, n in enumerate(sorted(set(PST)))}
    if fused1:
        a("""s_sub_u32 s21, s20, 4
        s_and_b32 s22, s2, 7
        s_lshr_b32 s23, s2, 3
        s_and_b32 s24, s22, 3
        s_lshr_b32 s22, s22, 2
        s_lshl_b32 s22, s22, 3
        s_lshr_b32 s25, s23, 2
        s_add_u32 s22, s22, s25
        s_and_b32 s23, s23, 3
        s_lshl_b32 s22, s22, 2
        s_add_u32 s22, s22, s21""")
    else:
        a(f"""s_sub_u32 s21, s20, 4
        s_and_b32 s22, s2, 7
        s_lshr_b32 s23, s2, 3
        s_lshr_b32 s24, s22, 1
        s_and_b32 s22, s22, 1
        s_lshl_b32 s22, s22, 3
        s_lshr_b32 s25, s23, 2
        s_add_u32 s22, s22, s25
        s_and_b32 s23, s23, 3
        s_lshl_b32 s22, s22, 2
        s_add_u32 s22, s22, s21""")
    a("""s_lshl_b32 s25, s23, 2
    s_lshr_b32 s26, s23, 1
    s_add_u32 s25, s25, s26""")
    a.srd(8, 6, KV_BYTES, WS_KV)
    a.srd(12, 6, HF_BYTES, WS_HF)
    a.srd(48, 36, F * D * 2)
    a.srd(32, 6, 4 * 64 * 18 * 2048, WS_PART)
    a(f"""v_lshlrev_b32 v{V_L16}, 4, v0
    s_mul_i32 s38, s16, {KV_HEAD}
    s_mul_i32 s39, s21, {5 * 1024}
    s_add_u32 s38, s38, s39
    s_mul_i32 s40, s24, {1152 * 1152}
    s_lshl_b32 s41, s25, 6
    s_add_u32 s40, s40, s41
    s_mul_i32 s42, s22, {288 * 1024}
    s_mul_i32 s43, s24, {72 * 1024}
    s_add_u32 s42, s42, s43""")
    for n, (rs, rl) in WREG.items():
        a(f"s_mul_i32 s{rs}, s21, {4 * n * 1152}\ns_add_u32 s{rs}, s{rs}, s40\ns_mul_i32 s{rl}, s21, {4 * n * 320}")
    a("s_movk_i32 s43, 3277\ns_movk_i32 s44, 1152")
    for n in range(5):
        a(f"""v_add_u32 v10, {64 * n}, v0
        v_mul_u32_u24 v11, s43, v10
        v_lshrrev_b32 v11, 16, v11
        v_mul_u32_u24 v12, 20, v11
        v_sub_u32 v12, v10, v12
        v_lshlrev_b32 v12, 4, v12
        v_mad_u32_u24 v{V_PAT[n]}, v11, s44, v12""")
    vq = Queue()

    def kv_piece(c, i):
        if DUMMY is not None and i == 4:
            a(f"s_add_u32 s45, s39, {KVB + (c % R) * KVS + i * 1024}\ns_cmp_eq_u32 s21, 3\ns_cselect_b32 m0, {DUMMY[0 if c == 0 else 1]}, s45")
        else:
            a(f"s_add_u32 m0, s39, {KVB + (c % R) * KVS + i * 1024}")
        a(f"s_add_u32 s29, s38, {c * KV_CHUNK + i * 1024}")
        a(f"buffer_load_dwordx4 v{V_L16}, s[8:11], s29 offen{lf} lds")
        vq.issue(("kv", c))

    def w2_pieces(p):
        return -(-80 * PST[p] // 64)

    def w2_piece(p, n):
        rs, rl = WREG[PST[p]]
        lanes = min(64, 80 * PST[p] - 64 * n)
        a(f"s_add_u32 m0, s{rl}, {W2A[p % 2] + n * 1024}")
        a(f"s_add_u32 s29, s{rs}, {(CUM[p] * 16 + (n // 5) * 16) * 1152}")
        if lanes < 64:
            assert lanes <= 32
            a(f"s_mov_b32 exec_lo, {(1 << lanes) - 1:#x}\ns_mov_b32 exec_hi, 0")
        a(f"buffer_load_dwordx4 v{V_PAT[n % 5]}, s[48:51], s29 offen lds")
        if lanes < 64:
            a("s_mov_b64 exec, -1")
        vq.issue(("w2", p))

    def h_load(k):
        a(f"s_add_u32 s29, s42, {k * 1024}")
        a(f"buffer_load_dwordx4 {r(HF[k % len(HF)])}, v{V_L16}, s[12:15], s29 offen{lf}")
        vq.issue(("h", k))

    for i in range(5):
        kv_piece(0, i)
    for n in range(w2_pieces(0)):
        w2_piece(0, n)
    if not fused1:
        for k in range(HDIST):
            h_load(k)
    else:
        a(f"v_mov_b32 v10, {HFLAG}\nv_mov_b32 v11, 0\nds_write_b32 v10, v11")
    a(f"""v_and_b32 v10, 15, v0
    v_lshrrev_b32 v11, 2, v10
    v_lshrrev_b32 v12, 5, v0
    v_lshlrev_b32 v12, 2, v12
    v_add_u32 v11, v11, v12
    v_mul_u32_u24 v11, 320, v11
    v_and_b32 v12, 3, v10
    v_lshlrev_b32 v12, 3, v12
    v_bfe_u32 v13, v0, 4, 1
    v_lshlrev_b32 v13, 5, v13
    v_add3_u32 v11, v11, v12, v13
    v_add_u32 v{V_WA0}, {W2A[0]}, v11
    v_add_u32 v{V_WA1}, {W2A[1]}, v11""")
    def stamp(lane):
        if stamps:
            a(f"s_memtime s[52:53]\ns_waitcnt lgkmcnt(0)\ns_sub_u32 s52, s52, s60\nv_writelane_b32 v156, s52, {lane}")
    if stamps:
        a("v_mov_b32 v156, 0")
    stamp(34)
    a(f"s_waitcnt vmcnt({min(vq.need(('kv', 0)), vq.need(('w2', 0)))})")
    stamp(32)
    if fused1:
        a("s_waitcnt lgkmcnt(0)")
    a("s_barrier")
    stamp(33)
    phase_stamp(a, 6, "s20", L=L)
    if fused1:
        a(f"""s_add_u32 s92, s6, {WS_CNT}
        s_addc_u32 s93, s7, 0
        s_lshr_b32 s73, s22, 2
        s_lshl_b32 s73, s73, 2
        s_add_u32 s73, s73, s24
        s_add_u32 s73, s73, {p3.CNT_H}
        s_lshl_b32 s73, s73, 7
        s_cmp_eq_u32 s21, 0
        s_cbranch_scc0 {L}_nohs""")
        p3.signal(a, "s73", 1, base="s[92:93]", tmpv=(12, 13))
        a(f"{L}_nohs:")
        for i in range(5):
            kv_piece(1, i)
        for n in range(w2_pieces(1)):
            w2_piece(1, n)
        a(f"s_cmp_eq_u32 s21, 0\ns_cbranch_scc0 {L}_hspin")
        p3.poll(a, L, "h", [("s73", 4)], base="s[92:93]", tmpv=(12, 13), sleep=2)
        a(f"""v_mov_b32 v10, {HFLAG}
        v_mov_b32 v11, 1
        ds_write_b32 v10, v11
        s_waitcnt lgkmcnt(0)
        s_branch {L}_hok
        {L}_hspin:
        v_mov_b32 v10, {HFLAG}
        s_mov_b32 s94, {1 << 20}
        {L}_hspin2:
        ds_read_b32 v11, v10
        s_waitcnt lgkmcnt(0)
        v_readfirstlane_b32 s95, v11
        s_sub_u32 s94, s94, 1
        s_cmp_eq_u32 s94, 0
        s_cbranch_scc1 {L}_hok
        s_cmp_eq_u32 s95, 1
        s_cbranch_scc1 {L}_hok
        s_sleep 1
        s_branch {L}_hspin2
        {L}_hok:""")
        phase_stamp(a, 7, "s20", L=L)
        for k in range(HDIST):
            h_load(k)

    units = [(k, t) for k in range(NSTEP) for t in range(5)]
    lq = Queue()

    def w_reads(g):
        k, t = units[g]
        p = period_of(k)
        kk = k - CUM[p]
        ad = V_WA0 if p % 2 == 0 else V_WA1
        buf = WF[g % len(WF)]
        if "read" in off:
            lq.issue(); lq.issue(g)
            return
        a(f"ds_read_b64_tr_b16 v[{buf}:{buf + 1}], v{ad} offset:{kk * 5120 + t * 64}")
        lq.issue()
        a(f"ds_read_b64_tr_b16 v[{buf + 2}:{buf + 3}], v{ad} offset:{kk * 5120 + t * 64 + 2560}")
        lq.issue(g)

    nread = 0
    todo = []
    for g, (k, t) in enumerate(units):
        p = period_of(k)
        kk = k - CUM[p]
        if kk == 0 and t == 0:
            todo = []
            if p + 1 < 8 and not (fused1 and p == 0):
                todo = [("kv", p + 1, i) for i in range(5)] + [("w2", p + 1, n) for n in range(w2_pieces(p + 1))]
            while nread < g + WDIST:
                w_reads(nread)
                nread += 1
        if t == 0:
            a(f"s_waitcnt vmcnt({vq.need(('h', k))})")
        a(f"s_waitcnt lgkmcnt({lq.need(g)})")
        acc = FACC + 16 * t
        c = "0" if k == 0 else r(acc, 16)
        if "mfma" not in off:
            a(f"v_mfma_f32_32x32x16_bf16 {r(acc, 16)}, {r(WF[g % len(WF)])}, {r(HF[k % len(HF)])}, {c}")
        nxt = g + WDIST
        if nxt < len(units) and period_of(units[nxt][0]) == p and nread <= nxt:
            w_reads(nread)
            nread += 1
        if t == 4 and k + HDIST < NSTEP:
            h_load(k + HDIST)
        if t in (0, 2) and todo:
            item = todo.pop(0)
            if item[0] == "kv":
                kv_piece(item[1], item[2])
            else:
                w2_piece(item[1], item[2])
        if kk == PST[p] - 1 and t == 4:
            assert not todo
            stamp(40 + p)
            if p + 1 < 8:
                need = [vq.need(("w2", p + 1)), vq.need(("kv", p + 1))]
                a(f"s_waitcnt vmcnt({min(need)})")
            stamp(p)
            if p < 7 or not EARLY_STORE:
                a("s_barrier")
                stamp(16 + p)
                phase_stamp(a, 8 + p, "s20", L=L)
    a(f"""s_nop 7
    s_nop 7
    s_mul_i32 s43, s24, {64 * 18 * 2048}
    s_mul_i32 s44, s22, {18 * 2048}
    s_add_u32 s43, s43, s44
    s_lshl_b32 s44, s25, 11
    s_add_u32 s43, s43, s44
    s_and_b32 s44, s23, 1""")
    for t in range(5):
        A = FACC + 16 * t
        if t == 0:
            a(f"s_cmp_eq_u32 s44, 1\ns_cbranch_scc1 {L}_skip0")
        for f in range(2):
            for i in range(4):
                a(f"v_cvt_pk_bf16_f32 v{A + 4 * f + i}, v{A + 8 * f + 2 * i}, v{A + 8 * f + 2 * i + 1}")
            a(f"s_add_u32 s29, s43, {t * 2048 + f * 1024}")
            a(f"buffer_store_dwordx4 {r(A + 4 * f)}, v{V_L16}, s[32:35], s29 offen{sf}")
        if t == 0:
            a(f"{L}_skip0:")
    if EARLY_STORE:
        a("s_barrier")
        phase_stamp(a, 15, "s20", L=L)
    if stamps:
        a(f"""s_load_dwordx2 s[54:55], s[0:1], {KA_DBG}
        s_lshl_b32 s56, s2, 3
        s_add_u32 s56, s56, s20
        s_lshl_b32 s56, s56, 8
        s_add_u32 s56, s56, 8192
        v_lshlrev_b32 v157, 2, v0
        v_add_u32 v157, s56, v157
        s_waitcnt lgkmcnt(0)
        global_store_dword v157, v156, s[54:55]""")
    a("s_waitcnt vmcnt(0)")


def p2_body(a, L, timing=False, prio=None, fprio=None, sf="", off=(), fuse3=False, fused1=False):
    attn.head_and_block(a, "s2")
    a(f"s_waitcnt lgkmcnt(0)\ns_cmp_lt_u32 s20, 4\ns_cbranch_scc1 {L}_attn")
    if fprio is not None:
        a(f"s_setprio {fprio}")
    ffn_role(a, L, sf, off, timing, fused1)
    a(f"s_branch {L}_fin\n{L}_attn:")
    if "attn" in off:
        for i in range(9):
            a("s_barrier")
    else:
        mp = MAP_FUSED if fused1 else MAP_PLAIN
        attn.attn_role(a, L, R, False, lds_base=mp[0], kvs=mp[1], prio=prio, sf=sf, stamps=timing, lf=" sc1" if fused1 else "")
    a(f"{L}_fin:")
    if timing:
        attn.timing_store(a, "s60", "s20")
    if fuse3:
        phase_stamp(a, 16, "s20", L=L)
        a("s_barrier")
        phase_stamp(a, 17, "s20", L=L)
        a(f"""s_cmp_eq_u32 s20, 4
        s_cbranch_scc0 {L}_nosig
        s_add_u32 s92, s6, {WS_CNT}
        s_addc_u32 s93, s7, 0
        s_add_u32 s54, s17, {p3.CNT_O}
        s_lshl_b32 s54, s54, 7
        s_lshr_b32 s55, s22, 2
        s_add_u32 s55, s55, {p3.CNT_PART}
        s_lshl_b32 s55, s55, 7
        v_mov_b32 v2, s54
        v_mov_b32 v3, s55
        v_mov_b32 v4, 1
        s_mov_b64 exec, 1
        global_atomic_add v2, v4, s[92:93] sc1
        global_atomic_add v3, v4, s[92:93] sc1
        s_mov_b64 exec, -1
        {L}_nosig:""")
        p3.p3_body(a, L, "s20", True, "", " sc1")


def k2_kernel(L="k2_kernel", timing=False, prio=None, fprio=None, sf="", off=(), rt=False, pattern="E", vzero=True, fuse3=False):
    attn.PATTERN = pattern
    attn.VZERO = vzero
    if fuse3:
        sf = " sc1"
    a = Asm()
    if rt:
        rt_stamp_begin(a)
    if timing:
        a("s_memtime s[60:61]")
    a(f"""s_cmp_ge_u32 s2, 256
    s_cbranch_scc1 {L}_end
    s_load_dwordx2 s[6:7], s[0:1], {KA_WS}
    s_load_dwordx2 s[36:37], s[0:1], {KA_W2}
    v_lshrrev_b32 v5, 6, v0
    v_and_b32 v0, 63, v0
    s_nop 0
    v_readfirstlane_b32 s20, v5""")
    p2_body(a, L, timing, prio, fprio, sf, off, fuse3)
    if rt:
        a("s_waitcnt vmcnt(0)")
        rt_stamp_end(a, 1, L)
    a(f"{L}_end:\ns_endpgm")
    return kernel_head(L) + a.text() + kernel_desc(L, 256 if fuse3 else 160)
```

```python
from asmlib import *
from layout import *
from attn import r, fbits

WO_IMG = 576 * 128
P3_LDS = WO_IMG + 3 * 4096
NPART = 4
OFB = 112
ACC = (16, 32)
RING = [48 + 4 * i for i in range(8)]
EM = (80, 84)
XR = 88
CNT_O, CNT_PART, CNT_H = 0, 8, 24


class Queue:
    def __init__(self):
        self.n = 0
        self.pos = {}

    def issue(self, tag=None):
        self.n += 1
        if tag is not None:
            self.pos[tag] = self.n

    def need(self, tag):
        return self.n - self.pos[tag]


DBG_QKV, DBG_ZERO, DBG_H = 0, 64, 128


def poll(a, L, tag, conds, base="s[92:93]", tmpv=(2, 3), limit=1 << 16, sleep=8):
    va, vd = tmpv
    a(f"s_mov_b32 s94, {limit}\n{L}_poll_{tag}:")
    for n, c in enumerate(conds):
        a(f"v_mov_b32 v{va}, {c[0]}\nglobal_load_dword v{vd + n}, v{va}, {base} sc1")
    a("s_waitcnt vmcnt(0)")
    for n, c in enumerate(conds):
        a(f"v_readfirstlane_b32 s95, v{vd + n}\ns_nop 0")
        if len(c) > 2:
            a(f"s_lshr_b32 s95, s95, {c[2]}\ns_and_b32 s95, s95, 0xff")
        a(f"s_cmp_ge_u32 s95, {c[1]}\ns_cbranch_scc0 {L}_again_{tag}")
    a(f"""s_branch {L}_ok_{tag}
    {L}_again_{tag}:
    s_sub_u32 s94, s94, 1
    s_cmp_eq_u32 s94, 0
    s_cbranch_scc1 {L}_ok_{tag}
    s_sleep {sleep}
    s_branch {L}_poll_{tag}
    {L}_ok_{tag}:""")


def signal(a, off, inc, base="s[90:91]", tmpv=(2, 3)):
    a(f"""v_mov_b32 v{tmpv[0]}, {off}
    v_mov_b32 v{tmpv[1]}, {inc}
    s_mov_b64 exec, 1
    global_atomic_add v{tmpv[0]}, v{tmpv[1]}, {base} sc1
    s_mov_b64 exec, -1""")


def p3_body(a, L, wave="s20", fused=False, sf="", lf=""):
    a(f"""s_load_dwordx2 s[4:5], s[0:1], {KA_X}
    s_load_dwordx2 s[6:7], s[0:1], {KA_WS}
    s_load_dwordx2 s[36:37], s[0:1], {KA_WO}
    s_load_dwordx2 s[38:39], s[0:1], {KA_OUT}
    s_and_b32 s16, s2, 7
    s_lshr_b32 s17, s2, 3
    s_mul_i32 s18, s16, 63
    s_add_u32 s18, s18, 1
    s_lshr_b32 s18, s18, 1
    s_add_u32 s19, s16, 1
    s_mul_i32 s19, s19, 63
    s_add_u32 s19, s19, 1
    s_lshr_b32 s19, s19, 1
    s_add_u32 s18, s18, s17
    s_cmp_ge_u32 s18, s19
    s_cbranch_scc1 {L}_p3end""")
    a(f"""s_mul_i32 s21, s18, 7282
    s_lshr_b32 s21, s21, 16
    s_mul_i32 s22, s21, 9
    s_sub_u32 s22, s18, s22
    s_mul_i32 s23, s21, 3
    s_lshl_b32 s24, s21, 1
    s_add_u32 s24, s24, 8
    s_cmp_lt_u32 s21, 8
    s_cselect_b32 s23, s23, s24
    s_cselect_b32 s25, 3, 2
    v_lshrrev_b32 v2, 3, v0
    s_movk_i32 s27, 1152
    v_mul_lo_u32 v3, v2, s27
    v_bfe_u32 v4, v0, 4, 1
    v_bfe_u32 v5, v0, 2, 1
    v_xor_b32 v4, v4, v5
    v_lshlrev_b32 v4, 6, v4
    v_and_b32 v5, 3, v0
    v_lshlrev_b32 v5, 4, v5
    v_add3_u32 v3, v3, v4, v5
    v_lshlrev_b32 v1, 4, v0
    s_lshl_b32 s28, s22, 7
    s_mul_i32 s29, {wave}, {9 * 8 * 1152}
    s_add_u32 s28, s28, s29
    s_mul_i32 s30, {wave}, {9 * 1024}
    s_add_u32 s26, s23, {wave}
    s_waitcnt lgkmcnt(0)""")
    a.srd(44, 36, D * D * 2)
    vq = Queue()
    for q in range(9):
        a(f"s_add_u32 m0, s30, {q * 1024}\ns_add_u32 s29, s28, {q * 8 * 1152}")
        a("buffer_load_dwordx4 v3, s[44:47], s29 offen lds")
        vq.issue(("wo", q))
    a(f"s_cmp_ge_u32 {wave}, s25\ns_cbranch_scc1 {L}_p3idle")
    a.srd(12, 6, OF_BYTES, WS_OF)
    a.srd(8, 4, S * D * 2)
    a.srd(40, 6, NPART * 64 * 18 * 2048, WS_PART)
    a.srd(48, 38, S * D * 2)
    a(f"""s_lshl_b32 s31, {wave}, 12
    s_add_u32 s31, s31, {WO_IMG}
    s_mul_i32 s32, s26, {32 * 1152}
    s_lshl_b32 s34, s22, 7
    s_add_u32 s32, s32, s34
    s_mul_i32 s35, s26, {18 * 2048}
    s_lshl_b32 s34, s22, 12
    s_add_u32 s35, s35, s34
    s_lshl_b32 s33, s26, 15
    s_lshl_b32 s59, s26, 12
    s_add_u32 s59, s59, {OFR_OFF}
    v_lshrrev_b32 v6, 1, v2
    v_and_b32 v7, 7, v0""")
    for q in range(4):
        a(f"""v_add_u32 v8, {4 * q}, v6
        v_and_b32 v8, 7, v8
        v_xor_b32 v8, v8, v7
        v_lshlrev_b32 v8, 4, v8
        v_mad_u32_u24 v8, v2, s27, v8
        s_add_u32 m0, s31, {q * 1024}
        s_add_u32 s29, s32, {q * 8 * 1152}
        buffer_load_dwordx4 v8, s[8:11], s29 offen lds""")
        vq.issue(("x", q))
    a(f"""v_and_b32 v2, 15, v0
    v_lshrrev_b32 v3, 2, v2
    v_and_b32 v4, 3, v2
    v_lshlrev_b32 v4, 3, v4
    v_bfe_u32 v5, v0, 4, 1
    v_lshlrev_b32 v5, 5, v5
    v_add_u32 v4, v4, v5
    v_lshrrev_b32 v5, 5, v0
    v_lshrrev_b32 v6, 1, v3
    v_lshlrev_b32 v7, 6, v6
    v_lshlrev_b32 v8, 2, v5
    v_add_u32 v9, v8, v3
    v_lshlrev_b32 v9, 7, v9
    v_add3_u32 v10, v9, v4, v7
    v_xor_b32 v7, 64, v7
    v_add3_u32 v11, v9, v4, v7
    v_xor_b32 v7, 64, v7
    v_add_u32 v9, v8, v6
    v_mul_u32_u24 v9, 18, v9
    v_and_b32 v3, 1, v3
    v_add3_u32 v9, v9, v3, 16
    v_lshlrev_b32 v9, 7, v9
    v_add3_u32 v12, v9, v4, v7
    v_xor_b32 v7, 64, v7
    v_add3_u32 v13, v9, v4, v7
    v_add_u32 v14, {16 * 2304}, v10
    v_add_u32 v15, {16 * 2304}, v11""")
    a("""v_and_b32 v2, 31, v0
    v_lshrrev_b32 v3, 5, v0
    v_lshlrev_b32 v3, 2, v3
    v_sub_u32 v2, v2, v3
    v_mov_b32 v4, 0x3f80
    v_mov_b32 v5, 0x3f800000""")
    for f in range(2):
        for d in range(4):
            i0 = 2 * d
            n0 = 16 * f + (i0 & 3) + 8 * (i0 >> 2)
            a(f"""v_cmp_eq_u32 vcc, {n0}, v2
            v_cmp_eq_u32 s[52:53], {n0 + 1}, v2
            s_nop 0
            v_cndmask_b32 v6, 0, v4, vcc
            v_cndmask_b32 v7, 0, v5, s[52:53]
            v_or_b32 v{EM[f] + d}, v6, v7""")
    if fused:
        a(f"""s_cmp_eq_u32 {wave}, 0
        s_cbranch_scc0 {L}_p3nopoll
        s_add_u32 s92, s6, {WS_CNT}
        s_addc_u32 s93, s7, 0
        s_add_u32 s58, s23, s25
        s_sub_u32 s58, s58, 1
        s_lshr_b32 s54, s23, 3
        s_lshl_b32 s54, s54, 7
        s_lshr_b32 s55, s58, 3
        s_lshl_b32 s55, s55, 7
        s_lshr_b32 s56, s23, 2
        s_add_u32 s56, s56, {CNT_PART}
        s_lshl_b32 s56, s56, 7
        s_lshr_b32 s57, s58, 2
        s_add_u32 s57, s57, {CNT_PART}
        s_lshl_b32 s57, s57, 7""")
        poll(a, L, "p3", [("s54", 32), ("s55", 32), ("s56", 16), ("s57", 16)], tmpv=(2, 4))
        phase_stamp(a, 18, wave, wave=0, L=L, tmp=110)
        a(f"{L}_p3nopoll:\ns_waitcnt vmcnt(0)\ns_barrier")
        vq = Queue()
        vq.pos = {("wo", 8): 0, ("x", 3): 0}
    a("""v_and_b32 v2, 31, v0
    v_lshlrev_b32 v2, 2, v2
    v_lshrrev_b32 v3, 5, v0
    v_lshlrev_b32 v3, 9, v3
    v_add_u32 v2, v2, v3""")
    for k in range(32):
        a(f"s_add_u32 s29, s33, {k * 1024}")
        a(f"buffer_load_dwordx4 {r(OFB + 4 * k)}, v1, s[12:15], s29 offen{lf}")
        vq.issue(("of", k))
    for k in range(32, 36):
        for i in range(4):
            a(f"s_add_u32 s29, s59, {(8 * (k - 32) + i) * 128}")
            a(f"buffer_load_dword v{OFB + 4 * k + i}, v2, s[12:15], s29 offen{lf}")
            vq.issue(("of", k))
    if not fused:
        a(f"s_waitcnt vmcnt({min(63, vq.need(('wo', 8)))})\ns_barrier")
    first = [True, True]

    def mm(T, A, B):
        c = "0" if first[T] else r(ACC[T], 16)
        first[T] = False
        a(f"v_mfma_f32_32x32x16_bf16 {r(ACC[T], 16)}, {A}, {B}, {c}")
    units = [(j, T) for j in range(36) for T in range(2)]
    lq = Queue()

    def wread(g):
        j, T = units[g]
        buf = RING[g % 8]
        if j < 32:
            sw = T ^ (j & 1)
            reg = (10 + sw) if j < 16 else (14 + sw)
            off = (j % 16) * 2304
            second = 1024
        else:
            reg = 12 + T
            off = (j - 32) * 18432
            second = 4608
        a(f"ds_read_b64_tr_b16 v[{buf}:{buf + 1}], v{reg} offset:{off}")
        lq.issue()
        a(f"ds_read_b64_tr_b16 v[{buf + 2}:{buf + 3}], v{reg} offset:{off + second}")
        lq.issue(g)
    late = [(t, T, f) for t in range(NPART) for T in range(2) for f in range(2)]
    for g in range(5):
        wread(g)
    for g, (j, T) in enumerate(units):
        if T == 0:
            a(f"s_waitcnt vmcnt({min(63, vq.need(('of', j)))})")
        a(f"s_waitcnt lgkmcnt({lq.need(g)})")
        mm(T, r(RING[g % 8]), r(OFB + 4 * j))
        if g + 5 < len(units):
            wread(g + 5)
        if T == 1 and 2 <= j < 2 + len(late):
            t, TT, f = late[j - 2]
            a(f"s_add_u32 s29, s35, {t * 64 * 18 * 2048 + TT * 2048 + f * 1024}")
            a(f"buffer_load_dwordx4 {r(OFB + 4 * (j - 2))}, v1, s[40:43], s29 offen{lf}")
            vq.issue(("p", t, TT, f))
    phase_stamp(a, 19, wave, wave=0, L=L, tmp=110)
    a(f"""v_and_b32 v2, 31, v0
    v_lshrrev_b32 v3, 1, v2
    v_and_b32 v3, 7, v3
    v_lshlrev_b32 v2, 7, v2
    v_lshrrev_b32 v4, 5, v0
    v_lshlrev_b32 v4, 3, v4
    v_add3_u32 v2, v2, v4, s31""")
    for T in range(2):
        for f in range(2):
            for piece in range(2):
                c = 4 * T + 2 * f + piece
                d = XR + 8 * T + 4 * f + 2 * piece
                a(f"v_xor_b32 v5, {c}, v3\nv_lshlrev_b32 v5, 4, v5\nv_add_u32 v5, v5, v2")
                a(f"ds_read_b64 v[{d}:{d + 1}], v5")
    for n, (t, T, f) in enumerate(late):
        a(f"s_waitcnt vmcnt({vq.need(('p', t, T, f))})")
        mm(T, r(EM[f]), r(OFB + 4 * n))
    a("s_waitcnt lgkmcnt(0)")
    for T in range(2):
        for f in range(2):
            mm(T, r(EM[f]), r(XR + 8 * T + 4 * f))
    a("s_nop 7\ns_nop 7")
    for T in range(2):
        A = ACC[T]
        for g in range(4):
            a(f"v_cvt_pk_bf16_f32 v{A + 2 * g}, v{A + 4 * g}, v{A + 4 * g + 1}")
            a(f"v_cvt_pk_bf16_f32 v{A + 2 * g + 1}, v{A + 4 * g + 2}, v{A + 4 * g + 3}")
        for g in range(4):
            c = 4 * T + g
            a(f"v_xor_b32 v5, {c}, v3\nv_lshlrev_b32 v5, 4, v5\nv_add_u32 v5, v5, v2")
            a(f"ds_write_b64 v5, v[{A + 2 * g}:{A + 2 * g + 1}]")
    a(f"""v_lshrrev_b32 v2, 3, v0
    v_lshrrev_b32 v6, 1, v2
    v_and_b32 v7, 7, v0
    v_add_u32 v9, s31, v1
    s_waitcnt lgkmcnt(0)""")
    for q in range(4):
        a(f"ds_read_b128 {r(48 + 4 * q)}, v9 offset:{q * 1024}")
    for q in range(4):
        a(f"""v_add_u32 v8, {4 * q}, v6
        v_and_b32 v8, 7, v8
        v_xor_b32 v8, v8, v7
        v_lshlrev_b32 v8, 4, v8
        v_mad_u32_u24 v8, v2, s27, v8
        s_add_u32 s29, s32, {q * 8 * 1152}
        s_waitcnt lgkmcnt({3 - q})
        buffer_store_dwordx4 {r(48 + 4 * q)}, v8, s[48:51], s29 offen{sf}""")
    phase_stamp(a, 20, wave, wave=0, L=L, tmp=110)
    a(f"s_branch {L}_p3end\n{L}_p3idle:\ns_waitcnt vmcnt(0)\ns_barrier\n{L}_p3end:")


def k3_kernel(L="k3_kernel", timing=False, sf="", rt=False, lf=""):
    a = Asm()
    if rt:
        rt_stamp_begin(a)
    a(f"""s_cmp_ge_u32 s2, 256
    s_cbranch_scc1 {L}_end
    v_lshrrev_b32 v1, 6, v0
    v_and_b32 v0, 63, v0
    s_nop 0
    v_readfirstlane_b32 s20, v1
    s_nop 3""")
    p3_body(a, L, "s20", False, sf, lf)
    if rt:
        a("s_waitcnt vmcnt(0)")
        rt_stamp_end(a, 2, L)
    a(f"{L}_end:\ns_endpgm")
    return kernel_head(L) + a.text() + kernel_desc(L, 256)


K3_LDS = P3_LDS
K3_BLOCK = 512
```

```python
import struct
from asmlib import *
from layout import *


def fbits(x):
    return hex(struct.unpack("<I", struct.pack("<f", x))[0])


QA1, QA2, QB1, QB2 = 16, 20, 24, 28
KF1 = (32, 40)
KF2 = (36, 44)
VF = ((48, 52), (56, 60))
PA, PB = 64, 72
SA, SB = 80, 96
OA, OB = 112, 128
T0 = 144
V_DMA, V_K1, V_K2, V_V = 1, 2, 3, 4
NVGPR = 152
ACNT = 100000


def r(base, n=4):
    return f"v[{base}:{base + n - 1}]"


SHORT_K2 = True


def mf(d, a, b, c):
    cs = "0" if c is None else r(c, 16)
    if SHORT_K2 and a in KF2:
        return f"v_mfma_f32_32x32x8_bf16 {r(d, 16)}, {r(a, 2)}, {r(b, 2)}, {cs}"
    return f"v_mfma_f32_32x32x16_bf16 {r(d, 16)}, {r(a)}, {r(b)}, {cs}"


PATTERN = "E"
VZERO = True


def phase(a, Sx, Px, Sprev, Pprev, pv, sm, extra):
    e = lambda i: f"v_exp_f32 v{Sx + i}, v{Sx + i}"
    c = lambda i: f"v_cvt_pk_bf16_f32 v{Px + i}, v{Sx + 2 * i}, v{Sx + 2 * i + 1}"
    cp = f"v_cvt_pk_bf16_f32 v{Pprev + 7}, v{Sprev + 14}, v{Sprev + 15}"
    x0, x1 = extra.get(0, []), extra.get(1, [])
    if PATTERN == "A":
        seq = ([pv[0]] + x0 + [cp, e(0), e(1), e(2), c(0), e(3), sm[0]] + x1 + [e(4), c(1), e(5), e(6), c(2), e(7), sm[1],
               e(8), c(3), e(9), e(10), c(4), e(11), pv[1], e(12), c(5), e(13), e(14), c(6), e(15)])
    elif PATTERN == "B":
        seq = ([pv[0]] + (x0 or ["s_nop 0"]) + [cp, e(0), e(1), pv[1]] + x1 + [e(2), e(3), c(0), e(4), c(1), e(5), e(6), c(2), e(7),
               sm[0], e(8), e(9), e(10), sm[1], c(3), e(11), c(4), e(12), e(13), c(5), e(14), e(15), c(6)])
    elif PATTERN == "E":
        seq = ([pv[0]] + (x0 or ["s_nop 0"]) + [cp, e(0), e(1), pv[1]] + x1 + [e(2), e(3), c(0), e(4), c(1), e(5), sm[0],
               e(6), c(2), e(7), e(8), c(3), e(9), e(10), sm[1], c(4), e(11), e(12), c(5), e(13), e(14), c(6), e(15)])
    last = max(i for i, x in enumerate(seq) if x == sm[1])
    assert (len(seq) - 1 - last) + 4 >= 12, (PATTERN, len(seq) - 1 - last)
    for ins in seq:
        a(ins)


def head_and_block(a, wgid):
    a(f"""s_and_b32 s16, {wgid}, 7
    s_lshr_b32 s17, {wgid}, 3
    s_lshl_b32 s16, s16, 2
    s_and_b32 s18, s17, 3
    s_add_u32 s16, s16, s18
    s_lshr_b32 s17, s17, 2""")


def kv_dma(a, src, slot, srd="s[8:11]", voff=V_DMA, tmp="s29"):
    for i in range(5):
        a(f"s_add_u32 m0, {slot}, {i * 1024}")
        a(f"s_add_u32 {tmp}, {src}, {i * 1024}")
        a(f"buffer_load_dwordx4 v{voff}, {srd}, {tmp} offen lds")


def q_load_items(lf, srd="s[12:15]"):
    it = [f"""s_lshl_b32 s21, s16, 16
    s_lshl_b32 s22, s18, 10
    s_add_u32 s21, s21, s22
    buffer_load_dwordx4 {r(QA1)}, v{V_DMA}, {srd}, s21 offen{lf}""",
          f"buffer_load_dwordx4 {r(QB1)}, v{V_DMA}, {srd}, s21 offen offset:1024{lf}",
          f"""v_and_b32 v5, 31, v0
    v_lshlrev_b32 v{V_K2}, 2, v5"""]
    for x in (QA2, QB2):
        it += [f"v_mov_b32 v{x + i}, 0" for i in range(4)]
    it.append(f"""s_lshl_b32 s21, s16, 13
    s_lshl_b32 s22, s18, 7
    s_add_u32 s21, s21, s22
    s_add_u32 s21, s21, {QF1_BYTES}
    s_mov_b32 exec_hi, 0
    buffer_load_dword v{QA2}, v{V_K2}, {srd}, s21 offen{lf}
    buffer_load_dword v{QB2}, v{V_K2}, {srd}, s21 offen offset:128{lf}
    s_mov_b32 exec_hi, -1""")
    return it


def q_tile_index():
    return """s_lshl_b32 s18, s17, 3
    s_lshl_b32 s19, s20, 1
    s_add_u32 s18, s18, s19"""


def attn_role(a, L, R, own_dma, lds_base=0, prio=None, sf="", stamps=False, lf="", kvs=KV_CHUNK, preloaded=False, before_drain=None):
    a(f"v_lshlrev_b32 v{V_DMA}, 4, v0")
    a(q_tile_index())
    if own_dma:
        a.srd(8, 6, KV_BYTES, WS_KV)
    a.srd(12, 6, QF1_BYTES + QF2_BYTES, WS_QF1)
    a.srd(32, 6, OF_BYTES, WS_OF)
    if not preloaded:
        for ins in q_load_items(lf):
            a(ins)
    if own_dma:
        a(f"""s_mul_i32 s22, s16, {KV_HEAD}
        s_mul_i32 s23, s20, {5 * 1024}
        s_add_u32 s22, s22, s23
        s_add_u32 s23, s23, {lds_base}""")
        kv_dma(a, "s22", "s23")
        a(f"s_add_u32 s22, s22, {KV_CHUNK}\ns_add_u32 s28, s23, {KV_CHUNK}")
        kv_dma(a, "s22", "s28")
        a(f"s_add_u32 s22, s22, {KV_CHUNK}")
    VROW = ("v_min_u32 v7, 19, v5" if VZERO else
            "v_subrev_u32 v7, 20, v5\nv_cmp_gt_u32 vcc, 20, v5\ns_nop 1\nv_cndmask_b32 v7, v7, v5, vcc")
    if preloaded:
        a("v_and_b32 v5, 31, v0")
    a(f"""v_add_u32 v{V_K1}, {lds_base}, v{V_DMA}
    v_add_u32 v{V_K2}, {lds_base + KV_KF2}, v{V_K2}
    v_lshrrev_b32 v6, 5, v0
    v_mul_u32_u24 v6, 320, v6
    {VROW}
    v_lshlrev_b32 v7, 4, v7
    v_add_u32 v{V_V}, v6, v7
    v_add_u32 v{V_V}, {lds_base + KV_VT}, v{V_V}""")
    for b in (0, 1):
        a(f"v_mov_b32 v{KF2[b] + 1}, 0x3f80\nv_mov_b32 v{KF2[b] + 2}, 0\nv_mov_b32 v{KF2[b] + 3}, 0")
    for b in (0, 1):
        for f in (0, 1):
            for i in range(4):
                a(f"v_mov_b32 v{VF[b][f] + i}, 0")
    for i in range(8):
        a(f"v_mov_b32 v{PB + i}, 0")
    for i in range(16):
        a(f"v_mov_b32 v{OA + i}, 0\nv_mov_b32 v{OB + i}, 0")
    if stamps:
        a("v_mov_b32 v140, 0\ns_mov_b32 s50, 0")
    a(f"s_waitcnt vmcnt({5 if own_dma else 0})")
    if stamps:
        a("s_memtime s[52:53]\ns_waitcnt lgkmcnt(0)\ns_sub_u32 s52, s52, s60\nv_writelane_b32 v140, s52, 32")
    a("s_barrier")
    if stamps:
        a("s_memtime s[52:53]\ns_waitcnt lgkmcnt(0)\ns_sub_u32 s52, s52, s60\nv_writelane_b32 v140, s52, 33")
    a(f"ds_read_b128 {r(KF1[0])}, v{V_K1}\nds_read_b32 v{KF2[0]}, v{V_K2}\ns_waitcnt lgkmcnt(0)")
    a(mf(SA, KF1[0], QA1, None))
    a(mf(SB, KF1[0], QB1, None))
    a(mf(SA, KF2[0], QA2, SA))
    a(mf(SB, KF2[0], QB2, SB))
    a("s_nop 7\ns_nop 7")
    for (Sx, Q2, t) in ((SA, QA2, T0), (SB, QB2, T0 + 2)):
        a(f"v_max3_f32 v{t}, v{Sx}, v{Sx + 1}, v{Sx + 2}")
        for i in range(3, 15, 2):
            a(f"v_max3_f32 v{t}, v{t}, v{Sx + i}, v{Sx + i + 1}")
        a(f"v_max_f32 v{t}, v{t}, v{Sx + 15}")
        a(f"v_mov_b32 v{t + 1}, v{t}\ns_nop 1\nv_permlane32_swap_b32 v{t}, v{t + 1}\ns_nop 1")
        a(f"v_max_f32 v{t}, v{t}, v{t + 1}")
        a(f"v_add_f32 v{t}, {fbits(M_BIAS)}, v{t}")
        a(f"s_mov_b32 exec_hi, 0\nv_cvt_pk_bf16_f32 v{Q2 + 1}, -v{t}, 0\ns_mov_b32 exec_hi, -1")
    a("s_nop 1")
    a(mf(SA, KF1[0], QA1, None))
    a(mf(SA, KF2[0], QA2, SA))
    a("s_mov_b32 s30, 0\ns_mov_b32 s27, 0")
    if prio is not None:
        a(f"s_setprio {prio}")
    a("s_nop 7\ns_nop 3")
    a(f".p2align 6\n{L}_loop:")
    for i in range(8):
        kb, nb = i % 2, (i + 1) % 2
        if i == 7:
            if stamps:
                a("s_memtime s[52:53]\ns_waitcnt lgkmcnt(0)\ns_sub_u32 s52, s52, s60\ns_mov_b32 m0, s50\ns_nop 0\nv_writelane_b32 v140, s52, m0")
            a("s_waitcnt vmcnt(0)\ns_barrier" if own_dma else "s_barrier")
            if stamps:
                a("s_memtime s[52:53]\ns_waitcnt lgkmcnt(0)\ns_sub_u32 s52, s52, s60\ns_add_u32 m0, s50, 16\ns_nop 0\nv_writelane_b32 v140, s52, m0\ns_add_u32 s50, s50, 1")
            a(f"s_add_u32 s26, s27, {kvs}\ns_cmp_eq_u32 s26, {R * kvs}\ns_cselect_b32 s26, 0, s26")
            if own_dma:
                a(f"s_cmp_ge_u32 s30, 6\ns_cbranch_scc1 {L}_nodma")
                a(f"s_add_u32 s25, s26, {KV_CHUNK}\ns_cmp_eq_u32 s25, {R * KV_CHUNK}\ns_cselect_b32 s25, 0, s25\ns_add_u32 s25, s25, s23")
                kv_dma(a, "s22", "s25")
                a(f"s_add_u32 s22, s22, {KV_CHUNK}\n{L}_nodma:")
            a(f"s_sub_u32 s25, s26, s27\nv_add_u32 v{V_K1}, s25, v{V_K1}\nv_add_u32 v{V_K2}, s25, v{V_K2}")
        ki = (i + 1) % 8
        loads = {0: [f"ds_read_b128 {r(KF1[nb])}, v{V_K1} offset:{ki * 1024}",
                     f"ds_read_b32 v{KF2[nb]}, v{V_K2} offset:{ki * 128}"],
                 1: [f"ds_read_b128 {r(VF[kb][0])}, v{V_V} offset:{i * VT_TILE}",
                     f"ds_read_b128 {r(VF[kb][1])}, v{V_V} offset:{i * VT_TILE + 640}"]}
        phase(a, SA, PA, SB, PB, [mf(OB, VF[nb][0], PB, OB), mf(OB, VF[nb][1], PB + 4, OB)],
              [mf(SB, KF1[kb], QB1, None), mf(SB, KF2[kb], QB2, SB)], loads)
        if i == 7:
            a(f"v_add_u32 v{V_V}, s25, v{V_V}\ns_mov_b32 s27, s26")
        a("s_waitcnt lgkmcnt(0)")
        phase(a, SB, PB, SA, PA, [mf(OA, VF[kb][0], PA, OA), mf(OA, VF[kb][1], PA + 4, OA)],
              [mf(SA, KF1[nb], QA1, None), mf(SA, KF2[nb], QA2, SA)], {})
    a(f"s_add_u32 s30, s30, 1\ns_cmp_lt_u32 s30, 8\ns_cbranch_scc1 {L}_loop")
    a(f"s_nop 0\nv_cvt_pk_bf16_f32 v{PB + 7}, v{SB + 14}, v{SB + 15}\ns_nop 1")
    a(mf(OB, VF[1][0], PB, OB))
    a(mf(OB, VF[1][1], PB + 4, OB))
    a("s_nop 7\ns_nop 7")
    guard_and_fallback(a, L, lf)
    a(f"""s_lshl_b32 s21, s18, 5
    s_add_u32 s21, s21, s16
    s_lshl_b32 s19, s21, 10
    s_lshl_b32 s21, s21, 7
    s_add_u32 s21, s21, {OFR_OFF}
    v_lshrrev_b32 v{T0 + 2}, 2, v{V_DMA}""")
    for n, O in enumerate((OA, OB)):
        t = T0
        a(f"v_mov_b32 v{t}, v{O + 10}\nv_mov_b32 v{t + 1}, v{O + 10}\ns_nop 1\nv_permlane32_swap_b32 v{t}, v{t + 1}\ns_nop 1")
        a(f"v_rcp_f32 v{t}, v{t}\ns_nop 0")
        for i in range(10):
            a(f"v_mul_f32 v{O + i}, v{O + i}, v{t}")
        for i in range(5):
            a(f"v_cvt_pk_bf16_f32 v{O + i}, v{O + 2 * i}, v{O + 2 * i + 1}")
        a(f"buffer_store_dwordx4 {r(O)}, v{V_DMA}, s[32:35], s19 offen{sf}")
        a(f"s_mov_b32 exec_hi, 0\nbuffer_store_dword v{O + 4}, v{T0 + 2}, s[32:35], s21 offen{sf}\ns_mov_b32 exec_hi, -1")
        if n == 0:
            a(f"s_add_u32 s19, s19, {32 * 1024}\ns_add_u32 s21, s21, {32 * 128}")
    if stamps:
        a(f"""s_load_dwordx2 s[54:55], s[0:1], {KA_DBG}
        s_lshl_b32 s56, s2, 3
        s_add_u32 s56, s56, s20
        s_lshl_b32 s56, s56, 8
        s_add_u32 s56, s56, 8192
        v_lshlrev_b32 v141, 2, v0
        v_add_u32 v141, s56, v141
        s_waitcnt lgkmcnt(0)
        global_store_dword v141, v140, s[54:55]""")
    if before_drain is not None:
        before_drain()
    a("s_waitcnt vmcnt(0)")


def guard_and_fallback(a, L, lf):
    t = T0
    a("s_mov_b64 s[28:29], 0")
    for O in (OA, OB):
        a(f"v_mov_b32 v{t}, 0")
        for i in range(11):
            a(f"v_fma_f32 v{t}, v{O + i}, 0, v{t}")
        a(f"""v_mov_b32 v{t + 1}, v{O + 10}
        v_mov_b32 v{t + 2}, v{O + 10}
        v_cmp_u_f32 vcc, v{t}, v{t}
        s_nop 1
        s_or_b64 s[28:29], s[28:29], vcc
        v_permlane32_swap_b32 v{t + 1}, v{t + 2}
        s_nop 1
        v_cmp_nle_f32 vcc, {fbits(2.0 ** -100)}, v{t + 1}
        s_nop 1
        s_or_b64 s[28:29], s[28:29], vcc""")
    a(f"s_cmp_eq_u64 s[28:29], 0\ns_cbranch_scc1 {L}_norm")
    a.srd(8, 6, KV_BYTES, WS_KV)
    a(f"""v_and_b32 v5, 31, v0
    v_lshlrev_b32 v{V_K2}, 2, v5
    v_lshrrev_b32 v6, 5, v0
    v_mul_u32_u24 v6, 320, v6
    v_min_u32 v7, 19, v5
    v_lshlrev_b32 v7, 4, v7
    v_add_u32 v{V_V}, v6, v7
    v_mov_b32 v{KF2[0] + 1}, 0x3f803f80
    v_mov_b32 v{t + 4}, 0xff800000
    v_mov_b32 v{t + 5}, 0xff800000
    s_mul_i32 s22, s16, {KV_HEAD}
    s_mov_b32 exec_hi, 0
    v_mov_b32 v{QA2 + 1}, 0
    v_mov_b32 v{QB2 + 1}, 0
    s_mov_b32 exec_hi, -1""")

    def tile_offsets():
        a(f"""s_lshr_b32 s23, s30, 3
        s_mul_i32 s23, s23, {KV_CHUNK}
        s_add_u32 s23, s23, s22
        s_and_b32 s24, s30, 7
        s_lshl_b32 s25, s24, 10
        s_add_u32 s25, s25, s23
        s_lshl_b32 s26, s24, 7
        s_add_u32 s26, s26, s23
        s_add_u32 s26, s26, {KV_KF2}
        s_mul_i32 s27, s24, {VT_TILE}
        s_add_u32 s27, s27, s23
        s_add_u32 s27, s27, {KV_VT}
        buffer_load_dwordx4 {r(KF1[0])}, v{V_DMA}, s[8:11], s25 offen{lf}
        buffer_load_dword v{KF2[0]}, v{V_K2}, s[8:11], s26 offen{lf}""")

    def scores():
        a(mf(SA, KF1[0], QA1, None))
        a(mf(SB, KF1[0], QB1, None))
        a(mf(SA, KF2[0], QA2, SA))
        a(mf(SB, KF2[0], QB2, SB))
        a("s_nop 7\ns_nop 7\ns_nop 3")
    a(f"s_mov_b32 s30, 0\n{L}_slow1:")
    tile_offsets()
    a("s_waitcnt vmcnt(0)")
    scores()
    for (Sx, m) in ((SA, t + 4), (SB, t + 5)):
        for i in range(0, 16, 2):
            a(f"v_max3_f32 v{m}, v{m}, v{Sx + i}, v{Sx + i + 1}")
    a(f"s_add_u32 s30, s30, 1\ns_cmp_lt_u32 s30, 64\ns_cbranch_scc1 {L}_slow1")
    for (m, Q2) in ((t + 4, QA2), (t + 5, QB2)):
        a(f"""v_mov_b32 v{t}, v{m}
        s_nop 1
        v_permlane32_swap_b32 v{m}, v{t}
        s_nop 1
        v_max_f32 v{m}, v{m}, v{t}
        v_cvt_pk_bf16_f32 v{t}, v{m}, v{m}
        v_lshlrev_b32 v{t}, 16, v{t}
        v_sub_f32 v{t + 1}, v{m}, v{t}
        s_mov_b32 exec_hi, 0
        v_cvt_pk_bf16_f32 v{Q2 + 1}, -v{t}, -v{t + 1}
        s_mov_b32 exec_hi, -1""")
    for i in range(16):
        a(f"v_mov_b32 v{OA + i}, 0\nv_mov_b32 v{OB + i}, 0")
    a(f"s_mov_b32 s30, 0\n{L}_slow2:")
    tile_offsets()
    a(f"""buffer_load_dwordx4 {r(VF[0][0])}, v{V_V}, s[8:11], s27 offen{lf}
    buffer_load_dwordx4 {r(VF[0][1])}, v{V_V}, s[8:11], s27 offen offset:640{lf}
    s_waitcnt vmcnt(0)""")
    scores()
    for (Sx, Px) in ((SA, PA), (SB, PB)):
        for i in range(16):
            a(f"v_exp_f32 v{Sx + i}, v{Sx + i}")
        a("s_nop 0")
        for i in range(8):
            a(f"v_cvt_pk_bf16_f32 v{Px + i}, v{Sx + 2 * i}, v{Sx + 2 * i + 1}")
    a("s_nop 1")
    for (Px, O) in ((PA, OA), (PB, OB)):
        a(mf(O, VF[0][0], Px, O))
        a(mf(O, VF[0][1], Px + 4, O))
    a(f"s_nop 7\ns_add_u32 s30, s30, 1\ns_cmp_lt_u32 s30, 64\ns_cbranch_scc1 {L}_slow2")
    a(f"s_nop 7\ns_nop 7\n{L}_norm:")


def timing_store(a, start, wave):
    a(f"""s_memtime s[42:43]
    s_load_dwordx2 s[44:45], s[0:1], {KA_DBG}
    s_waitcnt lgkmcnt(0)
    s_sub_u32 s42, s42, {start}
    s_lshl_b32 s46, s2, 3
    s_add_u32 s46, s46, {wave}
    s_lshl_b32 s46, s46, 2
    v_mov_b32 v5, s46
    v_mov_b32 v6, s42
    global_store_dword v5, v6, s[44:45]
    s_waitcnt vmcnt(0)""")


def attn_kernel(L="attn_kernel", R=3, timing=False):
    a = Asm()
    if timing:
        a("s_memtime s[40:41]")
    a(f"""s_cmp_ge_u32 s2, 256
    s_cbranch_scc1 {L}_end
    s_load_dwordx2 s[6:7], s[0:1], {KA_WS}
    v_lshrrev_b32 v5, 6, v0
    v_and_b32 v0, 63, v0""")
    head_and_block(a, "s2")
    a("v_readfirstlane_b32 s20, v5\ns_waitcnt lgkmcnt(0)")
    attn_role(a, L, R, True)
    if timing:
        timing_store(a, "s40", "s20")
    a(f"{L}_end:\ns_endpgm")
    return kernel_head(L) + a.text() + kernel_desc(L, NVGPR)
```

```python
NAME = "parallel_sum__softmax_full_mha__dense_activation_relu__prompt"

KA_X, KA_WQKV, KA_WO, KA_BX, KA_W1, KA_W2, KA_OUT, KA_DBG, KA_WS = 0, 8, 16, 24, 32, 40, 48, 56, 64

LAYOUT_COMMENT = """; Kernarg layout for this problem (72 bytes, ptrs only, base s[0:1]):
"""


class Asm:
    def __init__(self):
        self.lines = []

    def __call__(self, s=""):
        for ln in s.split("\n"):
            ln = ln.strip()
            if ln:
                self.lines.append(("" if ln.endswith(":") else "    ") + ln)
        return self

    def text(self):
        return "\n".join(self.lines) + "\n"

    def srd(self, dst, ptr, nbytes, offset=0):
        if offset:
            self(f"s_add_u32 s{dst}, s{ptr}, {offset}")
            self(f"s_addc_u32 s{dst + 1}, s{ptr + 1}, 0")
            self(f"s_and_b32 s{dst + 1}, s{dst + 1}, 0xffff")
        else:
            self(f"s_mov_b32 s{dst}, s{ptr}")
            self(f"s_and_b32 s{dst + 1}, s{ptr + 1}, 0xffff")
        self(f"s_mov_b32 s{dst + 2}, {nbytes}")
        self(f"s_mov_b32 s{dst + 3}, 0x20000")


def kernel_head(label):
    return f".globl {label}\n.p2align 8\n.type {label},@function\n{label}:\n"


def kernel_desc(label, vgpr, sgpr=102, accum=None, wg_y=False):
    accum = accum if accum is not None else min(256, (vgpr + 3) // 4 * 4)
    y = "  .amdhsa_system_sgpr_workgroup_id_y 1\n" if wg_y else ""
    return f""".section .rodata,"a"
.p2align 6
.amdhsa_kernel {label}
  .amdhsa_next_free_vgpr {vgpr}
  .amdhsa_next_free_sgpr {sgpr}
  .amdhsa_accum_offset {accum}
  .amdhsa_group_segment_fixed_size 0
  .amdhsa_kernarg_size 72
  .amdhsa_user_sgpr_count 2
  .amdhsa_user_sgpr_kernarg_segment_ptr 1
  .amdhsa_system_sgpr_workgroup_id_x 1
{y}.end_amdhsa_kernel
.text
"""


def file_head(launches):
    s = LAYOUT_COMMENT
    for (label, g, b, lds) in launches:
        s += f"; @launch kernel={label} grid=({g[0]},{g[1]},{g[2]}) block=({b[0]},{b[1]},{b[2]}) lds={lds}\n"
    s += '.amdgcn_target "amdgcn-amd-amdhsa--gfx950"\n.text\n'
    return s


def rt_stamp_begin(a):
    a("s_memrealtime s[80:81]\ns_memtime s[82:83]")


def rt_stamp_end(a, kidx, L):
    a(f"""s_memrealtime s[84:85]
    s_memtime s[86:87]
    s_load_dwordx2 s[88:89], s[0:1], {KA_DBG}
    s_waitcnt lgkmcnt(0)
    s_sub_u32 s86, s86, s82
    s_lshl_b32 s90, s2, 4
    s_add_u32 s90, s90, {600000 + kidx * 4096}
    v_mov_b32 v2, s90
    v_mov_b32 v4, s80
    v_mov_b32 v5, s84
    v_mov_b32 v6, s86
    v_mov_b32 v7, s81
    global_store_dwordx4 v2, v[4:7], s[88:89]
    s_waitcnt vmcnt(0)""")


PHASE_STAMPS = False


def phase_stamp(a, idx, wave_sgpr, wave=4, L="", tmp=254):
    if not PHASE_STAMPS:
        return
    lab = f"{L}_ps{idx}_{wave}"
    a(f"""s_cmp_eq_u32 {wave_sgpr}, {wave}
    s_cbranch_scc0 {lab}
    s_memrealtime s[96:97]
    s_load_dwordx2 s[98:99], s[0:1], {KA_DBG}
    s_lshl_b32 s100, s2, 8
    s_add_u32 s100, s100, {700000 + idx * 4}
    s_waitcnt lgkmcnt(0)
    v_mov_b32 v{tmp}, s100
    v_mov_b32 v{tmp + 1}, s96
    global_store_dword v{tmp}, v{tmp + 1}, s[98:99]
    {lab}:""")


def code_prefetch(a, L, tag, wave_idx, nwaves, lines, sreg=76, vtmp=2, lds=None, vdst=None, first="0"):
    a(f"""s_getpc_b64 s[{sreg}:{sreg + 1}]
    {L}_pc{tag}:
    s_sub_u32 s{sreg}, s{sreg}, {L}_pc{tag}-{L}
    s_subb_u32 s{sreg + 1}, s{sreg + 1}, 0
    s_and_b32 s{sreg + 1}, s{sreg + 1}, 0xffff
    s_mov_b32 s{sreg + 2}, {L}_end-{L}
    s_mov_b32 s{sreg + 3}, 0x20000
    s_mul_i32 {wave_idx}, {wave_idx}, {lines * 128}
    s_add_u32 {wave_idx}, {wave_idx}, {first}
    v_lshlrev_b32 v{vtmp}, 7, v0
    s_mov_b32 exec_hi, 0
    s_mov_b32 exec_lo, {(1 << lines) - 1:#x}""")
    if lds is not None:
        a(f"s_mov_b32 m0, {lds}\ns_nop 0\nbuffer_load_dword v{vtmp}, s[{sreg}:{sreg + 3}], {wave_idx} offen lds")
    else:
        a(f"buffer_load_dword v{vdst}, v{vtmp}, s[{sreg}:{sreg + 3}], {wave_idx} offen")
    a("s_mov_b64 exec, -1")
```

```python
import struct
from asmlib import *
from layout import *


def fbits(x):
    return hex(struct.unpack("<I", struct.pack("<f", x))[0])


QA1, QA2, QB1, QB2 = 16, 20, 24, 28
KF1 = (32, 40)
KF2 = (36, 44)
VF = ((48, 52), (56, 60))
PA, PB = 64, 72
SA, SB = 80, 96
OA, OB = 112, 128
T0 = 144
V_DMA, V_K1, V_K2, V_V = 1, 2, 3, 4
NVGPR = 152
ACNT = 100000


def r(base, n=4):
    return f"v[{base}:{base + n - 1}]"


SHORT_K2 = True


def mf(d, a, b, c):
    cs = "0" if c is None else r(c, 16)
    if SHORT_K2 and a in KF2:
        return f"v_mfma_f32_32x32x8_bf16 {r(d, 16)}, {r(a, 2)}, {r(b, 2)}, {cs}"
    return f"v_mfma_f32_32x32x16_bf16 {r(d, 16)}, {r(a)}, {r(b)}, {cs}"


PATTERN = "E"
ALIGN8 = False
VZERO = True


def phase(a, Sx, Px, Sprev, Pprev, pv, sm, extra):
    e = lambda i: f"v_exp_f32{'_e64' if ALIGN8 else ''} v{Sx + i}, v{Sx + i}"
    c = lambda i: f"v_cvt_pk_bf16_f32 v{Px + i}, v{Sx + 2 * i}, v{Sx + 2 * i + 1}"
    cp = f"v_cvt_pk_bf16_f32 v{Pprev + 7}, v{Sprev + 14}, v{Sprev + 15}"
    x0, x1 = extra.get(0, []), extra.get(1, [])
    if PATTERN == "A":
        seq = ([pv[0]] + x0 + [cp, e(0), e(1), e(2), c(0), e(3), sm[0]] + x1 + [e(4), c(1), e(5), e(6), c(2), e(7), sm[1],
               e(8), c(3), e(9), e(10), c(4), e(11), pv[1], e(12), c(5), e(13), e(14), c(6), e(15)])
    elif PATTERN == "B":
        seq = ([pv[0]] + (x0 or ["s_nop 0"]) + [cp, e(0), e(1), pv[1]] + x1 + [e(2), e(3), c(0), e(4), c(1), e(5), e(6), c(2), e(7),
               sm[0], e(8), e(9), e(10), sm[1], c(3), e(11), c(4), e(12), e(13), c(5), e(14), e(15), c(6)])
    elif PATTERN == "E":
        seq = ([pv[0]] + (x0 or ["s_nop 0"]) + [cp, e(0), e(1), pv[1]] + x1 + [e(2), e(3), c(0), e(4), c(1), e(5), sm[0],
               e(6), c(2), e(7), e(8), c(3), e(9), e(10), sm[1], c(4), e(11), e(12), c(5), e(13), e(14), c(6), e(15)])
    last = max(i for i, x in enumerate(seq) if x == sm[1])
    assert (len(seq) - 1 - last) + 4 >= 12, (PATTERN, len(seq) - 1 - last)
    for ins in seq:
        a(ins)
        if ALIGN8 and ins == "s_nop 0":
            a("s_nop 0")


def head_and_block(a, wgid):
    a(f"""s_and_b32 s16, {wgid}, 7
    s_lshr_b32 s17, {wgid}, 3
    s_lshl_b32 s16, s16, 2
    s_and_b32 s18, s17, 3
    s_add_u32 s16, s16, s18
    s_lshr_b32 s17, s17, 2""")


def kv_dma(a, src, slot, srd="s[8:11]", voff=V_DMA, tmp="s29"):
    for i in range(5):
        a(f"s_add_u32 m0, {slot}, {i * 1024}")
        a(f"s_add_u32 {tmp}, {src}, {i * 1024}")
        a(f"buffer_load_dwordx4 v{voff}, {srd}, {tmp} offen lds")


def q_load_items(lf, srd="s[12:15]"):
    it = [f"""s_lshl_b32 s21, s16, 16
    s_lshl_b32 s22, s18, 10
    s_add_u32 s21, s21, s22
    buffer_load_dwordx4 {r(QA1)}, v{V_DMA}, {srd}, s21 offen{lf}""",
          f"buffer_load_dwordx4 {r(QB1)}, v{V_DMA}, {srd}, s21 offen offset:1024{lf}",
          f"""v_and_b32 v5, 31, v0
    v_lshlrev_b32 v{V_K2}, 2, v5"""]
    for x in (QA2, QB2):
        it += [f"v_mov_b32 v{x + i}, 0" for i in range(4)]
    it.append(f"""s_lshl_b32 s21, s16, 13
    s_lshl_b32 s22, s18, 7
    s_add_u32 s21, s21, s22
    s_add_u32 s21, s21, {QF1_BYTES}
    s_mov_b32 exec_hi, 0
    buffer_load_dword v{QA2}, v{V_K2}, {srd}, s21 offen{lf}
    buffer_load_dword v{QB2}, v{V_K2}, {srd}, s21 offen offset:128{lf}
    s_mov_b32 exec_hi, -1""")
    return it


def q_tile_index():
    return """s_lshl_b32 s18, s17, 3
    s_lshl_b32 s19, s20, 1
    s_add_u32 s18, s18, s19"""


def attn_role(a, L, R, own_dma, lds_base=0, prio=None, sf="", stamps=False, lf="", kvs=KV_CHUNK, preloaded=False, before_drain=None):
    a(f"v_lshlrev_b32 v{V_DMA}, 4, v0")
    a(q_tile_index())
    if own_dma:
        a.srd(8, 6, KV_BYTES, WS_KV)
    a.srd(12, 6, QF1_BYTES + QF2_BYTES, WS_QF1)
    a.srd(32, 6, OF_BYTES, WS_OF)
    if not preloaded:
        for ins in q_load_items(lf):
            a(ins)
    if own_dma:
        a(f"""s_mul_i32 s22, s16, {KV_HEAD}
        s_mul_i32 s23, s20, {5 * 1024}
        s_add_u32 s22, s22, s23
        s_add_u32 s23, s23, {lds_base}""")
        kv_dma(a, "s22", "s23")
        a(f"s_add_u32 s22, s22, {KV_CHUNK}\ns_add_u32 s28, s23, {KV_CHUNK}")
        kv_dma(a, "s22", "s28")
        a(f"s_add_u32 s22, s22, {KV_CHUNK}")
    VROW = ("v_min_u32 v7, 19, v5" if VZERO else
            "v_subrev_u32 v7, 20, v5\nv_cmp_gt_u32 vcc, 20, v5\ns_nop 1\nv_cndmask_b32 v7, v7, v5, vcc")
    if preloaded:
        a("v_and_b32 v5, 31, v0")
    a(f"""v_add_u32 v{V_K1}, {lds_base}, v{V_DMA}
    v_add_u32 v{V_K2}, {lds_base + KV_KF2}, v{V_K2}
    v_lshrrev_b32 v6, 5, v0
    v_mul_u32_u24 v6, 320, v6
    {VROW}
    v_lshlrev_b32 v7, 4, v7
    v_add_u32 v{V_V}, v6, v7
    v_add_u32 v{V_V}, {lds_base + KV_VT}, v{V_V}""")
    for b in (0, 1):
        a(f"v_mov_b32 v{KF2[b] + 1}, 0x3f80\nv_mov_b32 v{KF2[b] + 2}, 0\nv_mov_b32 v{KF2[b] + 3}, 0")
    for b in (0, 1):
        for f in (0, 1):
            for i in range(4):
                a(f"v_mov_b32 v{VF[b][f] + i}, 0")
    for i in range(8):
        a(f"v_mov_b32 v{PB + i}, 0")
    for i in range(16):
        a(f"v_mov_b32 v{OA + i}, 0\nv_mov_b32 v{OB + i}, 0")
    if stamps:
        a("v_mov_b32 v140, 0\ns_mov_b32 s50, 0")
    a(f"s_waitcnt vmcnt({5 if own_dma else 0})")
    if stamps:
        a("s_memtime s[52:53]\ns_waitcnt lgkmcnt(0)\ns_sub_u32 s52, s52, s60\nv_writelane_b32 v140, s52, 32")
    a("s_barrier")
    if stamps:
        a("s_memtime s[52:53]\ns_waitcnt lgkmcnt(0)\ns_sub_u32 s52, s52, s60\nv_writelane_b32 v140, s52, 33")
    a(f"ds_read_b128 {r(KF1[0])}, v{V_K1}\nds_read_b32 v{KF2[0]}, v{V_K2}\ns_waitcnt lgkmcnt(0)")
    a(mf(SA, KF1[0], QA1, None))
    a(mf(SB, KF1[0], QB1, None))
    a(mf(SA, KF2[0], QA2, SA))
    a(mf(SB, KF2[0], QB2, SB))
    a("s_nop 7\ns_nop 7")
    for (Sx, Q2, t) in ((SA, QA2, T0), (SB, QB2, T0 + 2)):
        a(f"v_max3_f32 v{t}, v{Sx}, v{Sx + 1}, v{Sx + 2}")
        for i in range(3, 15, 2):
            a(f"v_max3_f32 v{t}, v{t}, v{Sx + i}, v{Sx + i + 1}")
        a(f"v_max_f32 v{t}, v{t}, v{Sx + 15}")
        a(f"v_mov_b32 v{t + 1}, v{t}\ns_nop 1\nv_permlane32_swap_b32 v{t}, v{t + 1}\ns_nop 1")
        a(f"v_max_f32 v{t}, v{t}, v{t + 1}")
        a(f"v_add_f32 v{t}, {fbits(M_BIAS)}, v{t}")
        a(f"s_mov_b32 exec_hi, 0\nv_cvt_pk_bf16_f32 v{Q2 + 1}, -v{t}, 0\ns_mov_b32 exec_hi, -1")
    a("s_nop 1")
    a(mf(SA, KF1[0], QA1, None))
    a(mf(SA, KF2[0], QA2, SA))
    a("s_mov_b32 s30, 0\ns_mov_b32 s27, 0")
    if prio is not None:
        a(f"s_setprio {prio}")
    a("s_nop 7\ns_nop 3")
    a(f".p2align 6\n{L}_loop:")
    for i in range(8):
        kb, nb = i % 2, (i + 1) % 2
        if i == 7:
            if stamps:
                a("s_memtime s[52:53]\ns_waitcnt lgkmcnt(0)\ns_sub_u32 s52, s52, s60\ns_mov_b32 m0, s50\ns_nop 0\nv_writelane_b32 v140, s52, m0")
            a("s_waitcnt vmcnt(0)\ns_barrier" if own_dma else "s_barrier")
            if stamps:
                a("s_memtime s[52:53]\ns_waitcnt lgkmcnt(0)\ns_sub_u32 s52, s52, s60\ns_add_u32 m0, s50, 16\ns_nop 0\nv_writelane_b32 v140, s52, m0\ns_add_u32 s50, s50, 1")
            a(f"s_add_u32 s26, s27, {kvs}\ns_cmp_eq_u32 s26, {R * kvs}\ns_cselect_b32 s26, 0, s26")
            if own_dma:
                a(f"s_cmp_ge_u32 s30, 6\ns_cbranch_scc1 {L}_nodma")
                a(f"s_add_u32 s25, s26, {KV_CHUNK}\ns_cmp_eq_u32 s25, {R * KV_CHUNK}\ns_cselect_b32 s25, 0, s25\ns_add_u32 s25, s25, s23")
                kv_dma(a, "s22", "s25")
                a(f"s_add_u32 s22, s22, {KV_CHUNK}\n{L}_nodma:")
            a(f"s_sub_u32 s25, s26, s27\nv_add_u32 v{V_K1}, s25, v{V_K1}\nv_add_u32 v{V_K2}, s25, v{V_K2}")
        ki = (i + 1) % 8
        loads = {0: [f"ds_read_b128 {r(KF1[nb])}, v{V_K1} offset:{ki * 1024}",
                     f"ds_read_b32 v{KF2[nb]}, v{V_K2} offset:{ki * 128}"],
                 1: [f"ds_read_b128 {r(VF[kb][0])}, v{V_V} offset:{i * VT_TILE}",
                     f"ds_read_b128 {r(VF[kb][1])}, v{V_V} offset:{i * VT_TILE + 640}"]}
        phase(a, SA, PA, SB, PB, [mf(OB, VF[nb][0], PB, OB), mf(OB, VF[nb][1], PB + 4, OB)],
              [mf(SB, KF1[kb], QB1, None), mf(SB, KF2[kb], QB2, SB)], loads)
        if i == 7:
            a(f"v_add_u32 v{V_V}, s25, v{V_V}\ns_mov_b32 s27, s26")
        a("s_waitcnt lgkmcnt(0)")
        if ALIGN8:
            a("s_nop 0")
        phase(a, SB, PB, SA, PA, [mf(OA, VF[kb][0], PA, OA), mf(OA, VF[kb][1], PA + 4, OA)],
              [mf(SA, KF1[nb], QA1, None), mf(SA, KF2[nb], QA2, SA)], {})
    a(f"s_add_u32 s30, s30, 1\ns_cmp_lt_u32 s30, 8\ns_cbranch_scc1 {L}_loop")
    a(f"s_nop 0\nv_cvt_pk_bf16_f32 v{PB + 7}, v{SB + 14}, v{SB + 15}\ns_nop 1")
    a(mf(OB, VF[1][0], PB, OB))
    a(mf(OB, VF[1][1], PB + 4, OB))
    a("s_nop 7\ns_nop 7")
    guard_and_fallback(a, L, lf)
    a(f"""s_lshl_b32 s21, s18, 5
    s_add_u32 s21, s21, s16
    s_lshl_b32 s19, s21, 10
    s_lshl_b32 s21, s21, 7
    s_add_u32 s21, s21, {OFR_OFF}
    v_lshrrev_b32 v{T0 + 2}, 2, v{V_DMA}""")
    for n, O in enumerate((OA, OB)):
        t = T0
        a(f"v_mov_b32 v{t}, v{O + 10}\nv_mov_b32 v{t + 1}, v{O + 10}\ns_nop 1\nv_permlane32_swap_b32 v{t}, v{t + 1}\ns_nop 1")
        a(f"v_rcp_f32 v{t}, v{t}\ns_nop 0")
        for i in range(10):
            a(f"v_mul_f32 v{O + i}, v{O + i}, v{t}")
        for i in range(5):
            a(f"v_cvt_pk_bf16_f32 v{O + i}, v{O + 2 * i}, v{O + 2 * i + 1}")
        a(f"buffer_store_dwordx4 {r(O)}, v{V_DMA}, s[32:35], s19 offen{sf}")
        a(f"s_mov_b32 exec_hi, 0\nbuffer_store_dword v{O + 4}, v{T0 + 2}, s[32:35], s21 offen{sf}\ns_mov_b32 exec_hi, -1")
        if n == 0:
            a(f"s_add_u32 s19, s19, {32 * 1024}\ns_add_u32 s21, s21, {32 * 128}")
    if stamps:
        a(f"""s_load_dwordx2 s[54:55], s[0:1], {KA_DBG}
        s_lshl_b32 s56, s2, 3
        s_add_u32 s56, s56, s20
        s_lshl_b32 s56, s56, 8
        s_add_u32 s56, s56, 8192
        v_lshlrev_b32 v141, 2, v0
        v_add_u32 v141, s56, v141
        s_waitcnt lgkmcnt(0)
        global_store_dword v141, v140, s[54:55]""")
    if before_drain is not None:
        before_drain()
    a("s_waitcnt vmcnt(0)")


def guard_and_fallback(a, L, lf):
    t = T0
    a("s_mov_b64 s[28:29], 0")
    for O in (OA, OB):
        a(f"v_mov_b32 v{t}, 0")
        for i in range(11):
            a(f"v_fma_f32 v{t}, v{O + i}, 0, v{t}")
        a(f"""v_mov_b32 v{t + 1}, v{O + 10}
        v_mov_b32 v{t + 2}, v{O + 10}
        v_cmp_u_f32 vcc, v{t}, v{t}
        s_nop 1
        s_or_b64 s[28:29], s[28:29], vcc
        v_permlane32_swap_b32 v{t + 1}, v{t + 2}
        s_nop 1
        v_cmp_nle_f32 vcc, {fbits(2.0 ** -100)}, v{t + 1}
        s_nop 1
        s_or_b64 s[28:29], s[28:29], vcc""")
    a(f"s_cmp_eq_u64 s[28:29], 0\ns_cbranch_scc1 {L}_norm")
    a.srd(8, 6, KV_BYTES, WS_KV)
    a(f"""v_and_b32 v5, 31, v0
    v_lshlrev_b32 v{V_K2}, 2, v5
    v_lshrrev_b32 v6, 5, v0
    v_mul_u32_u24 v6, 320, v6
    v_min_u32 v7, 19, v5
    v_lshlrev_b32 v7, 4, v7
    v_add_u32 v{V_V}, v6, v7
    v_mov_b32 v{KF2[0] + 1}, 0x3f803f80
    v_mov_b32 v{t + 4}, 0xff800000
    v_mov_b32 v{t + 5}, 0xff800000
    s_mul_i32 s22, s16, {KV_HEAD}
    s_mov_b32 exec_hi, 0
    v_mov_b32 v{QA2 + 1}, 0
    v_mov_b32 v{QB2 + 1}, 0
    s_mov_b32 exec_hi, -1""")

    def tile_offsets():
        a(f"""s_lshr_b32 s23, s30, 3
        s_mul_i32 s23, s23, {KV_CHUNK}
        s_add_u32 s23, s23, s22
        s_and_b32 s24, s30, 7
        s_lshl_b32 s25, s24, 10
        s_add_u32 s25, s25, s23
        s_lshl_b32 s26, s24, 7
        s_add_u32 s26, s26, s23
        s_add_u32 s26, s26, {KV_KF2}
        s_mul_i32 s27, s24, {VT_TILE}
        s_add_u32 s27, s27, s23
        s_add_u32 s27, s27, {KV_VT}
        buffer_load_dwordx4 {r(KF1[0])}, v{V_DMA}, s[8:11], s25 offen{lf}
        buffer_load_dword v{KF2[0]}, v{V_K2}, s[8:11], s26 offen{lf}""")

    def scores():
        a(mf(SA, KF1[0], QA1, None))
        a(mf(SB, KF1[0], QB1, None))
        a(mf(SA, KF2[0], QA2, SA))
        a(mf(SB, KF2[0], QB2, SB))
        a("s_nop 7\ns_nop 7\ns_nop 3")
    a(f"s_mov_b32 s30, 0\n{L}_slow1:")
    tile_offsets()
    a("s_waitcnt vmcnt(0)")
    scores()
    for (Sx, m) in ((SA, t + 4), (SB, t + 5)):
        for i in range(0, 16, 2):
            a(f"v_max3_f32 v{m}, v{m}, v{Sx + i}, v{Sx + i + 1}")
    a(f"s_add_u32 s30, s30, 1\ns_cmp_lt_u32 s30, 64\ns_cbranch_scc1 {L}_slow1")
    for (m, Q2) in ((t + 4, QA2), (t + 5, QB2)):
        a(f"""v_mov_b32 v{t}, v{m}
        s_nop 1
        v_permlane32_swap_b32 v{m}, v{t}
        s_nop 1
        v_max_f32 v{m}, v{m}, v{t}
        v_cvt_pk_bf16_f32 v{t}, v{m}, v{m}
        v_lshlrev_b32 v{t}, 16, v{t}
        v_sub_f32 v{t + 1}, v{m}, v{t}
        s_mov_b32 exec_hi, 0
        v_cvt_pk_bf16_f32 v{Q2 + 1}, -v{t}, -v{t + 1}
        s_mov_b32 exec_hi, -1""")
    for i in range(16):
        a(f"v_mov_b32 v{OA + i}, 0\nv_mov_b32 v{OB + i}, 0")
    a(f"s_mov_b32 s30, 0\n{L}_slow2:")
    tile_offsets()
    a(f"""buffer_load_dwordx4 {r(VF[0][0])}, v{V_V}, s[8:11], s27 offen{lf}
    buffer_load_dwordx4 {r(VF[0][1])}, v{V_V}, s[8:11], s27 offen offset:640{lf}
    s_waitcnt vmcnt(0)""")
    scores()
    for (Sx, Px) in ((SA, PA), (SB, PB)):
        for i in range(16):
            a(f"v_exp_f32 v{Sx + i}, v{Sx + i}")
        a("s_nop 0")
        for i in range(8):
            a(f"v_cvt_pk_bf16_f32 v{Px + i}, v{Sx + 2 * i}, v{Sx + 2 * i + 1}")
    a("s_nop 1")
    for (Px, O) in ((PA, OA), (PB, OB)):
        a(mf(O, VF[0][0], Px, O))
        a(mf(O, VF[0][1], Px + 4, O))
    a(f"s_nop 7\ns_add_u32 s30, s30, 1\ns_cmp_lt_u32 s30, 64\ns_cbranch_scc1 {L}_slow2")
    a(f"s_nop 7\ns_nop 7\n{L}_norm:")


def timing_store(a, start, wave):
    a(f"""s_memtime s[42:43]
    s_load_dwordx2 s[44:45], s[0:1], {KA_DBG}
    s_waitcnt lgkmcnt(0)
    s_sub_u32 s42, s42, {start}
    s_lshl_b32 s46, s2, 3
    s_add_u32 s46, s46, {wave}
    s_lshl_b32 s46, s46, 2
    v_mov_b32 v5, s46
    v_mov_b32 v6, s42
    global_store_dword v5, v6, s[44:45]
    s_waitcnt vmcnt(0)""")


def attn_kernel(L="attn_kernel", R=3, timing=False):
    a = Asm()
    if timing:
        a("s_memtime s[40:41]")
    a(f"""s_cmp_ge_u32 s2, 256
    s_cbranch_scc1 {L}_end
    s_load_dwordx2 s[6:7], s[0:1], {KA_WS}
    v_lshrrev_b32 v5, 6, v0
    v_and_b32 v0, 63, v0""")
    head_and_block(a, "s2")
    a("v_readfirstlane_b32 s20, v5\ns_waitcnt lgkmcnt(0)")
    attn_role(a, L, R, True)
    if timing:
        timing_store(a, "s40", "s20")
    a(f"{L}_end:\ns_endpgm")
    return kernel_head(L) + a.text() + kernel_desc(L, NVGPR)
```

```python
from asmlib import *
from layout import *
import k1, k2, p3, attn

FUSED_LDS = 160 * 1024


def fused_kernel(L=NAME + "_kernel", rt=False, k1kw=None, pattern="E", steps=(4, 10, 10, 10, 10, 10, 10, 8), shortk=True, half=True, p1sf=" sc1", p3new=False, qpre=True, outsf=" sc1", f16=True, single=True, sleep=2, codepf=1, keep=False, al8=False, hyb=False, hdist=4, wdist=4, prio=None, fprio=None):
    k1.CODE_PF = codepf
    attn.ALIGN8 = al8
    k1.KEEP_PTRS = keep
    k2.P3_HYB = hyb and not p3new
    p3.KEPT = keep
    k2.HDIST, k2.WDIST = hdist, wdist
    p3.SINGLE_POLL = single
    p3.SLEEP = sleep
    k2.SHAPE16 = f16
    k2.OUT_SF = outsf
    k2.P3_NEW = p3new
    k2.Q_PRE = qpre
    k1.Q_PRE = qpre
    k2.HALF_UNIT = half
    p3.HALF_UNIT = half
    attn.SHORT_K2 = shortk
    attn.PATTERN = pattern
    attn.VZERO = True
    a = Asm()
    if rt:
        rt_stamp_begin(a)
    a(f"s_cmp_ge_u32 s2, 256\ns_cbranch_scc1 {L}_end")
    k1.p1_body(a, L, sf=p1sf, fused=True, **(k1kw or {}))
    if keep:
        a(f"{L}_p2:\ns_mov_b32 s20, s26\ns_mov_b32 s36, s84\ns_mov_b32 s37, s85")
    else:
        a(f"""{L}_p2:
        s_mov_b32 s20, s26
        s_load_dwordx2 s[6:7], s[0:1], {KA_WS}
        s_load_dwordx2 s[36:37], s[0:1], {KA_W2}""")
    k2.p2_body(a, L, sf=" sc1", fuse3=True, fused1=True, steps=steps, prio=prio, fprio=fprio)
    if rt:
        a("s_waitcnt vmcnt(0)")
        rt_stamp_end(a, 0, L)
    a(f"{L}_end:\ns_endpgm")
    return kernel_head(L) + a.text() + kernel_desc(L, 256)
```

```python
import struct
from asmlib import *
from layout import *
import p3
import attn
import qkv3


def fbits(x):
    return hex(struct.unpack("<I", struct.pack("<f", x))[0])


NS = 13
SLOT = 36864
NSLOT = 4
PF2_SLOT = 6
LB = 0
WB_WGS = 8
Q_WARM = False
LN_PIPE = 0
X_LOOP = False
KEEP_PTRS = True
Q_PRE = True
ADJ3 = True
QKV_HACK = False
L2WARM = 4
PIN_STORES = True
PIN = (25, 29)
CODE_PF = 1
XB = 112
ACC = (16, 32, 48, 64, 80)
WF = (96, 100, 104, 108)
V_L16, V_VT, V_V3, V_QK, V_SC, V_CONST = 1, 2, 3, 4, 5, 6
V_AQ, V_AX, V_AV = 7, 8, 9
V_AS, V_AD0, V_AD1 = 10, 11, 12
V_T0 = 13


def r(base, n=4):
    return f"v[{base}:{base + n - 1}]"


def slot_kind(j):
    if j < 4:
        return ("q", j)
    if j == 4:
        return ("s", 0)
    return ("d", (j - 5) // 2, (j - 5) % 2)


def loader(a, L, timing=False, pf="", rot=True, wb=(), fused=False):
    a("s_sub_u32 s28, s26, 4\nv_mov_b32 v20, 0")
    phase_stamp(a, 0, "s26", L=L)
    if fused and CODE_PF == 1:
        a("s_lshr_b32 s73, s2, 3\ns_lshl_b32 s73, s73, 2\ns_add_u32 s73, s73, s28")
        code_prefetch(a, L, "a", "s73", 128, 6, vdst=21)
    a(f"""s_cmp_eq_u32 s2, 0
    s_cbranch_scc0 {L}_nozero
    s_cmp_eq_u32 s28, 0
    s_cbranch_scc0 {L}_nozero
    v_lshlrev_b32 v2, 7, v0
    v_add_u32 v2, {WS_CNT}, v2
    buffer_store_dword v20, v2, s[12:15], 0 offen{" sc1" if fused else ""}
    v_add_u32 v2, 8192, v2
    buffer_store_dword v20, v2, s[12:15], 0 offen{" sc1" if fused else ""}
    {L}_nozero:""")
    if timing:
        a("s_memtime s[68:69]\ns_waitcnt lgkmcnt(0)\ns_sub_u32 s72, s68, s60\nv_writelane_b32 v20, s72, 38")
    a(f"""s_lshl_b32 s29, s24, 2
    s_add_u32 s29, s29, s28
    s_mul_i32 s29, s29, {32 * 1152}
    s_mul_i32 s41, s28, {SLOT}
    s_add_u32 s41, s41, {LB}
    s_movk_i32 s30, 29128
    s_movk_i32 s31, 1152""")
    if rot:
        a("s_mul_i32 s33, s25, 9\ns_lshr_b32 s33, s33, 2")
    else:
        a("s_mov_b32 s33, 0")
    xpiece = """s_lshl_b32 s34, s33, 6
        v_add_u32 v2, s34, v0
        v_mul_u32_u24 v3, s30, v2
        v_lshrrev_b32 v3, 21, v3
        v_mul_u32_u24 v4, 72, v3
        v_sub_u32 v4, v2, v4
        v_lshrrev_b32 v5, 1, v3
        v_xor_b32 v5, v5, v4
        v_and_b32 v5, 7, v5
        v_and_b32 v4, 0x78, v4
        v_or_b32 v4, v4, v5
        v_lshlrev_b32 v4, 4, v4
        v_mad_u32_u24 v4, v3, s31, v4
        s_lshl_b32 s34, s33, 10
        s_add_u32 m0, s41, s34
        s_add_u32 s33, s33, 1
        buffer_load_dwordx4 v4, s[8:11], s29 offen lds
        s_cmp_eq_u32 s33, 36
        s_cselect_b32 s33, 0, s33"""
    if X_LOOP:
        a(f"s_mov_b32 s35, 36\n{L}_xl:")
        a(xpiece)
        a(f"s_sub_u32 s35, s35, 1\ns_cmp_lg_u32 s35, 0\ns_cbranch_scc1 {L}_xl")
    else:
        for q in range(36):
            a(xpiece)
    if ADJ3:
        a("s_movk_i32 s30, 3456")
        qkv3.loader_offsets(a, 6)
    else:
        a(f"""v_lshrrev_b32 v2, 4, v0
        s_movk_i32 s30, 3456
        v_mul_lo_u32 v2, v2, s30
        v_and_b32 v3, 15, v0
        v_lshrrev_b32 v4, 4, v0
        v_lshlrev_b32 v4, 2, v4
        v_xor_b32 v3, v3, v4
        v_mul_u32_u24 v5, 13108, v3
        v_lshrrev_b32 v5, 16, v5
        v_mul_u32_u24 v7, 5, v5
        v_sub_u32 v7, v3, v7
        v_lshlrev_b32 v6, 4, v7
        v_cmp_eq_u32 vcc, 4, v7
        v_mov_b32 v9, 56
        {'v_and_b32 v11, 1, v5' if QKV_HACK else 'v_mov_b32 v11, v5'}
        v_mul_u32_u24 v10, 1152, v11
        v_cndmask_b32 v6, v6, v9, vcc
        v_add_u32 v6, v6, v10
        s_xor_b32 s33, s25, 1
        s_sub_u32 s33, s33, s25
        s_mul_i32 s33, s33, 72
        v_cmp_eq_u32 vcc, 1, v5
        v_mov_b32 v9, s33
        s_nop 0
        v_cndmask_b32 v9, 0, v9, vcc
        v_add_u32 v6, v6, v9
        v_cmp_eq_u32 vcc, 15, v3
        v_mov_b32 v9, 0x40000000
        s_nop 0
        v_cndmask_b32 v6, v6, v9, vcc
        v_add_u32 v6, v6, v2""")
    a(f"""s_movk_i32 s31, 9216
    v_lshrrev_b32 v2, 2, v0
    v_mul_lo_u32 v2, v2, s31
    v_and_b32 v3, 3, v0
    v_lshlrev_b32 v3, 4, v3
    v_add_u32 v7, v2, v3
    v_lshrrev_b32 v2, 3, v0
    v_mul_lo_u32 v8, v2, s31
    v_bfe_u32 v2, v0, 4, 1
    v_bfe_u32 v4, v0, 2, 1
    v_xor_b32 v2, v2, v4
    v_lshlrev_b32 v2, 6, v2
    v_add3_u32 v8, v8, v2, v3""")
    a(f"""s_mul_i32 s32, s28, {9 * 4 * 3456}
    s_mul_i32 s33, s25, {216 if ADJ3 else 72}
    s_add_u32 s32, s32, s33
    s_and_b32 s33, s25, 1
    s_mul_i32 s35, s25, 576
    s_mul_i32 s34, s28, {9 * 16 * 9216}
    s_add_u32 s34, s34, s35
    s_cmp_eq_u32 s33, 0
    s_cselect_b32 s36, 512, 0
    s_add_u32 s34, s34, s36
    s_mul_i32 s40, s28, {9 * 8 * 9216}
    s_add_u32 s40, s40, s35
    s_lshl_b32 s36, s33, 6
    s_add_u32 s40, s40, s36
    s_mul_i32 s41, s28, {9 * 1024}""")

    def issue(j):
        kind = slot_kind(j)
        base = LB + (j % NSLOT) * SLOT
        for n in range(9):
            a(f"s_add_u32 m0, s41, {base + n * 1024}")
            if kind[0] == "q":
                a(f"s_add_u32 s29, s32, {(kind[1] * 144 + n * 4) * 3456}")
                a("buffer_load_dwordx4 v6, s[16:19], s29 offen lds")
            elif kind[0] == "s":
                a(f"s_add_u32 s29, s34, {n * 16 * 9216}")
                a("buffer_load_dwordx4 v7, s[20:23], s29 offen lds")
            else:
                a(f"s_add_u32 s29, s40, {(kind[2] * 288 + n * 8) * 9216 + kind[1] * 128}")
                a("buffer_load_dwordx4 v8, s[20:23], s29 offen lds")

    def stamp(lane):
        if timing:
            a(f"s_memtime s[68:69]\ns_memrealtime s[70:71]\ns_waitcnt lgkmcnt(0)\ns_sub_u32 s72, s68, s60\nv_writelane_b32 v20, s72, {lane}")
            if lane < 16 or lane in (32, 33):
                a(f"s_sub_u32 s72, s70, s62\nv_writelane_b32 v20, s72, {lane + 40 if lane < 16 else lane + 8 - 10}")
    stamp(34)
    if timing:
        a("s_waitcnt vmcnt(27)")
        stamp(35)
        a("s_waitcnt vmcnt(18)")
        stamp(36)
        a("s_waitcnt vmcnt(9)")
        stamp(37)
    a("s_waitcnt vmcnt(0)")
    stamp(32)
    if fused:
        a(f"s_cmp_eq_u32 s2, 0\ns_cbranch_scc0 {L}_nozs\ns_cmp_eq_u32 s28, 0\ns_cbranch_scc0 {L}_nozs")
        p3.signal(a, p3.DBG_ZERO, 1, tmpv=(22, 23))
        a(f"{L}_nozs:")
    phase_stamp(a, 21, "s26", L=L)
    a("s_barrier")
    a("s_barrier")
    phase_stamp(a, 22, "s26", L=L)
    stamp(33)
    a(f"""s_and_b32 s73, s24, 7
    s_mul_i32 s67, s73, 36
    s_mul_i32 s74, s28, 9
    s_add_u32 s67, s67, s74
    s_mul_i32 s67, s67, 9216
    s_add_u32 s67, s67, s35
    s_and_b32 s74, s25, 1
    s_lshl_b32 s75, s74, 6
    s_add_u32 s67, s67, s75
    s_mul_i32 s66, s73, 72
    s_mul_i32 s75, s28, 18
    s_add_u32 s66, s66, s75
    s_mul_i32 s66, s66, 9216
    s_add_u32 s66, s66, s35
    s_cmp_eq_u32 s74, 0
    s_cselect_b32 s75, 512, 0
    s_add_u32 s66, s66, s75
    v_mul_u32_u24 v26, 9216, v0""")
    vq = p3.Queue()

    def warm(j):
        kind = slot_kind(j)
        if kind[0] == "d":
            a(f"s_add_u32 s29, s67, {kind[2] * 288 * 9216 + kind[1] * 128}\ns_mov_b32 exec_hi, 0\ns_mov_b32 exec_lo, 0x1ff")
        elif kind[0] == "s":
            a("s_mov_b32 s29, s66\ns_mov_b32 exec_hi, 0\ns_mov_b32 exec_lo, 0x3ffff")
        else:
            return
        a("buffer_load_dword v25, v26, s[20:23], s29 offen\ns_mov_b64 exec, -1")
        vq.issue()

    def issue_t(j):
        issue(j)
        for n in range(9):
            vq.issue(("slot", j))
    for j in range(2):
        issue_t(j)
    if L2WARM:
        for j in range(4, 4 + L2WARM - 2):
            warm(j)
    issued = 2
    for j in range(NS):
        a(f"s_waitcnt vmcnt({vq.need(('slot', j))})")
        phase_stamp(a, 40 + j, "s26", L=L)
        stamp(16 + j)
        if fused and j == NS - 1:
            a(f"s_cmp_eq_u32 s28, 0\ns_cbranch_scc0 {L}_noqp")
            if ADJ3:
                qkv3.poll_offsets(a)
                p3.poll(a, L, "qkv", [("s73", 16), ("s74", 16), ("s75", 16), (p3.DBG_ZERO, 1)], base="s[90:91]", tmpv=(22, 24))
            else:
                a("""s_and_b32 s73, s2, 7
                s_lshl_b32 s73, s73, 1
                s_bfe_u32 s74, s2, 0x10004
                s_add_u32 s73, s73, s74
                s_lshl_b32 s73, s73, 2
                s_xor_b32 s74, s73, 4""")
                p3.poll(a, L, "qkv", [("s73", 16), ("s74", 16), (p3.DBG_ZERO, 1)], base="s[90:91]", tmpv=(22, 24))
            phase_stamp(a, 4, "s26", L=L)
            a(f"{L}_noqp:")
        a("s_barrier")
        stamp(j)
        if j in (0, 4, 12):
            phase_stamp(a, {0: 1, 4: 2, 12: 3}[j], "s26", L=L)
        phase_stamp(a, 24 + j, "s26", L=L)
        if fused and j == 7:
            a(f"s_cmp_eq_u32 s28, 0\ns_cbranch_scc0 {L}_noq\ns_lshl_b32 s73, s25, 2")
            p3.signal(a, "s73", 1, tmpv=(22, 23))
            a(f"{L}_noq:")
        if j + 2 < NS:
            issue_t(j + 2)
            issued += 1
        if L2WARM and 4 <= j + L2WARM < NS:
            warm(j + L2WARM)
        if fused and CODE_PF >= 3 and j == 9:
            a("s_lshr_b32 s73, s2, 3\ns_lshl_b32 s73, s73, 2\ns_add_u32 s73, s73, s28")
            code_prefetch(a, L, "b", "s73", 128, 3, vdst=21, vtmp=22, first=f"{L}_p2-{L}")
            vq.issue()
        if j in wb:
            a(f"s_cmp_lt_u32 s2, {WB_WGS}\ns_cbranch_scc0 {L}_nowb{j}\ns_cmp_eq_u32 s26, 4\ns_cbranch_scc0 {L}_nowb{j}\nbuffer_wbl2 sc1\n{L}_nowb{j}:")
    if timing:
        a(f"""s_load_dwordx2 s[64:65], s[0:1], {KA_DBG}
        s_lshl_b32 s66, s2, 2
        s_add_u32 s66, s66, s28
        s_lshl_b32 s66, s66, 8
        s_add_u32 s66, s66, 4096
        v_lshlrev_b32 v21, 2, v0
        v_add_u32 v21, s66, v21
        s_waitcnt lgkmcnt(0)
        global_store_dword v21, v20, s[64:65]
        s_waitcnt vmcnt(0)""")
    if fused:
        a(f"s_branch {L}_p2")
    else:
        a(f"s_branch {L}_end")


def pack(A, f):
    return [f"v_cvt_pk_bf16_f32 v{A + 4 * f + i}, v{A + 8 * f + 2 * i}, v{A + 8 * f + 2 * i + 1}" for i in range(4)]


def epi_ffn(A, soff, sf):
    it = []
    for f in range(2):
        it += pack(A, f)
        it += [f"v_pk_max_i16 v{A + 4 * f + i}, v{A + 4 * f + i}, 0" for i in range(4)]
        it.append(f"s_add_u32 s29, {soff}, {f * 1024}\nbuffer_store_dwordx4 {r(A + 4 * f)}, v{V_L16}, s[12:15], s29 offen{sf}")
    return it


def epi_qkv(sf):
    Q, K, V, X = ACC[0], ACC[1], ACC[2], ACC[3]
    it = [f"v_mul_f32 v{Q + i}, s47, v{Q + i}" for i in range(16)]
    it += [f"v_mul_f32 v{X + i}, v{V_SC}, v{X + i}" for i in range(16)]
    for f in range(2):
        it += pack(K, f)
        it.append(f"s_add_u32 s29, s46, {f * KV_HEAD}\nbuffer_store_dwordx4 {r(K + 4 * f)}, v{V_L16}, s[12:15], s29 offen{sf}")
    for f in range(2):
        it += pack(Q, f)
        it.append(f"s_add_u32 s29, s45, {f * 65536}\nbuffer_store_dwordx4 {r(Q + 4 * f)}, v{V_L16}, s[12:15], s29 offen{sf}")
    for f in range(2):
        it += pack(V, f)
        it.append(f"buffer_store_dwordx4 {r(V + 4 * f)}, v{V_VT}, s[12:15], s48 offen offset:{640 * f}{sf}")
    T, P = K + 8, Q + 8
    for b in range(2):
        it += [f"v_mov_b32_dpp v{T + i}, v{X + 8 * b + i} quad_perm:[1,0,3,2] row_mask:0xf bank_mask:0xf" for i in range(8)]
        it += [f"v_cvt_pk_bf16_f32 v{P + 4 * b + i}, v{X + 8 * b + 2 * i}, v{X + 8 * b + 2 * i + 1}" for i in range(4)]
        it += [f"v_cvt_pk_bf16_f32 v{X + 8 * b + i}, v{X + 8 * b + i}, v{T + i}" for i in range(8)]
        it += [f"v_cndmask_b32 v{P + 4 * b + i}, v{P + 4 * b + i}, v{V_CONST}, s[50:51]" for i in range(4)]
        it.append(f"s_mov_b64 exec, s[52:53]\nbuffer_store_dwordx4 {r(P + 4 * b)}, v{V_V3}, s[12:15], s48 offen offset:{640 * b}{sf}\ns_mov_b64 exec, -1")
        for g in (2 * b, 2 * b + 1):
            it.append(f"s_mov_b64 exec, s[54:55]\nbuffer_store_dwordx4 {r(X + 4 * g)}, v{V_QK}, s[12:15], 0 offen offset:{32 * g}{sf}\ns_mov_b64 exec, -1")
    return it


def prefetch(a, mode):
    a(f"""s_lshl_b32 s28, s2, 2
    s_and_b32 s29, s26, 3
    s_add_u32 s28, s28, s29
    v_lshlrev_b32 v16, 7, v0""")
    if "q" in mode:
        a(f"""s_mul_i32 s30, s28, {16 * 128}
        s_mov_b32 exec_hi, 0
        s_mov_b32 exec_lo, 0xffff
        buffer_load_dword v14, v16, s[16:19], s30 offen
        s_mov_b64 exec, -1""")
    if "w" in mode:
        a(f"""s_mul_i32 s30, s28, {41 * 128}
        s_mov_b32 exec_hi, 0x1ff
        buffer_load_dword v14, v16, s[20:23], s30 offen
        s_mov_b64 exec, -1""")


def prefetch2_setup(a):
    a(f"""s_load_dwordx2 s[74:75], s[0:1], {KA_W2}
    s_load_dwordx2 s[76:77], s[0:1], {KA_WO}
    s_waitcnt lgkmcnt(0)""")
    a.srd(68, 74, F * D * 2)
    a.srd(76, 76, D * D * 2) if False else None
    a(f"""s_mov_b32 s72, s76
    s_and_b32 s73, s77, 0xffff
    s_mov_b32 s74, {D * D * 2}
    s_mov_b32 s75, 0x20000
    s_lshl_b32 s78, s2, 2
    s_and_b32 s79, s26, 3
    s_add_u32 s78, s78, s79
    s_mul_i32 s79, s78, {6 * 128}
    s_mul_i32 s78, s78, {41 * 128}""")


def prefetch2_issue():
    return ["v_lshlrev_b32 v15, 7, v0",
            "s_mov_b32 exec_hi, 0x1ff\nbuffer_load_dword v14, v15, s[68:71], s78 offen\ns_mov_b64 exec, -1",
            "s_mov_b32 exec_hi, 0\ns_mov_b32 exec_lo, 0x3f\nbuffer_load_dword v14, v15, s[72:75], s79 offen\ns_mov_b64 exec, -1"]


def consumer(a, L, sf, pf="", fused=False):
    if "q" in pf:
        prefetch(a, "q")
    if Q_WARM:
        a(f"""s_and_b32 s28, s24, 7
        s_mul_i32 s28, s28, 36
        s_and_b32 s29, s26, 3
        s_mul_i32 s29, s29, 9
        s_add_u32 s28, s28, s29
        s_mul_i32 s28, s28, 3456
        s_mul_i32 s29, s25, 216
        s_and_b32 s29, s29, 0xffffff80
        s_add_u32 s28, s28, s29
        v_mul_u32_u24 v16, 21846, v0
        v_lshrrev_b32 v16, 16, v16
        v_mul_u32_u24 v17, 3, v16
        v_sub_u32 v17, v0, v17
        v_mul_u32_u24 v16, 3456, v16
        v_lshl_add_u32 v16, v17, 7, v16
        s_mov_b32 m0, 12544
        s_mov_b32 exec_hi, 0
        s_mov_b32 exec_lo, 0x7ffffff
        buffer_load_dword v16, s[16:19], s28 offen lds
        s_mov_b64 exec, -1""")
    if "2" in pf:
        prefetch2_setup(a)
    t0, t1, t2 = V_T0, V_T0 + 1, V_T0 + 2
    a(f"""v_and_b32 v16, 31, v0
    v_lshrrev_b32 v17, 5, v0
    v_lshlrev_b32 v{V_L16}, 4, v0
    v_and_b32 v18, 15, v0
    v_lshrrev_b32 v19, 2, v18
    v_and_b32 v20, 3, v18
    v_bfe_u32 v21, v0, 4, 1
    v_lshlrev_b32 v22, 3, v17
    v_add_u32 v22, v22, v19""")
    a(f"""v_lshlrev_b32 v23, 6, v22
    v_lshlrev_b32 v24, 3, v20
    v_lshlrev_b32 v25, 5, v21
    v_add3_u32 v{V_AS}, v23, v24, v25
    v_lshlrev_b32 v23, 7, v22
    v_bfe_u32 v26, v19, 1, 1
    v_lshlrev_b32 v26, 6, v26
    v_add3_u32 v23, v23, v24, v25
    v_add_u32 v{V_AD0}, v23, v26
    v_xor_b32 v26, 64, v26
    v_add_u32 v{V_AD1}, v23, v26""")
    a(f"""v_lshlrev_b32 v23, 8, v22
    v_lshlrev_b32 v26, 3, v19
    v_add_u32 v26, v23, v26""") if False else None
    a(f"""v_lshlrev_b32 v23, 8, v22
    v_lshlrev_b32 v26, 3, v19
    v_lshlrev_b32 v27, 2, v21
    v_add_u32 v27, v27, v20""")
    V_AK = t0
    if ADJ3:
        for x in range(2, 7):
            a(f"v_mov_b32 v{x}, 0")
        qkv3.scalar_setup(a)
        a(f"s_cmp_lt_u32 s25, 10\ns_cbranch_scc1 {L}_vsA\ns_cmp_eq_u32 s25, 10\ns_cbranch_scc1 {L}_vsB")
        qkv3.variant_setup(a, "C")
        a(f"s_branch {L}_vsE\n{L}_vsB:")
        qkv3.variant_setup(a, "B")
        a(f"s_branch {L}_vsE\n{L}_vsA:")
        qkv3.variant_setup(a, "A")
        a(f"{L}_vsE:")
    else:
        a(f"""v_cmp_lt_u32 vcc, 3, v27
        v_add_u32 v28, 1, v27
        s_nop 0
        v_cndmask_b32 v28, v27, v28, vcc
        v_cmp_eq_u32 vcc, 7, v27
        v_mov_b32 v29, 9
        s_nop 0
        v_cndmask_b32 v28, v28, v29, vcc
        v_xor_b32 v29, v28, v26
        v_lshlrev_b32 v29, 3, v29
        v_add_u32 v{V_AQ}, v23, v29
        v_add_u32 v28, 10, v28
        v_xor_b32 v29, v28, v26
        v_lshlrev_b32 v29, 3, v29
        v_add_u32 v{t0}, v23, v29
        v_add_u32 v28, 20, v27
        v_xor_b32 v29, v28, v26
        v_lshlrev_b32 v29, 3, v29
        v_add_u32 v{V_AV}, v23, v29
        v_mov_b32 v28, 30
        v_cmp_eq_u32 vcc, 0, v27
        v_mov_b32 v29, 29
        s_nop 0
        v_cndmask_b32 v28, v28, v29, vcc
        v_cmp_eq_u32 vcc, 1, v27
        v_mov_b32 v29, 4
        s_nop 0
        v_cndmask_b32 v28, v28, v29, vcc
        v_cmp_eq_u32 vcc, 2, v27
        v_mov_b32 v29, 14
        s_nop 0
        v_cndmask_b32 v28, v28, v29, vcc
        v_xor_b32 v29, v28, v26
        v_lshlrev_b32 v29, 3, v29
        v_add_u32 v{V_AX}, v23, v29""")
        V_AK = t0
        a(f"""v_mul_u32_u24 v23, 320, v17
        v_cmp_lt_u32 vcc, 17, v16
        v_subrev_u32 v24, 18, v16
        v_mov_b32 v25, {KV_HEAD}
        v_cndmask_b32 v24, v16, v24, vcc
        v_cndmask_b32 v25, 0, v25, vcc
        v_lshlrev_b32 v24, 4, v24
        v_add3_u32 v{V_VT}, v23, v24, v25""")
        a(f"""v_add_u32 v24, 14, v16
        v_lshlrev_b32 v24, 4, v24
        v_add_u32 v24, {KV_HEAD}, v24
        v_subrev_u32 v25, 12, v16
        v_and_b32 v26, 1, v25
        v_add_u32 v26, 18, v26
        v_lshlrev_b32 v26, 4, v26
        v_lshrrev_b32 v25, 1, v25
        v_and_b32 v25, 1, v25
        v_mul_u32_u24 v25, {KV_HEAD}, v25
        v_add_u32 v25, v25, v26
        v_cmp_lt_u32 vcc, 3, v16
        s_nop 1
        v_cndmask_b32 v24, v24, v25, vcc
        v_add_u32 v{V_V3}, v23, v24
        v_and_b32 v24, 1, v16
        v_cmp_eq_u32 vcc, 0, v24
        v_mov_b32 v25, 0x3f803f80
        s_nop 0
        v_cndmask_b32 v{V_CONST}, 0, v25, vcc
        s_mov_b32 s50, 0xf000
        s_mov_b32 s51, 0xf000
        s_mov_b32 s52, 0xf00f
        s_mov_b32 s53, 0xf00f
        s_mov_b32 s54, 0x550
        s_mov_b32 s55, 0x550""")
        a(f"""s_lshl_b32 s28, s25, 1
        s_lshl_b32 s29, s28, 13
        s_lshl_b32 s30, s27, 7
        s_add_u32 s29, s29, s30
        s_add_u32 s29, s29, {WS_QF2}
        s_mul_i32 s30, s28, {KV_HEAD}
        s_lshr_b32 s31, s27, 3
        s_mul_i32 s31, s31, {KV_CHUNK}
        s_add_u32 s30, s30, s31
        s_add_u32 s30, s30, {WS_KV}
        s_and_b32 s31, s27, 7
        s_mul_i32 s32, s31, {VT_TILE}
        s_add_u32 s48, s30, s32
        s_add_u32 s48, s48, {KV_VT}
        s_xor_b32 s32, s25, 1
        s_sub_u32 s32, s32, s25
        s_mul_i32 s32, s32, {2 * KV_HEAD}
        s_add_u32 s30, s30, s32
        s_lshl_b32 s32, s31, 10
        s_add_u32 s46, s30, s32
        s_lshl_b32 s32, s31, 7
        s_add_u32 s30, s30, s32
        s_add_u32 s30, s30, {KV_KF2}
        v_bfe_u32 v24, v16, 1, 1
        v_mul_u32_u24 v25, 8192, v24
        v_add_u32 v25, s29, v25
        v_mul_u32_u24 v26, {KV_HEAD}, v24
        v_add_u32 v26, s30, v26
        v_cmp_lt_u32 vcc, 7, v16
        v_lshlrev_b32 v24, 4, v17
        s_nop 0
        v_cndmask_b32 v25, v25, v26, vcc
        v_add_u32 v{V_QK}, v25, v24
        v_cmp_lt_u32 vcc, 3, v16
        v_mov_b32 v25, {fbits(QSCALE)}
        s_nop 0
        v_cndmask_b32 v24, 1.0, v25, vcc
        v_cmp_lt_u32 vcc, 7, v16
        s_nop 1
        v_cndmask_b32 v{V_SC}, v24, 1.0, vcc
        s_mov_b32 s47, {fbits(QSCALE)}
        s_lshl_b32 s45, s28, 16
        s_lshl_b32 s32, s27, 10
        s_add_u32 s45, s45, s32
        s_add_u32 s45, s45, {WS_QF1}
        s_mul_i32 s44, s27, {288 * 1024}
        s_mul_i32 s32, s25, {18 * 1024}
        s_add_u32 s44, s44, s32
        s_add_u32 s44, s44, {WS_HF}
        s_and_b32 s32, s25, 1
        s_cmp_eq_u32 s32, 0
        s_cselect_b32 s33, {16 * 1024}, 0
        s_add_u32 s42, s44, s33
        s_lshl_b32 s32, s32, 11
        s_add_u32 s43, s44, s32""")
    if ADJ3:
        a(f"""s_mul_i32 s44, s27, {288 * 1024}
        s_mul_i32 s32, s25, {18 * 1024}
        s_add_u32 s44, s44, s32
        s_add_u32 s44, s44, {WS_HF}
        s_and_b32 s32, s25, 1
        s_cmp_eq_u32 s32, 0
        s_cselect_b32 s33, {16 * 1024}, 0
        s_add_u32 s42, s44, s33
        s_lshl_b32 s32, s32, 11
        s_add_u32 s43, s44, s32""")
    a(f"""s_and_b32 s32, s26, 3
    s_mul_i32 s32, s32, {SLOT}
    s_add_u32 s32, s32, {LB}
    v_mul_u32_u24 v23, 1152, v16
    v_add_u32 v23, s32, v23
    v_lshrrev_b32 v24, 1, v16
    v_and_b32 v24, 7, v24""")
    for c4 in range(4):
        a(f"""v_lshlrev_b32 v25, 0, v17
        v_add_u32 v25, {2 * c4}, v25
        v_xor_b32 v25, v25, v24
        v_lshlrev_b32 v25, 4, v25
        v_add_u32 v{28 + c4}, v23, v25""")
    a("s_barrier")
    if "W" in pf:
        prefetch(a, "w" if "q" in pf else "qw")
    TMP = 80 if LN_PIPE else 32
    a("s_mov_b32 s56, 0x3f803f80\ns_mov_b32 s57, 0xffff0000")
    for i in range(8):
        a(f"v_mov_b32 v{TMP + i}, 0")
    dots = []
    for x in range(XB, XB + 144):
        i = x % 4
        dots.append(f"v_dot2_f32_bf16 v{TMP + i}, v{x}, s56, v{TMP + i}")
        dots.append(f"v_dot2_f32_bf16 v{TMP + 4 + i}, v{x}, v{x}, v{TMP + 4 + i}")
    done = 0
    for k in range(36):
        a(f"ds_read_b128 {r(XB + 4 * k)}, v{28 + k % 4} offset:{(k // 4) * 128}")
        if k >= 12:
            a("s_waitcnt lgkmcnt(12)")
            for ins in dots[done:done + 2]:
                a(ins)
            done += 2
    a("s_waitcnt lgkmcnt(0)\ns_barrier")
    for ins in dots[done:]:
        a(ins)
    a(f"""s_nop 2
    v_add_f32 v{TMP}, v{TMP}, v{TMP + 1}
    v_add_f32 v{TMP + 2}, v{TMP + 2}, v{TMP + 3}
    v_add_f32 v{TMP + 4}, v{TMP + 4}, v{TMP + 5}
    v_add_f32 v{TMP + 6}, v{TMP + 6}, v{TMP + 7}
    v_add_f32 v{TMP}, v{TMP}, v{TMP + 2}
    v_add_f32 v{TMP + 4}, v{TMP + 4}, v{TMP + 6}
    v_mov_b32 v{TMP + 1}, v{TMP}
    v_mov_b32 v{TMP + 5}, v{TMP + 4}
    s_nop 1
    v_permlane32_swap_b32 v{TMP}, v{TMP + 1}
    v_permlane32_swap_b32 v{TMP + 4}, v{TMP + 5}
    s_nop 1
    v_add_f32 v{TMP}, v{TMP}, v{TMP + 1}
    v_add_f32 v{TMP + 4}, v{TMP + 4}, v{TMP + 5}
    v_mul_f32 v{TMP}, {fbits(1.0 / 576)}, v{TMP}
    v_mul_f32 v{TMP + 4}, {fbits(1.0 / 576)}, v{TMP + 4}
    v_fma_f32 v{TMP + 4}, -v{TMP}, v{TMP}, v{TMP + 4}
    v_max_f32 v{TMP + 4}, 0, v{TMP + 4}
    v_add_f32 v{TMP + 4}, {fbits(1e-5)}, v{TMP + 4}
    v_rsq_f32 v{TMP + 4}, v{TMP + 4}
    s_nop 0
    v_mul_f32 v{TMP + 6}, v{TMP}, v{TMP + 4}
    v_sub_f32 v{TMP + 6}, 0, v{TMP + 6}""")
    def norm_items(x0, x1, packed=True):
        it = []
        for xb in range(x0, x1, 4):
            grp = [(x, TMP + 8 + 2 * (x % 4)) for x in range(xb, xb + 4)]
            it += [f"v_lshlrev_b32 v{t}, 16, v{x}" for x, t in grp]
            it += [f"v_and_b32 v{t + 1}, s57, v{x}" for x, t in grp]
            if packed:
                it += [f"v_pk_fma_f32 v[{t}:{t + 1}], v[{t}:{t + 1}], v[{TMP + 4}:{TMP + 5}], v[{TMP + 6}:{TMP + 7}] op_sel_hi:[1,0,0]" for x, t in grp]
            else:
                it += [f"v_fma_f32 v{t + h}, v{t + h}, v{TMP + 4}, v{TMP + 6}" for h in range(2) for x, t in grp]
            it += [f"v_cvt_pk_bf16_f32 v{x}, v{t}, v{t + 1}" for x, t in grp]
        return it
    for ins in norm_items(XB, XB + (36 if LN_PIPE else 144)):
        a(ins)

    steps = []
    pair_acc = {0: (ACC[0], ACC[1]), 1: (ACC[2], ACC[3]), 2: (ACC[0], ACC[1]), 3: (ACC[2], ACC[3])}
    for j in range(NS):
        kind = slot_kind(j)
        if kind[0] == "q":
            for k in range(9):
                xs = kind[1] * 9 + k
                if ADJ3:
                    for t in range(4):
                        steps.append((j, qkv3.TA[t], k * 4096, 1024, ACC[t], xs, xs == 0, ("tile", t)))
                else:
                    for (reg, acc, tr) in ((V_AQ, ACC[0], False), (V_AK, ACC[1], False), (V_AV, ACC[2], True), (V_AX, ACC[3], True)):
                        steps.append((j, reg, k * 4096, 1024, acc, xs, xs == 0, tr))
        elif kind[0] == "s":
            for k in range(36):
                steps.append((j, V_AS, k * 1024, 256, ACC[4], k, k == 0, False))
        else:
            for k in range(18):
                xs = kind[2] * 18 + k
                for T, reg in enumerate((V_AD0, V_AD1)):
                    steps.append((j, reg, k * 2048, 512, pair_acc[kind[1]][T], xs, xs == 0, False))
    total = len(steps)
    assert total == 36 * NS
    cur_base = {V_AQ: 0, V_AK: 0, V_AV: 0, V_AX: 0, V_AS: 0, V_AD0: 0, V_AD1: 0}

    def reads(g):
        j, reg, off, second, acc, xs, first, tr = steps[g]
        base = LB + (j % NSLOT) * SLOT
        out = []
        if cur_base[reg] != base:
            d = base - cur_base[reg]
            out.append(f"v_add_u32 v{reg}, {d & 0xffffffff:#x}, v{reg}")
            cur_base[reg] = base
        buf = WF[g % 4]
        out.append(f"ds_read_b64_tr_b16 v[{buf}:{buf + 1}], v{reg} offset:{off}")
        out.append(f"ds_read_b64_tr_b16 v[{buf + 2}:{buf + 3}], v{reg} offset:{off + second}")
        return out

    a("s_barrier")
    for g in range(3):
        for ins in reads(g):
            a(ins)
    fill = []
    pinned = {}
    dead = 36

    def split(items, places):
        if not PIN_STORES:
            return items
        st = [x for x in items if "buffer_store" in x]
        assert len(st) == len(places)
        for x, gpos in zip(st, places):
            pinned[gpos] = x
        return [x for x in items if "buffer_store" not in x]
    def emit_step(g, var):
        nonlocal fill, dead
        j, reg, off, second, acc, xs, first, tr = steps[g]
        k = g % 36
        if isinstance(tr, tuple):
            tr = qkv3.TILES[var][tr[1]][0]
        if k == 0 and j == 6 and fused:
            assert PF2_SLOT != 6
            a("s_waitcnt vmcnt(2)")
        if k == 0:
            assert not fill, (j, len(fill))
            if j < 3 and LN_PIPE:
                fill = norm_items(XB + 36 * (j + 1), XB + 36 * (j + 2), packed=LN_PIPE == 2)
            elif j == 4:
                fill = qkv3.epilogue(var, ACC, sf) if ADJ3 else epi_qkv(sf)
            elif j == 5:
                fill = split(epi_ffn(ACC[4], "s42", sf), [g + PIN[0], g + PIN[1]])
            elif fused and j == NS - 1 and Q_PRE:
                h = Asm()
                attn.head_and_block(h, "s2")
                h("s_mov_b32 s20, s26")
                h(attn.q_tile_index())
                fill = [h.text().strip()] + attn.q_load_items(" sc1")
            elif j == PF2_SLOT and "2" in pf:
                fill = prefetch2_issue()
            elif j >= 7 and (j - 5) % 2 == 0:
                d = (j - 5) // 2 - 1
                fill = []
                for T in range(2):
                    a(f"s_add_u32 s{58 + T}, s43, {(2 * d + T) * 2048}")
                    fill += epi_ffn(pair_acc[d][T], f"s{58 + T}", sf)
                fill = split(fill, [g + PIN[0], g + PIN[1], g + 36 + PIN[0], g + 36 + PIN[1]] if d < 2 else [g + 22, g + 25, g + 28, g + 31])
            dead = 21 if PIN_STORES and j >= 5 else 36
        left = min(2, total - 1 - g)
        a(f"s_waitcnt lgkmcnt({2 * left})")
        c = "0" if first else r(acc, 16)
        x = r(XB + 4 * xs)
        w = r(WF[g % 4])
        if tr:
            a(f"v_mfma_f32_32x32x16_bf16 {r(acc, 16)}, {x}, {w}, {c}")
        else:
            a(f"v_mfma_f32_32x32x16_bf16 {r(acc, 16)}, {w}, {x}, {c}")
        if k == 32 and j + 1 < NS:
            a("s_barrier")
        if g + 3 < total:
            for ins in reads(g + 3):
                a(ins)
        if (k >= 6 or j < 3) and fill:
            n = -(-len(fill) // max(1, dead - k))
            for _ in range(n):
                if fill:
                    a(fill.pop(0))
        if g in pinned:
            assert not fill or j == PF2_SLOT or j == NS - 1
            a(pinned.pop(g))

    if ADJ3:
        snap = dict(cur_base)
        ends = []
        for var in "ABC":
            if var == "A":
                a(f"s_cmp_lt_u32 s25, 10\ns_cbranch_scc0 {L}_qB")
            elif var == "B":
                a(f"{L}_qB:\ns_cmp_eq_u32 s25, 10\ns_cbranch_scc0 {L}_qC")
            else:
                a(f"{L}_qC:")
            cur_base.clear()
            cur_base.update(snap)
            for g in range(5 * 36):
                emit_step(g, var)
            assert not fill and not pinned
            ends.append(dict(cur_base))
            if var != "C":
                a(f"s_branch {L}_qE")
        assert ends[0] == ends[1] == ends[2]
        a(f"{L}_qE:")
        for g in range(5 * 36, total):
            emit_step(g, None)
    else:
        for g in range(total):
            emit_step(g, None)
    a("s_nop 7\ns_nop 7")
    for T in range(2):
        a(f"s_add_u32 s58, s43, {(2 * 3 + T) * 2048}")
        for it in epi_ffn(pair_acc[3][T], "s58", sf):
            a(it)
    if not fused:
        a("s_waitcnt vmcnt(0)")


def p1_body(a, L, mapping="84", sf="", timing=False, pf="qW2", rot=True, pf2slot=8, wb=(), wbwgs=8, fused=False, pin=(28, 31), l2warm=0, qkvhack=False, adj3=True, xloop=False, lnpipe=0, qwarm=False):
    global PF2_SLOT, WB_WGS, LB, PIN_STORES, PIN, L2WARM
    L2WARM = l2warm
    global QKV_HACK, ADJ3
    ADJ3 = adj3
    global LN_PIPE
    LN_PIPE = lnpipe
    global Q_WARM
    Q_WARM = qwarm
    global X_LOOP
    X_LOOP = xloop
    QKV_HACK = qkvhack
    PIN_STORES = pin is not None
    PIN = pin or (0, 0)
    PF2_SLOT = pf2slot
    WB_WGS = wbwgs
    LB = 16384 if fused else 0
    if fused and CODE_PF >= 2:
        a("""v_lshrrev_b32 v1, 6, v0
        v_and_b32 v0, 63, v0
        s_lshr_b32 s73, s2, 3
        v_readfirstlane_b32 s26, v1
        s_lshl_b32 s73, s73, 3
        s_nop 1
        s_add_u32 s73, s73, s26""")
        code_prefetch(a, L, "a", "s73", 256, 3, lds=12288)
        a("v_lshlrev_b32 v0, 0, v0")
    a(f"""s_load_dwordx2 s[4:5], s[0:1], {KA_X}
    s_load_dwordx2 s[6:7], s[0:1], {KA_WS}
    s_load_dwordx2 s[36:37], s[0:1], {KA_WQKV}
    s_load_dwordx2 s[38:39], s[0:1], {KA_W1}""")
    if fused:
        a(f"s_load_dwordx2 s[90:91], s[0:1], {KA_DBG}")
        if KEEP_PTRS:
            a(f"s_load_dwordx2 s[84:85], s[0:1], {KA_W2}\ns_load_dwordx2 s[86:87], s[0:1], {KA_WO}\ns_load_dwordx2 s[88:89], s[0:1], {KA_OUT}")
    if fused and CODE_PF >= 2:
        a("s_and_b32 s28, s2, 7\ns_lshr_b32 s29, s2, 3")
    else:
        a("""v_lshrrev_b32 v1, 6, v0
        v_and_b32 v0, 63, v0
        s_and_b32 s28, s2, 7
        v_readfirstlane_b32 s26, v1
        s_lshr_b32 s29, s2, 3""")
    if mapping == "84":
        a("""s_and_b32 s25, s28, 3
        s_lshl_b32 s25, s25, 2
        s_and_b32 s30, s29, 3
        s_add_u32 s25, s25, s30
        s_lshr_b32 s24, s28, 2
        s_lshl_b32 s24, s24, 3
        s_lshr_b32 s30, s29, 2
        s_add_u32 s24, s24, s30""")
    else:
        assert not fused
        a("""s_and_b32 s25, s28, 1
        s_lshl_b32 s25, s25, 3
        s_and_b32 s30, s29, 7
        s_add_u32 s25, s25, s30
        s_lshr_b32 s24, s28, 1
        s_lshl_b32 s24, s24, 2
        s_lshr_b32 s30, s29, 3
        s_add_u32 s24, s24, s30""")
    a("""s_and_b32 s27, s26, 3
    s_lshl_b32 s30, s24, 2
    s_add_u32 s27, s27, s30
    s_waitcnt lgkmcnt(0)""")
    a.srd(8, 4, S * D * 2)
    a.srd(12, 6, WS_END)
    a.srd(16, 36, D * 3 * D * 2)
    a.srd(20, 38, D * F * 2)
    a(f"s_cmp_lt_u32 s26, 4\ns_cbranch_scc1 {L}_consumer")
    loader(a, L, timing, pf, rot, wb, fused)
    a(f"{L}_consumer:")
    consumer(a, L, sf, pf, fused)


def k1_kernel(L="k1_kernel", mapping="84", sf="", timing=False, rt=False, **kw):
    a = Asm()
    if rt:
        rt_stamp_begin(a)
    if timing:
        a("s_memtime s[60:61]\ns_memrealtime s[62:63]")
    a(f"s_cmp_ge_u32 s2, 256\ns_cbranch_scc1 {L}_end")
    p1_body(a, L, mapping, sf, timing, **kw)
    if timing:
        a(f"""s_memtime s[62:63]
        s_load_dwordx2 s[64:65], s[0:1], {KA_DBG}
        s_waitcnt lgkmcnt(0)
        s_sub_u32 s62, s62, s60
        s_lshl_b32 s66, s2, 2
        s_add_u32 s66, s66, s26
        s_lshl_b32 s66, s66, 2
        v_mov_b32 v20, s66
        v_mov_b32 v21, s62
        global_store_dword v20, v21, s[64:65]
        s_waitcnt vmcnt(0)""")
    if rt:
        rt_stamp_end(a, 0, L)
    a(f"{L}_end:\ns_endpgm")
    return kernel_head(L) + a.text() + kernel_desc(L, 256)


K1_LDS = NSLOT * SLOT
```

```python
from asmlib import *
from layout import *
import attn
import p3
import p3f
from attn import r, fbits

R = 3
W2_SLOT = 46080
K2_LDS = R * KV_CHUNK + 2 * W2_SLOT
MAP_PLAIN = (0, KV_CHUNK, (R * KV_CHUNK, R * KV_CHUNK + W2_SLOT), None, None)
MAP_FUSED = (104448, 19456, (53248, 1024), (8192, 162816), 0)
STEPS_PLAIN = [9] * 8
STEPS_FUSED = [2] + [10] * 7
FACC = 16
WF = [96 + 4 * i for i in range(8)]
HF = [128 + 4 * i for i in range(6)]
V_L16, V_WA0, V_WA1 = 1, 2, 3
V_PAT = [4, 5, 6, 7, 8]
NSTEP = 72
HDIST, WDIST = 4, 4
OUT_SF = ""
P3_HYB = False
P3_NEW = True
Q_PRE = True
SHAPE16 = False
HALF_UNIT = True
EARLY_STORE = True


class Queue:
    def __init__(self):
        self.n = 0
        self.pos = {}

    def issue(self, tag=None):
        self.n += 1
        if tag is not None:
            self.pos[tag] = self.n

    def need(self, tag):
        return self.n - self.pos[tag]


def k1_code_pf():
    import k1
    return k1.CODE_PF


def ffn_role(a, L, sf="", off=(), stamps=False, fused1=False):
    lf = " sc1" if fused1 else ""
    KVB, KVS, W2A, DUMMY, HFLAG = MAP_FUSED if fused1 else MAP_PLAIN
    PST = STEPS_FUSED if fused1 else STEPS_PLAIN
    CUM = [sum(PST[:i]) for i in range(9)]
    period_of = lambda k: max(p for p in range(8) if CUM[p] <= k)
    WREG = {n: ((54, 55), (56, 57), (58, 59))[i] for i, n in enumerate(sorted(set(PST)))}
    if fused1:
        a("""s_sub_u32 s21, s20, 4
        s_and_b32 s22, s2, 7
        s_lshr_b32 s23, s2, 3
        s_and_b32 s24, s22, 3
        s_lshr_b32 s22, s22, 2
        s_lshl_b32 s22, s22, 3
        s_lshr_b32 s25, s23, 2
        s_add_u32 s22, s22, s25
        s_and_b32 s23, s23, 3
        s_lshl_b32 s22, s22, 2
        s_add_u32 s22, s22, s21""")
    else:
        a(f"""s_sub_u32 s21, s20, 4
        s_and_b32 s22, s2, 7
        s_lshr_b32 s23, s2, 3
        s_lshr_b32 s24, s22, 1
        s_and_b32 s22, s22, 1
        s_lshl_b32 s22, s22, 3
        s_lshr_b32 s25, s23, 2
        s_add_u32 s22, s22, s25
        s_and_b32 s23, s23, 3
        s_lshl_b32 s22, s22, 2
        s_add_u32 s22, s22, s21""")
    a("""s_lshl_b32 s25, s23, 2
    s_lshr_b32 s26, s23, 1
    s_add_u32 s25, s25, s26""")
    a.srd(8, 6, KV_BYTES, WS_KV)
    a.srd(12, 6, HF_BYTES, WS_HF)
    a.srd(48, 36, F * D * 2)
    a.srd(32, 6, WS_CNT - WS_PART, WS_PART)
    a(f"""v_lshlrev_b32 v{V_L16}, 4, v0
    s_mul_i32 s38, s16, {KV_HEAD}
    s_mul_i32 s39, s21, {5 * 1024}
    s_add_u32 s38, s38, s39
    s_mul_i32 s40, s24, {1152 * 1152}
    s_lshl_b32 s41, s25, 6
    s_add_u32 s40, s40, s41
    s_mul_i32 s42, s22, {288 * 1024}
    s_mul_i32 s43, s24, {72 * 1024}
    s_add_u32 s42, s42, s43""")
    for n, (rs, rl) in WREG.items():
        a(f"s_mul_i32 s{rs}, s21, {4 * n * 1152}\ns_add_u32 s{rs}, s{rs}, s40\ns_mul_i32 s{rl}, s21, {4 * n * 320}")
    a("s_movk_i32 s43, 3277\ns_movk_i32 s44, 1152")
    for n in range(5):
        a(f"""v_add_u32 v10, {64 * n}, v0
        v_mul_u32_u24 v11, s43, v10
        v_lshrrev_b32 v11, 16, v11
        v_mul_u32_u24 v12, 20, v11
        v_sub_u32 v12, v10, v12""")
        if SHAPE16:
            a("v_bfe_u32 v13, v11, 2, 1\nv_lshlrev_b32 v13, 1, v13\nv_xor_b32 v12, v12, v13")
        a(f"""v_lshlrev_b32 v12, 4, v12
        v_mad_u32_u24 v{V_PAT[n]}, v11, s44, v12""")
    a("s_and_b32 s62, s23, 1")
    if HALF_UNIT:
        for i in range(16):
            a(f"v_mov_b32 v{FACC + i}, 0")
    vq = Queue()

    def kv_piece(c, i):
        if DUMMY is not None and i == 4:
            a(f"s_add_u32 s45, s39, {KVB + (c % R) * KVS + i * 1024}\ns_cmp_eq_u32 s21, 3\ns_cselect_b32 m0, {DUMMY[0 if c == 0 else 1]}, s45")
        else:
            a(f"s_add_u32 m0, s39, {KVB + (c % R) * KVS + i * 1024}")
        a(f"s_add_u32 s29, s38, {c * KV_CHUNK + i * 1024}")
        a(f"buffer_load_dwordx4 v{V_L16}, s[8:11], s29 offen{lf} lds")
        vq.issue(("kv", c))

    def w2_pieces(p):
        return -(-80 * PST[p] // 64)

    def w2_piece(p, n):
        rs, rl = WREG[PST[p]]
        lanes = min(64, 80 * PST[p] - 64 * n)
        a(f"s_add_u32 m0, s{rl}, {W2A[p % 2] + n * 1024}")
        a(f"s_add_u32 s29, s{rs}, {(CUM[p] * 16 + (n // 5) * 16) * 1152}")
        if lanes < 64:
            a(f"s_mov_b32 exec_lo, {((1 << min(lanes, 32)) - 1):#x}\ns_mov_b32 exec_hi, {((1 << max(lanes - 32, 0)) - 1):#x}")
        a(f"buffer_load_dwordx4 v{V_PAT[n % 5]}, s[48:51], s29 offen lds")
        if lanes < 64:
            a("s_mov_b64 exec, -1")
        vq.issue(("w2", p))

    V_H = (9, 14)
    V_WB = (152, 153)
    V_ST = 15

    def h_load(k):
        if SHAPE16:
            a(f"s_add_u32 s29, s42, {(k // 2) * 2048}")
            a(f"buffer_load_dwordx4 {r(HF[k % len(HF)])}, v{V_H[k % 2]}, s[12:15], s29 offen{lf}")
        else:
            a(f"s_add_u32 s29, s42, {k * 1024}")
            a(f"buffer_load_dwordx4 {r(HF[k % len(HF)])}, v{V_L16}, s[12:15], s29 offen{lf}")
        vq.issue(("h", k))

    for i in range(5):
        kv_piece(0, i)
    for n in range(w2_pieces(0)):
        w2_piece(0, n)
    if not fused1:
        for k in range(HDIST):
            h_load(k)
    else:
        a(f"v_mov_b32 v10, {HFLAG}\nv_mov_b32 v11, 0\nv_mov_b32 v12, 0\nv_mov_b32 v13, 0\nds_write_b64 v10, v[12:13]")
    if SHAPE16:
        assert all(n % 2 == 0 for n in PST)
        a(f"""v_and_b32 v10, 15, v0
        v_lshrrev_b32 v11, 2, v10
        v_lshrrev_b32 v12, 5, v0
        v_lshlrev_b32 v12, 4, v12
        v_add_u32 v11, v11, v12
        v_bfe_u32 v13, v0, 4, 1
        v_lshl_add_u32 v11, v13, 2, v11
        v_mul_u32_u24 v11, 320, v11
        v_and_b32 v12, 3, v10
        v_lshl_add_u32 v11, v12, 3, v11
        v_lshlrev_b32 v13, 5, v13
        v_add_u32 v12, v11, v13
        v_xor_b32 v13, 32, v13
        v_add_u32 v11, v11, v13
        v_add_u32 v{V_WA0}, {W2A[0]}, v12
        v_add_u32 v{V_WA1}, {W2A[1]}, v12
        v_add_u32 v{V_WB[0]}, {W2A[0]}, v11
        v_add_u32 v{V_WB[1]}, {W2A[1]}, v11
        v_lshrrev_b32 v11, 5, v0
        v_bfe_u32 v12, v0, 4, 1
        v_lshlrev_b32 v13, 4, v10
        v_lshl_add_u32 v13, v12, 9, v13
        v_lshl_add_u32 v{V_H[0]}, v11, 10, v13
        v_add_u32 v{V_H[1]}, 256, v{V_H[0]}
        v_lshl_add_u32 v{V_ST}, v11, 3, v13""")
    else:
        a(f"""v_and_b32 v10, 15, v0
        v_lshrrev_b32 v11, 2, v10
        v_lshrrev_b32 v12, 5, v0
        v_lshlrev_b32 v12, 2, v12
        v_add_u32 v11, v11, v12
        v_mul_u32_u24 v11, 320, v11
        v_and_b32 v12, 3, v10
        v_lshlrev_b32 v12, 3, v12
        v_bfe_u32 v13, v0, 4, 1
        v_lshlrev_b32 v13, 5, v13
        v_add3_u32 v11, v11, v12, v13
        v_add_u32 v{V_WA0}, {W2A[0]}, v11
        v_add_u32 v{V_WA1}, {W2A[1]}, v11""")
    def stamp(lane):
        if stamps:
            a(f"s_memtime s[52:53]\ns_waitcnt lgkmcnt(0)\ns_sub_u32 s52, s52, s60\nv_writelane_b32 v156, s52, {lane}")
    if stamps:
        a("v_mov_b32 v156, 0")
    stamp(34)
    a(f"s_waitcnt vmcnt({min(vq.need(('kv', 0)), vq.need(('w2', 0)))})")
    stamp(32)
    if fused1:
        a("s_waitcnt lgkmcnt(0)")
    a("s_barrier")
    stamp(33)
    phase_stamp(a, 6, "s20", L=L)
    if fused1:
        a(f"""s_add_u32 s92, s6, {WS_CNT}
        s_addc_u32 s93, s7, 0
        s_lshr_b32 s73, s22, 2
        s_lshl_b32 s73, s73, 2
        s_add_u32 s73, s73, s24
        s_add_u32 s73, s73, {p3.CNT_H}
        s_lshl_b32 s73, s73, 7""")
        a(f"s_cmp_eq_u32 s21, 0\ns_cbranch_scc0 {L}_nohs")
        p3.signal(a, "s73", 1, base="s[92:93]", tmpv=(12, 13))
        a(f"{L}_nohs:")
        for i in range(5):
            kv_piece(1, i)
        for n in range(w2_pieces(1)):
            w2_piece(1, n)
        a(f"s_cmp_eq_u32 s21, 0\ns_cbranch_scc0 {L}_hspin")
        p3.poll(a, L, "h", [("s73", 4)], base="s[92:93]", tmpv=(12, 13), sleep=2)
        a(f"""v_mov_b32 v10, {HFLAG}
        v_mov_b32 v11, 1
        ds_write_b32 v10, v11
        s_waitcnt lgkmcnt(0)
        s_branch {L}_hok
        {L}_hspin:
        v_mov_b32 v10, {HFLAG}
        s_mov_b32 s94, {1 << 20}
        {L}_hspin2:
        ds_read_b32 v11, v10
        s_waitcnt lgkmcnt(0)
        v_readfirstlane_b32 s95, v11
        s_sub_u32 s94, s94, 1
        s_cmp_eq_u32 s94, 0
        s_cbranch_scc1 {L}_hok
        s_cmp_eq_u32 s95, 1
        s_cbranch_scc1 {L}_hok
        s_sleep 1
        s_branch {L}_hspin2
        {L}_hok:""")
        phase_stamp(a, 7, "s20", L=L)
        for k in range(HDIST):
            h_load(k)

    def period_end(p):
        assert not todo
        stamp(40 + p)
        if p + 1 < 8:
            need = [vq.need(("w2", p + 1)), vq.need(("kv", p + 1))]
            a(f"s_waitcnt vmcnt({min(need)})")
        stamp(p)
        if p < 7 or not EARLY_STORE:
            a("s_barrier")
            stamp(16 + p)
            phase_stamp(a, 8 + p, "s20", L=L)
        if fused1 and k1_code_pf() >= 4 and p == 5:
            a("s_lshr_b32 s73, s2, 3\ns_lshl_b32 s73, s73, 2\ns_add_u32 s73, s73, s21")
            code_prefetch(a, L, "c", "s73", 128, 1, vdst=154, vtmp=155, first=f"{L}_attn-{L}")
            vq.issue()

    if SHAPE16:
        units = [(Sx, t, ch) for Sx in range(NSTEP // 2) for t in range(5) for ch in range(2)]
        lq = Queue()
        per = lambda Sx: period_of(2 * Sx)

        def w_reads(g):
            Sx, t, ch = units[g]
            p = per(Sx)
            ad = ((V_WA0, V_WA1), V_WB)[ch][p % 2]
            buf = WF[g % len(WF)]
            off_ = (Sx - CUM[p] // 2) * 10240 + t * 64
            a(f"ds_read_b64_tr_b16 v[{buf}:{buf + 1}], v{ad} offset:{off_}")
            lq.issue()
            a(f"ds_read_b64_tr_b16 v[{buf + 2}:{buf + 3}], v{ad} offset:{off_ + 2560}")
            lq.issue(g)
        nread = 0
        todo = []
        for g, (Sx, t, ch) in enumerate(units):
            p = per(Sx)
            first = Sx == CUM[p] // 2
            if first and t == 0 and ch == 0:
                todo = []
                if p + 1 < 8 and not (fused1 and p == 0):
                    todo = [("kv", p + 1, i) for i in range(5)] + [("w2", p + 1, n) for n in range(w2_pieces(p + 1))]
                while nread < g + WDIST:
                    w_reads(nread)
                    nread += 1
            if t == 0 and ch == 0:
                a(f"s_waitcnt vmcnt({vq.need(('h', 2 * Sx + 1))})")
            a(f"s_waitcnt lgkmcnt({lq.need(g)})")
            skip = HALF_UNIT and ((t == 0 and Sx < NSTEP // 4) or (t == 4 and Sx >= NSTEP // 4))
            if skip:
                a(f"s_cmp_eq_u32 s62, {1 if t == 0 else 0}\ns_cbranch_scc1 {L}_sk{Sx}_{ch}")
            for th in range(2):
                acc = FACC + 16 * t + 8 * ch + 4 * th
                c = "0" if Sx == 0 and not (HALF_UNIT and t == 0) else r(acc, 4)
                a(f"v_mfma_f32_16x16x32_bf16 {r(acc, 4)}, {r(WF[g % len(WF)])}, {r(HF[(2 * Sx + th) % len(HF)])}, {c}")
            if skip:
                a(f"{L}_sk{Sx}_{ch}:")
            nxt = g + WDIST
            if nxt < len(units) and per(units[nxt][0]) == p and nread <= nxt:
                w_reads(nread)
                nread += 1
            if t == 4 and ch == 1 and 2 * Sx + HDIST < NSTEP:
                h_load(2 * Sx + HDIST)
                h_load(2 * Sx + HDIST + 1)
            if ch == 0 and t < 4 and todo:
                item = todo.pop(0)
                if item[0] == "kv":
                    kv_piece(item[1], item[2])
                else:
                    w2_piece(item[1], item[2])
            if Sx == (CUM[p] + PST[p]) // 2 - 1 and t == 4 and ch == 1:
                period_end(p)
    else:
        units = [(k, t) for k in range(NSTEP) for t in range(5)]
        lq = Queue()

        def w_reads(g):
            k, t = units[g]
            p = period_of(k)
            kk = k - CUM[p]
            ad = V_WA0 if p % 2 == 0 else V_WA1
            buf = WF[g % len(WF)]
            if "read" in off:
                lq.issue(); lq.issue(g)
                return
            a(f"ds_read_b64_tr_b16 v[{buf}:{buf + 1}], v{ad} offset:{kk * 5120 + t * 64}")
            lq.issue()
            a(f"ds_read_b64_tr_b16 v[{buf + 2}:{buf + 3}], v{ad} offset:{kk * 5120 + t * 64 + 2560}")
            lq.issue(g)

        nread = 0
        todo = []
        for g, (k, t) in enumerate(units):
            p = period_of(k)
            kk = k - CUM[p]
            if kk == 0 and t == 0:
                todo = []
                if p + 1 < 8 and not (fused1 and p == 0):
                    todo = [("kv", p + 1, i) for i in range(5)] + [("w2", p + 1, n) for n in range(w2_pieces(p + 1))]
                while nread < g + WDIST:
                    w_reads(nread)
                    nread += 1
            if t == 0:
                a(f"s_waitcnt vmcnt({vq.need(('h', k))})")
            a(f"s_waitcnt lgkmcnt({lq.need(g)})")
            acc = FACC + 16 * t
            c = "0" if k == 0 and not (HALF_UNIT and t == 0) else r(acc, 16)
            skip = HALF_UNIT and ((t == 0 and k < NSTEP // 2) or (t == 4 and k >= NSTEP // 2))
            if skip:
                a(f"s_cmp_eq_u32 s62, {1 if t == 0 else 0}\ns_cbranch_scc1 {L}_sk{k}")
            if "mfma" not in off:
                a(f"v_mfma_f32_32x32x16_bf16 {r(acc, 16)}, {r(WF[g % len(WF)])}, {r(HF[k % len(HF)])}, {c}")
            if skip:
                a(f"{L}_sk{k}:")
            nxt = g + WDIST
            if nxt < len(units) and period_of(units[nxt][0]) == p and nread <= nxt:
                w_reads(nread)
                nread += 1
            if t == 4 and k + HDIST < NSTEP:
                h_load(k + HDIST)
            if t in (0, 2) and todo:
                item = todo.pop(0)
                if item[0] == "kv":
                    kv_piece(item[1], item[2])
                else:
                    w2_piece(item[1], item[2])
            if kk == PST[p] - 1 and t == 4:
                assert not todo
                stamp(40 + p)
                if p + 1 < 8:
                    need = [vq.need(("w2", p + 1)), vq.need(("kv", p + 1))]
                    a(f"s_waitcnt vmcnt({min(need)})")
                stamp(p)
                if p < 7 or not EARLY_STORE:
                    a("s_barrier")
                    stamp(16 + p)
                    phase_stamp(a, 8 + p, "s20", L=L)
    a(f"""s_nop 7
    s_nop 7
    s_mul_i32 s43, s24, {64 * 18 * 2048}
    s_mul_i32 s44, s22, {18 * 2048}
    s_add_u32 s43, s43, s44
    s_lshl_b32 s44, s25, 11
    s_add_u32 s43, s43, s44
    s_and_b32 s44, s23, 1""")
    if HALF_UNIT:
        a(f"""s_mul_i32 s45, s24, {64 * 2 * 2048}
        s_lshl_b32 s63, s22, 12
        s_add_u32 s45, s45, s63
        s_lshr_b32 s63, s23, 1
        s_lshl_b32 s63, s63, 11
        s_add_u32 s45, s45, s63
        s_add_u32 s45, s45, {WS_PARTX - WS_PART}
        s_cmp_eq_u32 s44, 1
        s_cselect_b32 s45, s45, s43""")
    for t in range(5):
        A = FACC + 16 * t
        if t == 0 and not HALF_UNIT:
            a(f"s_cmp_eq_u32 s44, 1\ns_cbranch_scc1 {L}_skip0")
        for f in range(2):
            a(f"s_add_u32 s29, {'s45' if t == 0 and HALF_UNIT else 's43'}, {t * 2048 + f * 1024}")
            if SHAPE16:
                for th in range(2):
                    B = A + 8 * f + 4 * th
                    a(f"v_cvt_pk_bf16_f32 v{B}, v{B}, v{B + 1}\nv_cvt_pk_bf16_f32 v{B + 1}, v{B + 2}, v{B + 3}")
                    a(f"buffer_store_dwordx2 v[{B}:{B + 1}], v{V_ST}, s[32:35], s29 offen offset:{256 * th}{sf}")
            else:
                for i in range(4):
                    a(f"v_cvt_pk_bf16_f32 v{A + 4 * f + i}, v{A + 8 * f + 2 * i}, v{A + 8 * f + 2 * i + 1}")
                a(f"buffer_store_dwordx4 {r(A + 4 * f)}, v{V_L16}, s[32:35], s29 offen{sf}")
        if t == 0 and not HALF_UNIT:
            a(f"{L}_skip0:")
    if EARLY_STORE:
        if fused1 and P3_NEW:
            a(f"v_mov_b32 v10, {attn.ACNT}\nv_mov_b32 v12, 0\nv_mov_b32 v13, 0\nds_write_b64 v10, v[12:13]\ns_waitcnt lgkmcnt(0)")
        a("s_barrier")
        phase_stamp(a, 15, "s20", L=L)
        if fused1 and P3_NEW:
            a(f"""s_waitcnt vmcnt(0)
            v_mov_b32 v11, 1
            s_mov_b64 exec, 1
            ds_add_u32 v10, v11 offset:4
            s_mov_b64 exec, -1
            s_cmp_eq_u32 s21, 0
            s_cbranch_scc0 {L}_nops
            s_mov_b32 s94, {1 << 20}
            {L}_pspin:
            ds_read_b32 v11, v10 offset:4
            s_waitcnt lgkmcnt(0)
            v_readfirstlane_b32 s95, v11
            s_sub_u32 s94, s94, 1
            s_cmp_eq_u32 s94, 0
            s_cbranch_scc1 {L}_pok
            s_cmp_ge_u32 s95, 4
            s_cbranch_scc0 {L}_pspin
            {L}_pok:
            s_lshr_b32 s55, s22, 2
            s_add_u32 s55, s55, {p3.CNT_PART}
            s_lshl_b32 s55, s55, 7""")
            p3.signal(a, "s55", 1, base="s[92:93]", tmpv=(12, 13))
            a(f"{L}_nops:\ns_waitcnt lgkmcnt(0)")
            p3f.stage(a, L)
    if stamps:
        a(f"""s_load_dwordx2 s[54:55], s[0:1], {KA_DBG}
        s_lshl_b32 s56, s2, 3
        s_add_u32 s56, s56, s20
        s_lshl_b32 s56, s56, 8
        s_add_u32 s56, s56, 8192
        v_lshlrev_b32 v157, 2, v0
        v_add_u32 v157, s56, v157
        s_waitcnt lgkmcnt(0)
        global_store_dword v157, v156, s[54:55]""")
    if not (fused1 and P3_NEW):
        a("s_waitcnt vmcnt(0)")


def p2_body(a, L, timing=False, prio=None, fprio=None, sf="", off=(), fuse3=False, fused1=False, steps=None):
    global STEPS_FUSED
    if steps:
        assert sum(steps) == NSTEP and max(steps) <= 10
        STEPS_FUSED = list(steps)
    attn.head_and_block(a, "s2")
    a(f"s_waitcnt lgkmcnt(0)\ns_cmp_lt_u32 s20, 4\ns_cbranch_scc1 {L}_attn")
    if fprio is not None:
        a(f"s_setprio {fprio}")
    ffn_role(a, L, sf, off, timing, fused1)
    if fuse3 and fused1 and P3_NEW:
        phase_stamp(a, 16, "s20", L=L)
        a(f"s_cmp_eq_u32 s63, 0\ns_cbranch_scc1 {L}_p3end\ns_waitcnt vmcnt(0)\ns_barrier\ns_branch {L}_p3end")
    if fuse3 and fused1 and P3_HYB:
        a(f"""s_add_u32 s61, s17, {p3.CNT_O}
        s_lshl_b32 s61, s61, 7
        s_lshr_b32 s60, s22, 2
        s_add_u32 s60, s60, {p3.CNT_PART}
        s_lshl_b32 s60, s60, 7
        s_barrier
        s_cmp_eq_u32 s20, 4
        s_cbranch_scc0 {L}_nosig""")
        p3.signal(a, "s61", 1, base="s[92:93]", tmpv=(2, 3))
        p3.signal(a, "s60", 1, base="s[92:93]", tmpv=(2, 3))
        a(f"{L}_nosig:")
        p3f.stage(a, L)
        a(f"s_cmp_eq_u32 s63, 0\ns_cbranch_scc1 {L}_p3end\ns_waitcnt vmcnt(0)\ns_barrier\ns_branch {L}_p3end")
    a(f"s_branch {L}_fin\n{L}_attn:")
    if "attn" in off:
        for i in range(9):
            a("s_barrier")
    else:
        mp = MAP_FUSED if fused1 else MAP_PLAIN
        attn.attn_role(a, L, R, False, lds_base=mp[0], kvs=mp[1], prio=prio, sf=sf, stamps=timing, lf=" sc1" if fused1 else "", preloaded=fused1 and Q_PRE,
                       before_drain=(lambda: (a(f"s_add_u32 s65, s17, {p3.CNT_O}\ns_lshl_b32 s65, s65, 7"), p3f.setup(a, L))) if fused1 and fuse3 and (P3_NEW or P3_HYB) else None)
    a(f"{L}_fin:")
    if timing:
        attn.timing_store(a, "s60", "s20")
    if fuse3 and fused1 and P3_NEW:
        a(f"""v_mov_b32 v2, {attn.ACNT}
        v_mov_b32 v3, 1
        s_mov_b64 exec, 1
        ds_add_u32 v2, v3
        s_mov_b64 exec, -1
        s_cmp_eq_u32 s20, 0
        s_cbranch_scc0 {L}_nosig
        s_mov_b32 s94, {1 << 20}
        {L}_aspin:
        ds_read_b32 v3, v2
        s_waitcnt lgkmcnt(0)
        v_readfirstlane_b32 s95, v3
        s_sub_u32 s94, s94, 1
        s_cmp_eq_u32 s94, 0
        s_cbranch_scc1 {L}_aok
        s_cmp_ge_u32 s95, 4
        s_cbranch_scc0 {L}_aspin
        {L}_aok:""")
        phase_stamp(a, 17, "s20", wave=0, L=L, tmp=110)
        p3.signal(a, "s65", 1, base="s[92:93]", tmpv=(2, 3))
        a(f"{L}_nosig:\ns_waitcnt lgkmcnt(0)")
        p3f.main(a, L, sf=OUT_SF)
    elif fuse3 and fused1 and P3_HYB:
        a("s_barrier")
        p3f.main(a, L, sf=OUT_SF)
    elif fuse3:
        a(f"""s_barrier
        s_cmp_eq_u32 s20, 4
        s_cbranch_scc0 {L}_nosig
        s_add_u32 s92, s6, {WS_CNT}
        s_addc_u32 s93, s7, 0
        s_add_u32 s54, s17, {p3.CNT_O}
        s_lshl_b32 s54, s54, 7
        s_lshr_b32 s55, s22, 2
        s_add_u32 s55, s55, {p3.CNT_PART}
        s_lshl_b32 s55, s55, 7
        v_mov_b32 v2, s54
        v_mov_b32 v3, s55
        v_mov_b32 v4, 1
        s_mov_b64 exec, 1
        global_atomic_add v2, v4, s[92:93] sc1
        global_atomic_add v3, v4, s[92:93] sc1
        s_mov_b64 exec, -1
        {L}_nosig:""")
        p3.p3_body(a, L, "s20", True, OUT_SF, " sc1")


def k2_kernel(L="k2_kernel", timing=False, prio=None, fprio=None, sf="", off=(), rt=False, pattern="E", vzero=True, fuse3=False):
    attn.PATTERN = pattern
    attn.VZERO = vzero
    if fuse3:
        sf = " sc1"
    a = Asm()
    if rt:
        rt_stamp_begin(a)
    if timing:
        a("s_memtime s[60:61]")
    a(f"""s_cmp_ge_u32 s2, 256
    s_cbranch_scc1 {L}_end
    s_load_dwordx2 s[6:7], s[0:1], {KA_WS}
    s_load_dwordx2 s[36:37], s[0:1], {KA_W2}
    v_lshrrev_b32 v5, 6, v0
    v_and_b32 v0, 63, v0
    s_nop 0
    v_readfirstlane_b32 s20, v5""")
    p2_body(a, L, timing, prio, fprio, sf, off, fuse3)
    if rt:
        a("s_waitcnt vmcnt(0)")
        rt_stamp_end(a, 1, L)
    a(f"{L}_end:\ns_endpgm")
    return kernel_head(L) + a.text() + kernel_desc(L, 256 if fuse3 else 160)
```

```python
from asmlib import *
from layout import *
from attn import r, fbits

WO_IMG = 576 * 128
P3_LDS = WO_IMG + 3 * 4096
NPART = 4
HALF_UNIT = True
SINGLE_POLL = False
SLEEP = 8
KEPT = False
OFB = 112
ACC = (16, 32)
RING = [48 + 4 * i for i in range(8)]
EM = (80, 84)
XR = 88
CNT_O, CNT_PART, CNT_H = 0, 8, 24


class Queue:
    def __init__(self):
        self.n = 0
        self.pos = {}

    def issue(self, tag=None):
        self.n += 1
        if tag is not None:
            self.pos[tag] = self.n

    def need(self, tag):
        return self.n - self.pos[tag]


DBG_QKV, DBG_ZERO, DBG_H = 0, 64, 128


def poll(a, L, tag, conds, base="s[92:93]", tmpv=(2, 3), limit=1 << 16, sleep=8):
    va, vd = tmpv
    a(f"s_mov_b32 s94, {limit}\n{L}_poll_{tag}:")
    for n, c in enumerate(conds):
        a(f"v_mov_b32 v{va}, {c[0]}\nglobal_load_dword v{vd + n}, v{va}, {base} sc1")
    a("s_waitcnt vmcnt(0)")
    for n, c in enumerate(conds):
        a(f"v_readfirstlane_b32 s95, v{vd + n}\ns_nop 0")
        if len(c) > 2:
            a(f"s_lshr_b32 s95, s95, {c[2]}\ns_and_b32 s95, s95, 0xff")
        a(f"s_cmp_ge_u32 s95, {c[1]}\ns_cbranch_scc0 {L}_again_{tag}")
    a(f"""s_branch {L}_ok_{tag}
    {L}_again_{tag}:
    s_sub_u32 s94, s94, 1
    s_cmp_eq_u32 s94, 0
    s_cbranch_scc1 {L}_ok_{tag}
    s_sleep {sleep}
    s_branch {L}_poll_{tag}
    {L}_ok_{tag}:""")


def signal(a, off, inc, base="s[90:91]", tmpv=(2, 3)):
    a(f"""v_mov_b32 v{tmpv[0]}, {off}
    v_mov_b32 v{tmpv[1]}, {inc}
    s_mov_b64 exec, 1
    global_atomic_add v{tmpv[0]}, v{tmpv[1]}, {base} sc1
    s_mov_b64 exec, -1""")


def p3_body(a, L, wave="s20", fused=False, sf="", lf=""):
    if fused and KEPT:
        a("s_mov_b32 s36, s86\ns_mov_b32 s37, s87\ns_mov_b32 s38, s88\ns_mov_b32 s39, s89")
    else:
        a(f"""s_load_dwordx2 s[4:5], s[0:1], {KA_X}
        s_load_dwordx2 s[6:7], s[0:1], {KA_WS}
        s_load_dwordx2 s[36:37], s[0:1], {KA_WO}
        s_load_dwordx2 s[38:39], s[0:1], {KA_OUT}""")
    a(f"""s_and_b32 s16, s2, 7
    s_lshr_b32 s17, s2, 3
    s_mul_i32 s18, s16, 63
    s_add_u32 s18, s18, 1
    s_lshr_b32 s18, s18, 1
    s_add_u32 s19, s16, 1
    s_mul_i32 s19, s19, 63
    s_add_u32 s19, s19, 1
    s_lshr_b32 s19, s19, 1
    s_add_u32 s18, s18, s17
    s_cmp_ge_u32 s18, s19
    s_cbranch_scc1 {L}_p3end""")
    a(f"""s_mul_i32 s21, s18, 7282
    s_lshr_b32 s21, s21, 16
    s_mul_i32 s22, s21, 9
    s_sub_u32 s22, s18, s22
    s_mul_i32 s23, s21, 3
    s_lshl_b32 s24, s21, 1
    s_add_u32 s24, s24, 8
    s_cmp_lt_u32 s21, 8
    s_cselect_b32 s23, s23, s24
    s_cselect_b32 s25, 3, 2
    v_lshrrev_b32 v2, 3, v0
    s_movk_i32 s27, 1152
    v_mul_lo_u32 v3, v2, s27
    v_bfe_u32 v4, v0, 4, 1
    v_bfe_u32 v5, v0, 2, 1
    v_xor_b32 v4, v4, v5
    v_lshlrev_b32 v4, 6, v4
    v_and_b32 v5, 3, v0
    v_lshlrev_b32 v5, 4, v5
    v_add3_u32 v3, v3, v4, v5
    v_lshlrev_b32 v1, 4, v0
    s_lshl_b32 s28, s22, 7
    s_mul_i32 s29, {wave}, {9 * 8 * 1152}
    s_add_u32 s28, s28, s29
    s_mul_i32 s30, {wave}, {9 * 1024}
    s_add_u32 s26, s23, {wave}
    s_waitcnt lgkmcnt(0)""")
    a.srd(44, 36, D * D * 2)
    vq = Queue()
    for q in range(9):
        a(f"s_add_u32 m0, s30, {q * 1024}\ns_add_u32 s29, s28, {q * 8 * 1152}")
        a("buffer_load_dwordx4 v3, s[44:47], s29 offen lds")
        vq.issue(("wo", q))
    a(f"s_cmp_ge_u32 {wave}, s25\ns_cbranch_scc1 {L}_p3idle")
    a.srd(12, 6, OF_BYTES, WS_OF)
    a.srd(8, 4, S * D * 2)
    a.srd(40, 6, WS_CNT - WS_PART, WS_PART)
    a.srd(48, 38, S * D * 2)
    a(f"""s_lshl_b32 s31, {wave}, 12
    s_add_u32 s31, s31, {WO_IMG}
    s_mul_i32 s32, s26, {32 * 1152}
    s_lshl_b32 s34, s22, 7
    s_add_u32 s32, s32, s34
    s_mul_i32 s35, s26, {18 * 2048}
    s_lshl_b32 s34, s22, 12
    s_add_u32 s35, s35, s34
    s_lshl_b32 s33, s26, 15
    s_lshl_b32 s59, s26, 12
    s_add_u32 s59, s59, {OFR_OFF}
    v_lshrrev_b32 v6, 1, v2
    v_and_b32 v7, 7, v0""")
    for q in range(4):
        a(f"""v_add_u32 v8, {4 * q}, v6
        v_and_b32 v8, 7, v8
        v_xor_b32 v8, v8, v7
        v_lshlrev_b32 v8, 4, v8
        v_mad_u32_u24 v8, v2, s27, v8
        s_add_u32 m0, s31, {q * 1024}
        s_add_u32 s29, s32, {q * 8 * 1152}
        buffer_load_dwordx4 v8, s[8:11], s29 offen lds""")
        vq.issue(("x", q))
    a(f"""v_and_b32 v2, 15, v0
    v_lshrrev_b32 v3, 2, v2
    v_and_b32 v4, 3, v2
    v_lshlrev_b32 v4, 3, v4
    v_bfe_u32 v5, v0, 4, 1
    v_lshlrev_b32 v5, 5, v5
    v_add_u32 v4, v4, v5
    v_lshrrev_b32 v5, 5, v0
    v_lshrrev_b32 v6, 1, v3
    v_lshlrev_b32 v7, 6, v6
    v_lshlrev_b32 v8, 2, v5
    v_add_u32 v9, v8, v3
    v_lshlrev_b32 v9, 7, v9
    v_add3_u32 v10, v9, v4, v7
    v_xor_b32 v7, 64, v7
    v_add3_u32 v11, v9, v4, v7
    v_xor_b32 v7, 64, v7
    v_add_u32 v9, v8, v6
    v_mul_u32_u24 v9, 18, v9
    v_and_b32 v3, 1, v3
    v_add3_u32 v9, v9, v3, 16
    v_lshlrev_b32 v9, 7, v9
    v_add3_u32 v12, v9, v4, v7
    v_xor_b32 v7, 64, v7
    v_add3_u32 v13, v9, v4, v7
    v_add_u32 v14, {16 * 2304}, v10
    v_add_u32 v15, {16 * 2304}, v11""")
    a("""v_and_b32 v2, 31, v0
    v_lshrrev_b32 v3, 5, v0
    v_lshlrev_b32 v3, 2, v3
    v_sub_u32 v2, v2, v3
    v_mov_b32 v4, 0x3f80
    v_mov_b32 v5, 0x3f800000""")
    for f in range(2):
        for d in range(4):
            i0 = 2 * d
            n0 = 16 * f + (i0 & 3) + 8 * (i0 >> 2)
            a(f"""v_cmp_eq_u32 vcc, {n0}, v2
            v_cmp_eq_u32 s[52:53], {n0 + 1}, v2
            s_nop 0
            v_cndmask_b32 v6, 0, v4, vcc
            v_cndmask_b32 v7, 0, v5, s[52:53]
            v_or_b32 v{EM[f] + d}, v6, v7""")
    first = [True, True]

    def mm(T, A, B):
        c = "0" if first[T] else r(ACC[T], 16)
        first[T] = False
        a(f"v_mfma_f32_32x32x16_bf16 {r(ACC[T], 16)}, {A}, {B}, {c}")
    late = [(t, T, f) for t in range(NPART) for T in range(2) for f in range(2)]

    def x_reads():
        a(f"""v_and_b32 v2, 31, v0
        v_lshrrev_b32 v3, 1, v2
        v_and_b32 v3, 7, v3
        v_lshlrev_b32 v2, 7, v2
        v_lshrrev_b32 v4, 5, v0
        v_lshlrev_b32 v4, 3, v4
        v_add3_u32 v2, v2, v4, s31""")
        for T in range(2):
            for f in range(2):
                for piece in range(2):
                    c = 4 * T + 2 * f + piece
                    d = XR + 8 * T + 4 * f + 2 * piece
                    a(f"v_xor_b32 v5, {c}, v3\nv_lshlrev_b32 v5, 4, v5\nv_add_u32 v5, v5, v2")
                    a(f"ds_read_b64 v[{d}:{d + 1}], v5")

    def part_load(n, reg):
        t, TT, f = late[n]
        a(f"s_add_u32 s29, s35, {t * 64 * 18 * 2048 + TT * 2048 + f * 1024}")
        a(f"buffer_load_dwordx4 {r(reg)}, v1, s[40:43], s29 offen{lf}")
        vq.issue(("p", t, TT, f))

    def part_and_x_mfmas():
        for n, (t, T, f) in enumerate(late):
            a(f"s_waitcnt vmcnt({vq.need(('p', t, T, f))})")
            mm(T, r(EM[f]), r(OFB + 4 * n))
        a("s_waitcnt lgkmcnt(0)")
        for T in range(2):
            for f in range(2):
                mm(T, r(EM[f]), r(XR + 8 * T + 4 * f))

    XB0 = OFB + 64

    def extra_base():
        a(f"""s_lshl_b32 s60, s26, 12
        s_add_u32 s60, s60, {WS_PARTX - WS_PART}
        s_add_u32 s61, s60, 2048
        s_cmp_eq_u32 s22, 6
        s_cselect_b32 s60, s61, s60
        s_cselect_b32 s61, 1, 0
        s_cmp_eq_u32 s22, 2
        s_cselect_b32 s61, 1, s61
        s_cmp_eq_u32 s61, 1
        s_cselect_b32 s60, s60, 0x40000000""")

    def extra_load(n):
        t, f = divmod(n, 2)
        a(f"s_add_u32 s29, s60, {t * 64 * 2 * 2048 + f * 1024}")
        a(f"buffer_load_dwordx4 {r(XB0 + 4 * n)}, v1, s[40:43], s29 offen{lf}")
        vq.issue(("e", n))

    def extra_mfmas():
        a(f"s_waitcnt vmcnt({vq.need(('e', 7))})")
        for which, (pair, T) in enumerate(((2, 0), (6, 1))):
            a(f"s_cmp_eq_u32 s22, {pair}\ns_cbranch_scc0 {L}_nox{which}")
            for n in range(8):
                a(f"v_mfma_f32_32x32x16_bf16 {r(ACC[T], 16)}, {r(EM[n % 2])}, {r(XB0 + 4 * n)}, {r(ACC[T], 16)}")
            a(f"{L}_nox{which}:")

    def extra_halves():
        if not HALF_UNIT:
            return
        extra_base()
        for n in range(8):
            extra_load(n)
        extra_mfmas()

    if fused:
        a(f"""s_add_u32 s92, s6, {WS_CNT}
        s_addc_u32 s93, s7, 0
        s_add_u32 s58, s23, s25
        s_sub_u32 s58, s58, 1
        s_lshr_b32 s54, s23, 3
        s_lshl_b32 s54, s54, 7
        s_lshr_b32 s55, s58, 3
        s_lshl_b32 s55, s55, 7
        s_lshr_b32 s56, s23, 2
        s_add_u32 s56, s56, {CNT_PART}
        s_lshl_b32 s56, s56, 7
        s_lshr_b32 s57, s58, 2
        s_add_u32 s57, s57, {CNT_PART}
        s_lshl_b32 s57, s57, 7
        s_cmp_eq_u32 {wave}, 0
        s_cbranch_scc0 {L}_p3nopoll1""")
        if SINGLE_POLL:
            poll(a, L, "p3a", [("s56", 16), ("s57", 16), ("s54", 32), ("s55", 32)], tmpv=(2, 4), sleep=SLEEP)
            phase_stamp(a, 18, wave, wave=0, L=L, tmp=110)
            a(f"{L}_p3nopoll1:\ns_waitcnt vmcnt(0)\ns_barrier")
            vq = Queue()
        else:
            poll(a, L, "p3a", [("s56", 16), ("s57", 16)], tmpv=(2, 4), sleep=SLEEP)
            a(f"{L}_p3nopoll1:\ns_waitcnt vmcnt(0)\ns_barrier")
            vq = Queue()
            for n in range(len(late)):
                part_load(n, OFB + 4 * n)
            x_reads()
            part_and_x_mfmas()
            extra_halves()
            a(f"s_cmp_eq_u32 {wave}, 0\ns_cbranch_scc0 {L}_p3nopoll2")
            poll(a, L, "p3b", [("s54", 32), ("s55", 32)], tmpv=(2, 4), sleep=SLEEP)
            phase_stamp(a, 18, wave, wave=0, L=L, tmp=110)
            a(f"{L}_p3nopoll2:\ns_barrier")
    a("""v_and_b32 v8, 31, v0
    v_lshlrev_b32 v8, 2, v8
    v_lshrrev_b32 v9, 5, v0
    v_lshlrev_b32 v9, 9, v9
    v_add_u32 v8, v8, v9""")
    for k in range(32):
        a(f"s_add_u32 s29, s33, {k * 1024}")
        a(f"buffer_load_dwordx4 {r(OFB + 4 * k)}, v1, s[12:15], s29 offen{lf}")
        vq.issue(("of", k))
    for k in range(32, 36):
        for i in range(4):
            a(f"s_add_u32 s29, s59, {(8 * (k - 32) + i) * 128}")
            a(f"buffer_load_dword v{OFB + 4 * k + i}, v8, s[12:15], s29 offen{lf}")
            vq.issue(("of", k))
    if not fused:
        a(f"s_waitcnt vmcnt({min(63, vq.need(('wo', 8)))})\ns_barrier")
    units = [(j, T) for j in range(36) for T in range(2)]
    lq = Queue()

    def wread(g):
        j, T = units[g]
        buf = RING[g % 8]
        if j < 32:
            sw = T ^ (j & 1)
            reg = (10 + sw) if j < 16 else (14 + sw)
            off = (j % 16) * 2304
            second = 1024
        else:
            reg = 12 + T
            off = (j - 32) * 18432
            second = 4608
        a(f"ds_read_b64_tr_b16 v[{buf}:{buf + 1}], v{reg} offset:{off}")
        lq.issue()
        a(f"ds_read_b64_tr_b16 v[{buf + 2}:{buf + 3}], v{reg} offset:{off + second}")
        lq.issue(g)
    for g in range(5):
        wread(g)
    for g, (j, T) in enumerate(units):
        if T == 0:
            a(f"s_waitcnt vmcnt({min(63, vq.need(('of', j)))})")
        a(f"s_waitcnt lgkmcnt({lq.need(g)})")
        mm(T, r(RING[g % 8]), r(OFB + 4 * j))
        if g + 5 < len(units):
            wread(g + 5)
        if (not fused or SINGLE_POLL) and T == 1 and 2 <= j < 2 + len(late):
            part_load(j - 2, OFB + 4 * (j - 2))
        if HALF_UNIT and (not fused or SINGLE_POLL) and T == 1 and 18 <= j < 26:
            if j == 18:
                extra_base()
            extra_load(j - 18)
    phase_stamp(a, 19, wave, wave=0, L=L, tmp=110)
    if not fused or SINGLE_POLL:
        x_reads()
        part_and_x_mfmas()
        if HALF_UNIT:
            extra_mfmas()
    a(f"""v_and_b32 v2, 31, v0
    v_lshrrev_b32 v3, 1, v2
    v_and_b32 v3, 7, v3
    v_lshlrev_b32 v2, 7, v2
    v_lshrrev_b32 v4, 5, v0
    v_lshlrev_b32 v4, 3, v4
    v_add3_u32 v2, v2, v4, s31""")
    a("s_nop 7\ns_nop 7")
    for T in range(2):
        A = ACC[T]
        for g in range(4):
            a(f"v_cvt_pk_bf16_f32 v{A + 2 * g}, v{A + 4 * g}, v{A + 4 * g + 1}")
            a(f"v_cvt_pk_bf16_f32 v{A + 2 * g + 1}, v{A + 4 * g + 2}, v{A + 4 * g + 3}")
        for g in range(4):
            c = 4 * T + g
            a(f"v_xor_b32 v5, {c}, v3\nv_lshlrev_b32 v5, 4, v5\nv_add_u32 v5, v5, v2")
            a(f"ds_write_b64 v5, v[{A + 2 * g}:{A + 2 * g + 1}]")
    a(f"""v_lshrrev_b32 v2, 3, v0
    v_lshrrev_b32 v6, 1, v2
    v_and_b32 v7, 7, v0
    v_add_u32 v9, s31, v1
    s_waitcnt lgkmcnt(0)""")
    for q in range(4):
        a(f"ds_read_b128 {r(48 + 4 * q)}, v9 offset:{q * 1024}")
    for q in range(4):
        a(f"""v_add_u32 v8, {4 * q}, v6
        v_and_b32 v8, 7, v8
        v_xor_b32 v8, v8, v7
        v_lshlrev_b32 v8, 4, v8
        v_mad_u32_u24 v8, v2, s27, v8
        s_add_u32 s29, s32, {q * 8 * 1152}
        s_waitcnt lgkmcnt({3 - q})
        buffer_store_dwordx4 {r(48 + 4 * q)}, v8, s[48:51], s29 offen{sf}""")
    phase_stamp(a, 20, wave, wave=0, L=L, tmp=110)
    a(f"s_branch {L}_p3end\n{L}_p3idle:\ns_waitcnt vmcnt(0)\ns_barrier")
    if fused and not SINGLE_POLL:
        a("s_barrier")
    a(f"{L}_p3end:")


def k3_kernel(L="k3_kernel", timing=False, sf="", rt=False, lf=""):
    a = Asm()
    if rt:
        rt_stamp_begin(a)
    a(f"""s_cmp_ge_u32 s2, 256
    s_cbranch_scc1 {L}_end
    v_lshrrev_b32 v1, 6, v0
    v_and_b32 v0, 63, v0
    s_nop 0
    v_readfirstlane_b32 s20, v1
    s_nop 3""")
    p3_body(a, L, "s20", False, sf, lf)
    if rt:
        a("s_waitcnt vmcnt(0)")
        rt_stamp_end(a, 2, L)
    a(f"{L}_end:\ns_endpgm")
    return kernel_head(L) + a.text() + kernel_desc(L, 256)


K3_LDS = P3_LDS
K3_BLOCK = 512
```

```python
from asmlib import *
from layout import *
from attn import r
from p3 import Queue, poll, WO_IMG, NPART, OFB, ACC, RING, EM, XR, CNT_O, CNT_PART
import p3


def decode(a, L, wave):
    if p3.KEPT:
        a("s_mov_b32 s36, s86\ns_mov_b32 s37, s87\ns_mov_b32 s38, s88\ns_mov_b32 s39, s89")
    else:
        a(f"""s_load_dwordx2 s[4:5], s[0:1], {KA_X}
        s_load_dwordx2 s[36:37], s[0:1], {KA_WO}
        s_load_dwordx2 s[38:39], s[0:1], {KA_OUT}""")
    a(f"""s_and_b32 s16, s2, 7
    s_lshr_b32 s17, s2, 3
    s_mul_i32 s18, s16, 63
    s_add_u32 s18, s18, 1
    s_lshr_b32 s18, s18, 1
    s_add_u32 s19, s16, 1
    s_mul_i32 s19, s19, 63
    s_add_u32 s19, s19, 1
    s_lshr_b32 s19, s19, 1
    s_add_u32 s18, s18, s17
    s_cmp_lt_u32 s18, s19
    s_cselect_b32 s63, 1, 0
    s_mul_i32 s21, s18, 7282
    s_lshr_b32 s21, s21, 16
    s_mul_i32 s22, s21, 9
    s_sub_u32 s22, s18, s22
    s_mul_i32 s23, s21, 3
    s_lshl_b32 s24, s21, 1
    s_add_u32 s24, s24, 8
    s_cmp_lt_u32 s21, 8
    s_cselect_b32 s23, s23, s24
    s_cselect_b32 s25, 3, 2
    s_movk_i32 s27, 1152
    s_add_u32 s26, s23, {wave}
    s_waitcnt lgkmcnt(0)""")


def stage(a, L):
    decode(a, L, "s20")
    a(f"""s_cmp_eq_u32 s63, 0
    s_cbranch_scc1 {L}_nostage
    s_sub_u32 s21, s20, 4
    v_lshrrev_b32 v2, 3, v0
    v_mul_lo_u32 v3, v2, s27
    v_bfe_u32 v4, v0, 4, 1
    v_bfe_u32 v5, v0, 2, 1
    v_xor_b32 v4, v4, v5
    v_lshlrev_b32 v4, 6, v4
    v_and_b32 v5, 3, v0
    v_lshlrev_b32 v5, 4, v5
    v_add3_u32 v3, v3, v4, v5
    s_lshl_b32 s28, s22, 7
    s_mul_i32 s29, s21, {18 * 8 * 1152}
    s_add_u32 s28, s28, s29
    s_mul_i32 s30, s21, {18 * 1024}""")
    a.srd(44, 36, D * D * 2)
    for q in range(18):
        a(f"s_add_u32 m0, s30, {q * 1024}\ns_add_u32 s29, s28, {q * 8 * 1152}")
        a("buffer_load_dwordx4 v3, s[44:47], s29 offen lds")
    a(f"s_cmp_ge_u32 s21, s25\ns_cbranch_scc1 {L}_nostage")
    a.srd(8, 4, S * D * 2)
    a(f"""s_lshl_b32 s31, s21, 12
    s_add_u32 s31, s31, {WO_IMG}
    s_add_u32 s32, s23, s21
    s_mul_i32 s32, s32, {32 * 1152}
    s_lshl_b32 s34, s22, 7
    s_add_u32 s32, s32, s34
    v_lshrrev_b32 v6, 1, v2
    v_and_b32 v7, 7, v0""")
    for q in range(4):
        a(f"""v_add_u32 v8, {4 * q}, v6
        v_and_b32 v8, 7, v8
        v_xor_b32 v8, v8, v7
        v_lshlrev_b32 v8, 4, v8
        v_mad_u32_u24 v8, v2, s27, v8
        s_add_u32 m0, s31, {q * 1024}
        s_add_u32 s29, s32, {q * 8 * 1152}
        buffer_load_dwordx4 v8, s[8:11], s29 offen lds""")
    a(f"{L}_nostage:")


def setup(a, L):
    decode(a, L, "s20")
    a.srd(12, 6, OF_BYTES, WS_OF)
    a.srd(40, 6, WS_CNT - WS_PART, WS_PART)
    a.srd(48, 38, S * D * 2)
    a(f"""s_lshl_b32 s31, s20, 12
    s_add_u32 s31, s31, {WO_IMG}
    s_mul_i32 s32, s26, {32 * 1152}
    s_lshl_b32 s34, s22, 7
    s_add_u32 s32, s32, s34
    s_mul_i32 s35, s26, {18 * 2048}
    s_lshl_b32 s34, s22, 12
    s_add_u32 s35, s35, s34
    s_lshl_b32 s33, s26, 15
    s_lshl_b32 s59, s26, 12
    s_add_u32 s59, s59, {OFR_OFF}
    v_lshlrev_b32 v1, 4, v0
    v_and_b32 v2, 15, v0
    v_lshrrev_b32 v3, 2, v2
    v_and_b32 v4, 3, v2
    v_lshlrev_b32 v4, 3, v4
    v_bfe_u32 v5, v0, 4, 1
    v_lshlrev_b32 v5, 5, v5
    v_add_u32 v4, v4, v5
    v_lshrrev_b32 v5, 5, v0
    v_lshrrev_b32 v6, 1, v3
    v_lshlrev_b32 v7, 6, v6
    v_lshlrev_b32 v8, 2, v5
    v_add_u32 v9, v8, v3
    v_lshlrev_b32 v9, 7, v9
    v_add3_u32 v10, v9, v4, v7
    v_xor_b32 v7, 64, v7
    v_add3_u32 v11, v9, v4, v7
    v_xor_b32 v7, 64, v7
    v_add_u32 v9, v8, v6
    v_mul_u32_u24 v9, 18, v9
    v_and_b32 v3, 1, v3
    v_add3_u32 v9, v9, v3, 16
    v_lshlrev_b32 v9, 7, v9
    v_add3_u32 v12, v9, v4, v7
    v_xor_b32 v7, 64, v7
    v_add3_u32 v13, v9, v4, v7
    v_add_u32 v14, {16 * 2304}, v10
    v_add_u32 v15, {16 * 2304}, v11
    v_and_b32 v2, 31, v0
    v_lshrrev_b32 v3, 5, v0
    v_lshlrev_b32 v3, 2, v3
    v_sub_u32 v2, v2, v3
    v_mov_b32 v4, 0x3f80
    v_mov_b32 v5, 0x3f800000""")
    for f in range(2):
        for d in range(4):
            i0 = 2 * d
            n0 = 16 * f + (i0 & 3) + 8 * (i0 >> 2)
            a(f"""v_cmp_eq_u32 vcc, {n0}, v2
            v_cmp_eq_u32 s[52:53], {n0 + 1}, v2
            s_nop 0
            v_cndmask_b32 v6, 0, v4, vcc
            v_cndmask_b32 v7, 0, v5, s[52:53]
            v_or_b32 v{EM[f] + d}, v6, v7""")
    a(f"""s_add_u32 s92, s6, {WS_CNT}
    s_addc_u32 s93, s7, 0
    s_add_u32 s58, s23, s25
    s_sub_u32 s58, s58, 1
    s_lshr_b32 s54, s23, 3
    s_lshl_b32 s54, s54, 7
    s_lshr_b32 s55, s58, 3
    s_lshl_b32 s55, s55, 7
    s_lshr_b32 s56, s23, 2
    s_add_u32 s56, s56, {CNT_PART}
    s_lshl_b32 s56, s56, 7
    s_lshr_b32 s57, s58, 2
    s_add_u32 s57, s57, {CNT_PART}
    s_lshl_b32 s57, s57, 7""")


def main(a, L, sf="", lf=" sc1", sleep=2):
    wave = "s20"
    a(f"""s_cmp_eq_u32 s63, 0
    s_cbranch_scc1 {L}_p3end
    s_cmp_ge_u32 {wave}, s25
    s_cbranch_scc1 {L}_p3idle
    s_cmp_eq_u32 {wave}, 0
    s_cbranch_scc0 {L}_p3np1""")
    poll(a, L, "p3a", [("s56", 16), ("s57", 16), ("s54", 32), ("s55", 32)], tmpv=(2, 4), sleep=sleep)
    a(f"{L}_p3np1:\ns_barrier")
    phase_stamp(a, 18, wave, wave=0, L=L, tmp=110)
    vq = Queue()
    first = [True, True]

    def mm(T, A, B):
        c = "0" if first[T] else r(ACC[T], 16)
        first[T] = False
        a(f"v_mfma_f32_32x32x16_bf16 {r(ACC[T], 16)}, {A}, {B}, {c}")
    late = [(t, T, f) for t in range(NPART) for T in range(2) for f in range(2)]
    a("""v_and_b32 v8, 31, v0
    v_lshlrev_b32 v8, 2, v8
    v_lshrrev_b32 v9, 5, v0
    v_lshlrev_b32 v9, 9, v9
    v_add_u32 v8, v8, v9""")
    for k in range(32):
        a(f"s_add_u32 s29, s33, {k * 1024}")
        a(f"buffer_load_dwordx4 {r(OFB + 4 * k)}, v1, s[12:15], s29 offen{lf}")
        vq.issue(("of", k))
    for k in range(32, 36):
        for i in range(4):
            a(f"s_add_u32 s29, s59, {(8 * (k - 32) + i) * 128}")
            a(f"buffer_load_dword v{OFB + 4 * k + i}, v8, s[12:15], s29 offen{lf}")
            vq.issue(("of", k))
    units = [(j, T) for j in range(36) for T in range(2)]
    lq = Queue()

    def wread(g):
        j, T = units[g]
        buf = RING[g % 8]
        if j < 32:
            sw = T ^ (j & 1)
            reg = (10 + sw) if j < 16 else (14 + sw)
            off = (j % 16) * 2304
            second = 1024
        else:
            reg = 12 + T
            off = (j - 32) * 18432
            second = 4608
        a(f"ds_read_b64_tr_b16 v[{buf}:{buf + 1}], v{reg} offset:{off}")
        lq.issue()
        a(f"ds_read_b64_tr_b16 v[{buf + 2}:{buf + 3}], v{reg} offset:{off + second}")
        lq.issue(g)
    XB0 = OFB + 64
    for g in range(5):
        wread(g)
    for g, (j, T) in enumerate(units):
        if T == 0:
            a(f"s_waitcnt vmcnt({min(63, vq.need(('of', j)))})")
        a(f"s_waitcnt lgkmcnt({lq.need(g)})")
        mm(T, r(RING[g % 8]), r(OFB + 4 * j))
        if g + 5 < len(units):
            wread(g + 5)
        if T == 1 and 2 <= j < 2 + len(late):
            t, TT, f = late[j - 2]
            a(f"s_add_u32 s29, s35, {t * 64 * 18 * 2048 + TT * 2048 + f * 1024}")
            a(f"buffer_load_dwordx4 {r(OFB + 4 * (j - 2))}, v1, s[40:43], s29 offen{lf}")
            vq.issue(("p", t, TT, f))
        if p3.HALF_UNIT and T == 1 and 18 <= j < 26:
            if j == 18:
                a(f"""s_lshl_b32 s60, s26, 12
                s_add_u32 s60, s60, {WS_PARTX - WS_PART}
                s_add_u32 s61, s60, 2048
                s_cmp_eq_u32 s22, 6
                s_cselect_b32 s60, s61, s60
                s_cselect_b32 s61, 1, 0
                s_cmp_eq_u32 s22, 2
                s_cselect_b32 s61, 1, s61
                s_cmp_eq_u32 s61, 1
                s_cselect_b32 s60, s60, 0x40000000""")
            t, f = divmod(j - 18, 2)
            a(f"s_add_u32 s29, s60, {t * 64 * 2 * 2048 + f * 1024}")
            a(f"buffer_load_dwordx4 {r(XB0 + 4 * (j - 18))}, v1, s[40:43], s29 offen{lf}")
            vq.issue(("e", j - 18))
    phase_stamp(a, 19, wave, wave=0, L=L, tmp=110)
    a(f"""v_and_b32 v2, 31, v0
    v_lshrrev_b32 v3, 1, v2
    v_and_b32 v3, 7, v3
    v_lshlrev_b32 v2, 7, v2
    v_lshrrev_b32 v4, 5, v0
    v_lshlrev_b32 v4, 3, v4
    v_add3_u32 v2, v2, v4, s31""")
    for T in range(2):
        for f in range(2):
            for piece in range(2):
                c = 4 * T + 2 * f + piece
                d = XR + 8 * T + 4 * f + 2 * piece
                a(f"v_xor_b32 v5, {c}, v3\nv_lshlrev_b32 v5, 4, v5\nv_add_u32 v5, v5, v2")
                a(f"ds_read_b64 v[{d}:{d + 1}], v5")
    for n, (t, T, f) in enumerate(late):
        a(f"s_waitcnt vmcnt({vq.need(('p', t, T, f))})")
        mm(T, r(EM[f]), r(OFB + 4 * n))
    a("s_waitcnt lgkmcnt(0)")
    for T in range(2):
        for f in range(2):
            mm(T, r(EM[f]), r(XR + 8 * T + 4 * f))
    if p3.HALF_UNIT:
        a(f"s_waitcnt vmcnt({vq.need(('e', 7))})")
        for which, (pair, T) in enumerate(((2, 0), (6, 1))):
            a(f"s_cmp_eq_u32 s22, {pair}\ns_cbranch_scc0 {L}_nox{which}")
            for n in range(8):
                a(f"v_mfma_f32_32x32x16_bf16 {r(ACC[T], 16)}, {r(EM[n % 2])}, {r(XB0 + 4 * n)}, {r(ACC[T], 16)}")
            a(f"{L}_nox{which}:")
    a("s_nop 7\ns_nop 7")
    for T in range(2):
        A = ACC[T]
        for g in range(4):
            a(f"v_cvt_pk_bf16_f32 v{A + 2 * g}, v{A + 4 * g}, v{A + 4 * g + 1}")
            a(f"v_cvt_pk_bf16_f32 v{A + 2 * g + 1}, v{A + 4 * g + 2}, v{A + 4 * g + 3}")
        for g in range(4):
            c = 4 * T + g
            a(f"v_xor_b32 v5, {c}, v3\nv_lshlrev_b32 v5, 4, v5\nv_add_u32 v5, v5, v2")
            a(f"ds_write_b64 v5, v[{A + 2 * g}:{A + 2 * g + 1}]")
    a(f"""v_lshrrev_b32 v2, 3, v0
    v_lshrrev_b32 v6, 1, v2
    v_and_b32 v7, 7, v0
    v_add_u32 v9, s31, v1
    s_waitcnt lgkmcnt(0)""")
    for q in range(4):
        a(f"ds_read_b128 {r(48 + 4 * q)}, v9 offset:{q * 1024}")
    for q in range(4):
        a(f"""v_add_u32 v8, {4 * q}, v6
        v_and_b32 v8, 7, v8
        v_xor_b32 v8, v8, v7
        v_lshlrev_b32 v8, 4, v8
        v_mad_u32_u24 v8, v2, s27, v8
        s_add_u32 s29, s32, {q * 8 * 1152}
        s_waitcnt lgkmcnt({3 - q})
        buffer_store_dwordx4 {r(48 + 4 * q)}, v8, s[48:51], s29 offen{sf}""")
    phase_stamp(a, 20, wave, wave=0, L=L, tmp=110)
    a(f"s_branch {L}_p3end\n{L}_p3idle:\ns_barrier\n{L}_p3end:")
```

```python
import struct
from asmlib import *
from layout import *

ZERO_U = 28
TA = (7, 13, 9, 8)
E0, E1, E2, E3, V_CONST, V_L16 = 2, 3, 4, 5, 6, 1
SB, SS, SC = (45, 46, 47), (60, 61, 62), (63, 64, 65)
S_VT = 48


def fbits(x):
    return hex(struct.unpack("<I", struct.pack("<f", x))[0])


def r(base, n=4):
    return f"v[{base}:{base + n - 1}]"


def pos(u):
    return 27 if u == 26 else u


def main_units(i):
    return [pos(9 * i + g) for g in (0, 1, 2, 3, 5, 6, 7, 8)]


TILES = {
    "A": [(False, main_units(0)), (False, main_units(1)), (False, main_units(2)), (True, [4, 13, 22] + [ZERO_U] * 5)],
    "B": [(False, main_units(0)), (False, main_units(1)), (True, [18 + g for g in range(8)]), (True, [27, 4, 13] + [ZERO_U] * 5)],
    "C": [(True, list(range(0, 8))), (True, list(range(8, 16))), (True, list(range(16, 24))), (True, [24, 25, 27] + [ZERO_U] * 5)],
}


def loader_offsets(a, dst):
    a(f"""v_lshrrev_b32 v2, 4, v0
    v_mul_lo_u32 v2, v2, s30
    v_and_b32 v3, 15, v0
    v_lshrrev_b32 v4, 4, v0
    v_lshlrev_b32 v4, 2, v4
    v_xor_b32 v3, v3, v4
    v_lshlrev_b32 v{dst}, 4, v3
    v_cmp_eq_u32 vcc, 13, v3
    v_mov_b32 v9, 200
    s_nop 0
    v_cndmask_b32 v{dst}, v{dst}, v9, vcc
    v_cmp_lt_u32 vcc, 13, v3
    v_mov_b32 v9, 0x40000000
    s_nop 0
    v_cndmask_b32 v{dst}, v{dst}, v9, vcc
    v_add_u32 v{dst}, v{dst}, v2""")


def select(a, dst, key, table, default_expr, tmp):
    a(default_expr)
    for k, v in table.items():
        a(f"v_cmp_eq_u32 vcc, {k}, v{key}\nv_mov_b32 v{tmp}, {v}\ns_nop 0\nv_cndmask_b32 v{dst}, v{dst}, v{tmp}, vcc")


def scalar_setup(a):
    a(f"""s_lshr_b32 s31, s27, 3
    s_mul_i32 s31, s31, {KV_CHUNK}
    s_add_u32 s31, s31, {WS_KV}
    s_and_b32 s32, s27, 7
    s_mul_i32 s33, s32, {VT_TILE}
    s_add_u32 s{S_VT}, s31, s33
    s_add_u32 s{S_VT}, s{S_VT}, {KV_VT}""")
    for i in range(3):
        a(f"""s_mul_i32 s28, s25, 3
        s_add_u32 s28, s28, {i}
        s_sub_u32 s29, s28, 16
        s_lshl_b32 s30, s28, 17
        s_lshl_b32 s33, s27, 10
        s_add_u32 s30, s30, s33
        s_add_u32 s30, s30, {WS_QF1}
        s_mul_i32 s29, s29, {2 * KV_HEAD}
        s_add_u32 s29, s29, s31
        s_lshl_b32 s33, s32, 10
        s_add_u32 s29, s29, s33
        s_cmp_lt_u32 s28, 16
        s_cselect_b32 s{SB[i]}, s30, s29
        s_mov_b32 s29, {KV_HEAD}
        s_cselect_b32 s{SS[i]}, 65536, s29
        s_mov_b32 s29, {fbits(QSCALE)}
        s_cselect_b32 s{SC[i]}, s29, 1.0""")


def rem_base(a, i, dst_base, dst_stride):
    a(f"""s_mul_i32 s28, s25, 3
    s_add_u32 s28, s28, {i}
    s_sub_u32 s29, s28, 16
    s_lshl_b32 s30, s28, 14
    s_lshl_b32 s33, s27, 7
    s_add_u32 s30, s30, s33
    s_add_u32 s30, s30, {WS_QF2}
    s_mul_i32 s29, s29, {2 * KV_HEAD}
    s_add_u32 s29, s29, s31
    s_lshl_b32 s33, s32, 7
    s_add_u32 s29, s29, s33
    s_add_u32 s29, s29, {KV_KF2}
    s_cmp_lt_u32 s28, 16
    s_cselect_b32 {dst_base}, s30, s29
    s_mov_b32 s29, {KV_HEAD}
    s_cselect_b32 {dst_stride}, 8192, s29""")


def variant_setup(a, var):
    for t, (tr, units) in enumerate(TILES[var]):
        base = units[0]
        exc = {g: u for g, u in enumerate(units) if u != base + g}
        select(a, 28, 27, exc, f"v_add_u32 v28, {base}, v27", 29)
        a(f"v_xor_b32 v29, v28, v26\nv_lshlrev_b32 v29, 3, v29\nv_add_u32 v{TA[t]}, v23, v29")
    a(f"v_mul_u32_u24 v24, 320, v17")

    def v_address(dst, col0, head0):
        a(f"""v_add_u32 v25, {col0}, v16
        v_mul_u32_u24 v28, 3641, v25
        v_lshrrev_b32 v28, 16, v28
        v_mul_u32_u24 v29, 18, v28
        v_sub_u32 v29, v25, v29
        v_lshlrev_b32 v29, 4, v29
        v_add_u32 v28, {head0}, v28
        v_mul_u32_u24 v28, {KV_HEAD}, v28
        v_add3_u32 v{dst}, v28, v29, v24""")

    def const_rows(dst, first_lane, head0):
        a(f"""v_subrev_u32 v25, {first_lane}, v16
        v_and_b32 v28, 1, v25
        v_add_u32 v28, 18, v28
        v_lshlrev_b32 v28, 4, v28
        v_lshrrev_b32 v25, 1, v25
        v_add_u32 v25, {head0}, v25
        v_mul_u32_u24 v25, {KV_HEAD}, v25
        v_add3_u32 v25, v25, v28, v24
        v_cmp_le_u32 vcc, {first_lane}, v16
        s_nop 1
        v_cndmask_b32 v{dst}, v{dst}, v25, vcc
        v_and_b32 v25, 1, v16
        v_cmp_eq_u32 vcc, 0, v25
        v_mov_b32 v28, 0x3f803f80
        s_nop 0
        v_cndmask_b32 v{V_CONST}, 0, v28, vcc""")

    def pair_lanes(first_group, npairs):
        a(f"v_bfe_u32 v25, v16, 1, 1\nv_mov_b32 v{E2}, 0")
        for i in range(npairs):
            rem_base(a, i, "s28", "s29")
            a(f"""v_mul_lo_u32 v28, v25, s29
            v_add_u32 v28, s28, v28
            v_lshrrev_b32 v29, 2, v16
            v_cmp_eq_u32 vcc, {first_group + i}, v29
            s_nop 1
            v_cndmask_b32 v{E2}, v{E2}, v28, vcc""")
        a(f"v_lshlrev_b32 v28, 4, v17\nv_add_u32 v{E2}, v{E2}, v28")
    if var == "A":
        pair_lanes(0, 3)
        a(f"v_lshrrev_b32 v29, 2, v16\nv_mov_b32 v{E3}, s{SC[0]}")
        for i in (1, 2):
            a(f"v_cmp_eq_u32 vcc, {i}, v29\nv_mov_b32 v28, s{SC[i]}\ns_nop 0\nv_cndmask_b32 v{E3}, v{E3}, v28, vcc")
        a("s_mov_b32 s54, 0x555\ns_mov_b32 s55, 0x555")
    elif var == "B":
        v_address(E0, 0, 0)
        v_address(E1, 32, 0)
        const_rows(E1, 12, 0)
        pair_lanes(1, 2)
        a("s_mov_b32 s50, 0xf000\ns_mov_b32 s51, 0xf000\ns_mov_b32 s52, 0xf00f\ns_mov_b32 s53, 0xf00f\ns_mov_b32 s54, 0x550\ns_mov_b32 s55, 0x550")
    else:
        a("s_mul_i32 s28, s25, 6\ns_sub_u32 s28, s28, 64")
        for t, e in enumerate((E0, E1, E2, E3)):
            v_address(e, 32 * t, "s28")
        const_rows(E3, 12, "s28")
        a("s_mov_b32 s50, 0xfff000\ns_mov_b32 s51, 0xfff000\ns_mov_b32 s52, 0xffffff\ns_mov_b32 s53, 0xffffff")


def pack(A, f):
    return [f"v_cvt_pk_bf16_f32 v{A + 4 * f + i}, v{A + 8 * f + 2 * i}, v{A + 8 * f + 2 * i + 1}" for i in range(4)]


def epilogue(var, ACC, sf):
    it = []

    def main_tile(i, A):
        x = [f"v_mul_f32 v{A + k}, s{SC[i]}, v{A + k}" for k in range(16)]
        for f in range(2):
            x += pack(A, f)
            off = f"s_add_u32 s29, s{SB[i]}, s{SS[i]}" if f else f"s_mov_b32 s29, s{SB[i]}"
            x.append(f"{off}\nbuffer_store_dwordx4 {r(A + 4 * f)}, v{V_L16}, s[12:15], s29 offen{sf}")
        return x

    def v_tile(A, e, masked=None):
        x = []
        for f in range(2):
            x += pack(A, f)
            if masked:
                x += [f"v_cndmask_b32 v{A + 4 * f + k}, v{A + 4 * f + k}, v{V_CONST}, s[50:51]" for k in range(4)]
                x.append(f"s_mov_b64 exec, s[52:53]\nbuffer_store_dwordx4 {r(A + 4 * f)}, v{e}, s[12:15], s{S_VT} offen offset:{640 * f}{sf}\ns_mov_b64 exec, -1")
            else:
                x.append(f"buffer_store_dwordx4 {r(A + 4 * f)}, v{e}, s[12:15], s{S_VT} offen offset:{640 * f}{sf}")
        return x
    if var == "A":
        X, T = ACC[3], ACC[1] + 8
        it += [f"v_mul_f32 v{X + k}, v{E3}, v{X + k}" for k in range(16)]
        it += main_tile(0, ACC[0]) + main_tile(1, ACC[1]) + main_tile(2, ACC[2])
        for b in range(2):
            it += [f"v_mov_b32_dpp v{T + k}, v{X + 8 * b + k} quad_perm:[1,0,3,2] row_mask:0xf bank_mask:0xf" for k in range(8)]
            it += [f"v_cvt_pk_bf16_f32 v{X + 8 * b + k}, v{X + 8 * b + k}, v{T + k}" for k in range(8)]
            for g in (2 * b, 2 * b + 1):
                it.append(f"s_mov_b64 exec, s[54:55]\nbuffer_store_dwordx4 {r(X + 4 * g)}, v{E2}, s[12:15], 0 offen offset:{32 * g}{sf}\ns_mov_b64 exec, -1")
    elif var == "B":
        X, T, P = ACC[3], ACC[1] + 8, ACC[0] + 8
        it += main_tile(0, ACC[0]) + main_tile(1, ACC[1]) + v_tile(ACC[2], E0)
        for b in range(2):
            it += [f"v_mov_b32_dpp v{T + k}, v{X + 8 * b + k} quad_perm:[1,0,3,2] row_mask:0xf bank_mask:0xf" for k in range(8)]
            it += [f"v_cvt_pk_bf16_f32 v{P + 4 * b + k}, v{X + 8 * b + 2 * k}, v{X + 8 * b + 2 * k + 1}" for k in range(4)]
            it += [f"v_cvt_pk_bf16_f32 v{X + 8 * b + k}, v{X + 8 * b + k}, v{T + k}" for k in range(8)]
            it += [f"v_cndmask_b32 v{P + 4 * b + k}, v{P + 4 * b + k}, v{V_CONST}, s[50:51]" for k in range(4)]
            it.append(f"s_mov_b64 exec, s[52:53]\nbuffer_store_dwordx4 {r(P + 4 * b)}, v{E1}, s[12:15], s{S_VT} offen offset:{640 * b}{sf}\ns_mov_b64 exec, -1")
            for g in (2 * b, 2 * b + 1):
                it.append(f"s_mov_b64 exec, s[54:55]\nbuffer_store_dwordx4 {r(X + 4 * g)}, v{E2}, s[12:15], 0 offen offset:{32 * g}{sf}\ns_mov_b64 exec, -1")
    else:
        it += v_tile(ACC[0], E0) + v_tile(ACC[1], E1) + v_tile(ACC[2], E2) + v_tile(ACC[3], E3, masked=True)
    return it


def poll_offsets(a):
    a("""s_and_b32 s73, s2, 7
    s_lshl_b32 s73, s73, 1
    s_bfe_u32 s74, s2, 0x10004
    s_add_u32 s72, s73, s74
    s_mul_i32 s73, s72, 43691
    s_lshr_b32 s73, s73, 17
    s_lshl_b32 s73, s73, 2
    s_add_u32 s74, s72, 16
    s_mul_i32 s74, s74, 43691
    s_lshr_b32 s74, s74, 17
    s_lshl_b32 s74, s74, 2
    s_add_u32 s75, s72, 32
    s_mul_i32 s75, s75, 43691
    s_lshr_b32 s75, s75, 17
    s_lshl_b32 s75, s75, 2""")
```
